```python
import torch

def _softmax(x, axis=-1):
    return torch.softmax(x, dim=axis)
def _gelu(x):
    return torch.nn.functional.gelu(x, approximate="tanh")
def _silu(x):
    return torch.nn.functional.silu(x)
def _sigmoid(x):
    return torch.sigmoid(x)
def _layernorm(x, axis=-1, eps=1e-5):
    m = x.mean(dim=axis, keepdim=True)
    v = x.var(dim=axis, keepdim=True, unbiased=False)
    return (x - m) / torch.sqrt(v + eps)
def _scatter_add(tgt, idx, src, axis=0):
    return tgt.clone().index_add_(axis, idx, src)
def _segment_sum(src, seg, n):
    out = torch.zeros((n,) + src.shape[1:], dtype=src.dtype)
    return out.index_add_(0, seg, src)
def _pad(x, pw):
    flat = tuple(v for pair in reversed(pw) for v in pair)
    return torch.nn.functional.pad(x, flat)

kernel_name = 'concat_heads__ssm_conv_s4d__mha_block__prompt'

def setup_inputs():

    _w = (lambda a: (lambda t: t.to(torch.bfloat16) if t.is_floating_point() else t)(torch.as_tensor(a)))
    def _A_setup():
        Bsz, L, D, N = 1, 2048, 576, 128
        return {
            "u": _w((lambda *s: torch.randn(*s, dtype=torch.bfloat16) * 0.05)(Bsz, L, D)),
            "log_A_real": _w((lambda *s: torch.randn(*s, dtype=torch.bfloat16) * 3.2)(D, N) * 0.5),
            "A_imag": _w((lambda *s: torch.randn(*s, dtype=torch.bfloat16) * 0.1)(D, N) * 3.14),
            "C_real": _w((lambda *s: torch.randn(*s, dtype=torch.bfloat16) * 0.8)(D, N) / N ** 0.5),
            "C_imag": _w((lambda *s: torch.randn(*s, dtype=torch.bfloat16) * 1.6)(D, N) / N ** 0.5),
            "log_dt": _w((lambda *s: torch.randn(*s, dtype=torch.bfloat16) * 0.1)(D) * 0.5 - 4.0),
            "D_skip": _w((lambda *s: torch.randn(*s, dtype=torch.bfloat16) * 0.1)(D)),
        }
    _A_in = _A_setup()

    def _B_setup():
        B, S, D, H = 1, 2048, 576, 32
        return {
            "x": _w((lambda *s: torch.randn(*s, dtype=torch.bfloat16) * 0.2)(B, S, D)),
            "wqkv": _w((lambda *s: torch.randn(*s, dtype=torch.bfloat16) * 0.2)(D, 3 * D)),
            "wo": _w((lambda *s: torch.randn(*s, dtype=torch.bfloat16) * 0.05)(D, D)),
        }
    _B_in = _B_setup()

    return {
        "A_u": _A_in["u"],
        "A_log_A_real": _A_in["log_A_real"],
        "A_A_imag": _A_in["A_imag"],
        "A_C_real": _A_in["C_real"],
        "A_C_imag": _A_in["C_imag"],
        "A_log_dt": _A_in["log_dt"],
        "A_D_skip": _A_in["D_skip"],
        "B_x": _B_in["x"],
        "B_wqkv": _B_in["wqkv"],
        "B_wo": _B_in["wo"],
    }

def reference(A_u, A_log_A_real, A_A_imag, A_C_real, A_C_imag, A_log_dt, A_D_skip, B_x, B_wqkv, B_wo):
    def _A_ref(u, log_A_real, A_imag, C_real, C_imag, log_dt, D_skip):
        L = u.shape[1]
        dt = torch.exp(log_dt)
        A = -torch.exp(log_A_real) + 1j * A_imag
        C = (C_real + 1j * C_imag) * dt[:, None]
        pos = (lambda x, dt: x.to(dt))(torch.arange(L), log_dt.dtype)
        P = torch.exp((A * dt[:, None])[:, :, None] * pos[None, None, :])
        K = 2.0 * torch.einsum("dn,dnl->dl", C, P).real
        L2 = 2 * L
        u_t = (lambda x, *d: x.permute(*d))(u, 0, 2, 1)
        Kf = (lambda x, *a, **k: torch.fft.rfft(x.float(), *a, **k))(K, L2)
        Uf = (lambda x, *a, **k: torch.fft.rfft(x.float(), *a, **k))(u_t, L2)
        y = (lambda x, *a, **k: torch.fft.irfft(x, *a, **k).to(torch.bfloat16))(Uf * Kf[None, :, :], L2)[:, :, :L]
        y = (lambda x, *d: x.permute(*d))(y, 0, 2, 1)
        return y + u * D_skip[None, None, :]

    def _B_ref(x, wqkv, wo):
        B, S, D = x.shape
        H = 32
        Dh = D // H
        qkv = (lambda x, *d: x.permute(*d))((x @ wqkv).reshape(B, S, 3, H, Dh), 2, 0, 3, 1, 4)
        q, k, v = qkv[0], qkv[1], qkv[2]
        scores = torch.einsum("bhqd,bhkd->bhqk", q, k) * (Dh ** -0.5)
        p = _softmax(scores, axis=-1)
        o = torch.einsum("bhqk,bhkd->bhqd", p, v)
        return (lambda x, *d: x.permute(*d))(o, 0, 2, 1, 3).reshape(B, S, D) @ wo

    a = _A_ref(A_u, A_log_A_real, A_A_imag, A_C_real, A_C_imag, A_log_dt, A_D_skip)
    b = _B_ref(B_x, B_wqkv, B_wo)
    return torch.concatenate([a, b], axis=-1)
```

```python
import sys
from g import *
HEADER = open("concat_heads__ssm_conv_s4d__mha_block__prompt.s.ref").read().split("; Override launch geometry")[0]

def assemble(kernels, launches):
    out = [HEADER.rstrip("\n")]
    for (n, g, b, l) in launches:
        out.append(f"; @launch kernel={n} grid=({g},1,1) block=({b},1,1) lds={l}")
    out.append('.amdgcn_target "amdgcn-amd-amdhsa--gfx950"')
    nerr = 0
    for (k, vg, sg) in kernels:
        errs = lint(k.text())
        for x in errs[:20]: print("LINT", k.name, x, file=sys.stderr)
        nerr += len(errs)
        out.append(kernel_text(k, vg))
    out.append("L_text_end:")
    out.append('.section .rodata,"a"')
    for (k, vg, sg) in kernels:
        out.append(descriptor(k.name, vg, sg))
    return "\n".join(out) + "\n", nerr
```

```python
import re

def v(i): return f"v{i}"
def vr(i, n): return f"v[{i}:{i+n-1}]" if n > 1 else f"v{i}"
def s(i): return f"s{i}"
def sr(i, n): return f"s[{i}:{i+n-1}]" if n > 1 else f"s{i}"

class K:
    def __init__(self, name):
        self.name = name
        self.lines = []
        self.uid = 0
    def e(self, txt):
        for l in txt.split("\n"):
            l = l.strip()
            if l:
                if l.startswith("v_cndmask_b32 "): l = "v_cndmask_b32_e64 " + l[len("v_cndmask_b32 "):]
                self.lines.append("    " + l)
    def c(self, txt):
        self.lines.append("    ; " + txt)
    def label(self, l):
        self.lines.append(l + ":")
    def newlabel(self, base):
        self.uid += 1
        return f"L_{self.name}_{base}_{self.uid}"
    def nop(self, n):
        while n > 0:
            k = min(n, 16)
            self.e(f"s_nop {k-1}")
            n -= k
    def text(self):
        return "\n".join(self.lines)

REG = re.compile(r"^(-?\|?)(v|s|a)(\d+|\[(\d+):(\d+)\])\|?$")
def regs(tok):
    tok = tok.strip()
    tok = tok.replace("abs(", "").replace(")", "").replace("neg(", "")
    tok = tok.lstrip("-").strip("|")
    if tok in ("vcc",): return {("s", 106), ("s", 107)}
    if tok in ("vcc_lo",): return {("s", 106)}
    if tok in ("vcc_hi",): return {("s", 107)}
    if tok == "exec": return {("s", 126), ("s", 127)}
    if tok in ("exec_lo",): return {("s", 126)}
    if tok in ("exec_hi",): return {("s", 127)}
    if tok == "m0": return {("s", 124)}
    m = re.match(r"^(v|s|a)(\d+)$", tok)
    if m: return {(m.group(1), int(m.group(2)))}
    m = re.match(r"^(v|s|a)\[(\d+):(\d+)\]$", tok)
    if m: return {(m.group(1), i) for i in range(int(m.group(2)), int(m.group(3)) + 1)}
    return set()

TRANS = ("v_exp_", "v_log_", "v_rcp_", "v_rsq_", "v_sqrt_", "v_sin_", "v_cos_")

class I:
    pass

def parse(line):
    l = line.split(";")[0].strip()
    if not l or l.endswith(":") or l.startswith("."): return None
    parts = l.split(None, 1)
    op = parts[0]
    rest = parts[1] if len(parts) > 1 else ""
    ops = [o.strip() for o in re.split(r",(?![^\[]*\])", rest)] if rest else []
    mods = ""
    if ops:
        toks = ops[-1].split()
        ops[-1] = toks[0] if toks else ""
        mods = " ".join(toks[1:])
    ins = I(); ins.op = op; ins.ops = ops; ins.mods = mods; ins.line = line.strip()
    ins.w = set(); ins.r = set(); ins.kind = "other"; ins.states = 1
    ins.srcc = set(); ins.ab = set(); ins.passes = 0; ins.data = set()
    if op == "s_nop":
        ins.kind = "nop"; ins.states = int(ops[0], 0) + 1; return ins
    if op.startswith("v_mfma"):
        ins.kind = "mfma"
        ins.w = regs(ops[0]); ins.ab = regs(ops[1]) | regs(ops[2]); ins.srcc = regs(ops[3])
        ins.r = ins.ab | ins.srcc
        ins.passes = 8 if ("32x32" in op) else 4
        if "32x32x2_f32" in op or "32x32x1_" in op: ins.passes = 16
        if "16x16x4_f32" in op: ins.passes = 8
        return ins
    if op.startswith("v_"):
        ins.kind = "valu"
        ins.trans = op.startswith(TRANS)
        if op.startswith("v_cmp"):
            ins.w = regs(ops[0]); rd = ops[1:]
            if op.startswith("v_cmpx"): ins.w |= regs("exec")
        elif op.startswith(("v_readfirstlane", "v_readlane")):
            ins.w = regs(ops[0]); rd = ops[1:]
        elif op.startswith(("v_add_co", "v_sub_co", "v_addc_co", "v_subb_co", "v_subrev_co")):
            ins.w = regs(ops[0]) | regs(ops[1]); rd = ops[2:]
        elif op.startswith("v_permlane32_swap") or op.startswith("v_permlane16_swap"):
            ins.w = regs(ops[0]) | regs(ops[1]); rd = ops[0:]
        else:
            ins.w = regs(ops[0]); rd = ops[1:]
            if op.startswith(("v_fmac", "v_mac", "v_pk_fmac", "v_dot2c")) or "UNUSED_PRESERVE" in mods or "_dpp" in op or op.startswith("v_writelane") or op.startswith("v_cvt_scalef32"):
                rd = ops[0:]
        for o in rd: ins.r |= regs(o)
        if op.startswith("v_cndmask") and len(ops) == 3: ins.r |= regs("vcc")
        if op.startswith(("v_addc_co", "v_subb_co")): pass
        return ins
    if op.startswith("ds_"):
        ins.kind = "ds"
        if op.startswith(("ds_read", "ds_bpermute", "ds_permute", "ds_swizzle")):
            ins.w = regs(ops[0])
            for o in ops[1:]: ins.r |= regs(o)
        else:
            for o in ops: ins.r |= regs(o)
        return ins
    if op.startswith(("buffer_", "global_")):
        ins.kind = "vmem"
        ins.lds = (" lds" in " " + mods) or ("load_lds" in op)
        if "load" in op and not ins.lds:
            ins.w = regs(ops[0])
            for o in ops[1:]: ins.r |= regs(o)
        elif "store" in op:
            if op.startswith("buffer_"):
                ins.data = regs(ops[0])
            else:
                ins.data = regs(ops[1])
            for o in ops: ins.r |= regs(o)
            ins.wide = ("x3" in op or "x4" in op)
        elif "atomic" in op:
            for o in ops: ins.r |= regs(o)
            if "sc0" in mods: ins.w = regs(ops[0])
        else:
            for o in ops: ins.r |= regs(o)
        if ins.lds: ins.r |= regs("m0")
        return ins
    if op.startswith("s_"):
        ins.kind = "salu"
        if op.startswith(("s_cmp", "s_cbranch", "s_branch", "s_waitcnt", "s_barrier", "s_endpgm", "s_setprio", "s_sleep", "s_bitcmp")):
            for o in ops: ins.r |= regs(o)
        elif op.startswith("s_load") or op.startswith("s_buffer_load"):
            ins.kind = "smem"
            ins.w = regs(ops[0])
            for o in ops[1:]: ins.r |= regs(o)
        else:
            if ops:
                ins.w = regs(ops[0])
                for o in ops[1:]: ins.r |= regs(o)
            if "saveexec" in op: ins.w |= regs("exec")
        return ins
    return ins

def isv(x): return {r for r in x if r[0] in "va"}
def iss(x): return {r for r in x if r[0] == "s"}

def check_pair(p, c, dist):
    out = []
    def need(n, why):
        if dist < n: out.append((n, why))
    if p.kind == "valu" and c.kind == "mfma" and (isv(p.w) & c.r): need(2, "VALU->MFMA operand")
    if p.kind == "mfma":
        big = p.passes
        nv = {4: 8, 8: 12, 16: 20}[big]
        if c.kind == "valu" and (p.w & (c.r | c.w)): need(nv, "MFMA D->VALU")
        if c.kind in ("ds", "vmem") and (p.w & (c.r | c.w)): need(nv, "MFMA D->mem")
        if c.kind == "mfma":
            if p.w & c.ab: need(nv, "MFMA D->MFMA A/B")
            if p.w & c.srcc:
                if not (c.srcc == p.w and c.passes == p.passes): need({4: 6, 8: 10, 16: 18}[big], "MFMA D->MFMA C partial")
            elif (p.w & c.w) : need({4: 6, 8: 10, 16: 18}[big], "MFMA D->MFMA D WAW w/o chain (conservative)")
        if c.kind == "valu" and (p.srcc & c.w): need({4: 3, 8: 7, 16: 15}[big], "MFMA srcC WAR VALU")
    if p.kind == "valu":
        sw = iss(p.w)
        if c.kind == "vmem" and (sw & c.r): need(5, "VALU sgpr->VMEM")
        if c.kind == "valu" and (sw & iss(c.r)):
            if c.op.startswith(("v_readlane", "v_writelane")): need(4, "VALU sgpr->lane select")
            else: need(2, "VALU sgpr->VALU const")
        if getattr(p, "trans", False) and c.kind == "valu" and not getattr(c, "trans", False) and (isv(p.w) & c.r): need(1, "trans->VALU")
        if getattr(p, "trans", False) and c.kind in ("mfma",) and (isv(p.w) & c.r): need(2, "trans->mfma")
        if c.kind == "valu" and (isv(p.w) & c.r):
            if c.op.startswith("v_permlane"): need(2, "VALU->permlane")
            if "_dpp" in c.op: need(2, "VALU->DPP")
            if c.op.startswith(("v_readlane", "v_readfirstlane")): need(1, "VALU->readlane")
            if "sdwa" in p.op or "op_sel" in p.mods: need(1, "sdwa/opsel->VALU")
        if (("s", 126) in p.w or ("s", 127) in p.w):
            if c.kind == "mfma": need(4, "VALU exec->MFMA")
            if c.kind == "valu" and "_dpp" in c.op: need(5, "VALU exec->DPP")
            if c.kind == "valu" and c.op.startswith(("v_readlane", "v_readfirstlane", "v_writelane", "v_permlane")): need(4, "cmpx->lane op")
    if p.kind == "salu" and ("s", 124) in p.w and c.kind == "vmem" and getattr(c, "lds", False): need(1, "m0->LDS DMA")
    if p.kind == "vmem" and getattr(p, "wide", False) and p.data:
        if c.kind == "valu" and (p.data & c.w): need(2, "wide store data WAR (VALU)")
        elif c.kind in ("ds", "vmem", "mfma") and (p.data & c.w): need(1, "wide store data WAR")
    return out

def lint_seq(seq, errs, tag=""):
    n = len(seq)
    for j in range(n):
        c = seq[j]
        dist = 0
        for i in range(j - 1, max(-1, j - 26), -1):
            p = seq[i]
            for (nd, why) in check_pair(p, c, dist):
                errs.append(f"{tag}{why}: need {nd} have {dist}: [{p.line}] -> [{c.line}]")
            dist += p.states
            if dist >= 24: break

def lint(text):
    lines = text.split("\n")
    ins = []; labels = {}
    for l in lines:
        t = l.split(";")[0].strip()
        if t.endswith(":"):
            labels[t[:-1]] = len(ins); continue
        p = parse(l)
        if p is not None: ins.append(p)
    errs = []
    seg = []
    for p in ins:
        seg.append(p)
        if p.op in ("s_branch", "s_endpgm", "s_setpc_b64"):
            lint_seq(seg, errs); seg = []
    lint_seq(seg, errs)
    for idx, p in enumerate(ins):
        if p.op.startswith(("s_cbranch", "s_branch")):
            tgt = labels.get(p.ops[0])
            if tgt is None: continue
            tail = []
            k = idx
            while k >= 0 and len(tail) < 26:
                tail.append(ins[k])
                k -= 1
                if k >= 0 and ins[k].op in ("s_branch", "s_endpgm"): break
            tail.reverse()
            head = []
            k = tgt
            while k < len(ins) and len(head) < 26:
                head.append(ins[k])
                if ins[k].op in ("s_branch", "s_endpgm"): break
                k += 1
            e2 = []
            lint_seq(tail + head, e2, "edge:")
            errs += e2
    seen = set(); out = []
    for x in errs:
        y = x.replace("edge:", "")
        if y not in seen:
            seen.add(y); out.append(x)
    return out

def kernel_text(k, vgprs, sgprs=96, accum=None):
    if accum is None: accum = (vgprs + 3) // 4 * 4
    name = k.name
    return f"""
.text
.globl {name}
.p2align 8
.type {name},@function
{name}:
{k.text()}
"""
def descriptor(name, vgprs, sgprs=96, accum=None):
    if accum is None: accum = min(256, (vgprs + 3) // 4 * 4)
    return f"""
.p2align 6
.amdhsa_kernel {name}
  .amdhsa_next_free_vgpr {vgprs}
  .amdhsa_next_free_sgpr {sgprs}
  .amdhsa_accum_offset {accum}
  .amdhsa_group_segment_fixed_size 0
  .amdhsa_kernarg_size 104
  .amdhsa_user_sgpr_count 2
  .amdhsa_user_sgpr_kernarg_segment_ptr 1
  .amdhsa_system_sgpr_workgroup_id_x 1
  .amdhsa_float_denorm_mode_32 3
.end_amdhsa_kernel
"""

STAMP = 0x2000000
def stamp_begin(k):
    k.e("s_memrealtime s[90:91]")
def stamp_end(k, kidx, slot=0):
    k.e(f"""
    s_waitcnt vmcnt(0) lgkmcnt(0)
    s_memrealtime s[92:93]
    s_load_dwordx2 s[94:95], s[0:1], 96
    s_waitcnt lgkmcnt(0)
    s_mov_b64 exec, 1
    s_mov_b32 s84, s94
    s_and_b32 s85, s95, 0xffff
    s_mov_b32 s86, 0x4000000
    s_mov_b32 s87, 0x00020000
    v_mov_b32 v2, s90
    v_mov_b32 v3, s92
    s_lshl_b32 s88, s89, 3
    v_mov_b32 v1, s88
    v_add_u32 v1, {STAMP + kidx * 0x40000}, v1
    buffer_store_dwordx2 v[2:3], v1, s[84:87], 0 offen
    s_waitcnt vmcnt(0)
    """)
def stamp_id(k, waves_per_wg):
    k.e(f"""
    v_lshrrev_b32 v1, 6, v0
    s_nop 0
    v_readfirstlane_b32 s89, v1
    s_mul_i32 s88, s2, 16
    s_add_u32 s89, s89, s88
    """)

PROF = 0x3000000
class Prof:
    def __init__(self, k, on, kidx):
        self.k = k; self.on = on; self.n = 0; self.kidx = kidx
    def mark(self):
        if not self.on: return
        assert self.n < 24
        self.k.e(f"s_memtime s[58:59]")
        self.k.e("s_waitcnt lgkmcnt(0)")
        self.k.e(f"s_mov_b32 s{60+self.n}, s58")
        self.n += 1
    def dump(self):
        if not self.on: return
        k = self.k
        k.e(f"""
        s_waitcnt vmcnt(0) lgkmcnt(0)
        s_load_dwordx2 s[94:95], s[0:1], 96
        s_waitcnt lgkmcnt(0)
        s_mov_b64 exec, 1
        s_mov_b32 s84, s94
        s_and_b32 s85, s95, 0xffff
        s_mov_b32 s86, 0x4000000
        s_mov_b32 s87, 0x00020000
        s_lshl_b32 s88, s89, 7
        v_mov_b32 v1, s88
        v_add_u32 v1, {PROF + self.kidx * 0x100000}, v1
        """)
        k.e("s_memrealtime s[56:57]")
        k.e("s_waitcnt lgkmcnt(0)")
        k.e("s_sub_u32 s81, s56, s55")
        for i in range(24):
            k.e(f"v_mov_b32 v2, s{60+i}" if i < self.n else "v_mov_b32 v2, 0")
            k.e(f"buffer_store_dword v2, v1, s[84:87], 0 offen offset:{4*i}")
            k.e("s_nop 1")
        k.e("s_waitcnt vmcnt(0)")
```

```python
from g import *
from sb import SB
from layout import *
from k_qkv import srd, f2u

QF, Q2F = 4, 8
KF, K2F = 12, 16
V0, V1 = 20, 24
P = 28
SA, SBUF = 36, 52
O = 68
vK, vK2, vV = 84, 85, 86
T0 = 88
NV = 100
ATT_LDS = 163840

def gen_attn(k, prof=None, nwaves_total=8, var=()):
    t = T0
    lane = 2
    k.c("---- attention ----")
    k.e(f"""
    s_load_dwordx2 s[4:5], s[0:1], 96
    v_lshrrev_b32 v1, 6, v0
    v_and_b32 v2, 63, v0
    s_and_b32 s20, s2, 7
    v_readfirstlane_b32 s19, v1
    s_lshr_b32 s21, s2, 3
    s_and_b32 s22, s21, 3
    s_lshl_b32 s20, s20, 2
    s_add_u32 s20, s20, s22
    s_lshr_b32 s21, s21, 2
    s_lshl_b32 s21, s21, 3
    s_add_u32 s21, s21, s19
    s_mul_i32 s24, s20, {HB}
    s_lshl_b32 s25, s19, 10
    s_add_u32 s24, s24, s25
    s_lshl_b32 s26, s20, 16
    s_lshl_b32 s27, s21, 10
    s_add_u32 s26, s26, s27
    s_add_u32 s26, s26, {QM}
    s_lshl_b32 s28, s20, 13
    s_lshl_b32 s27, s21, 7
    s_add_u32 s28, s28, s27
    s_add_u32 s28, s28, {Q2}
    v_lshlrev_b32 v{vK}, 4, v{lane}
    v_and_b32 v{t}, 31, v{lane}
    v_lshlrev_b32 v{t+1}, 2, v{t}
    v_mov_b32 v{t+2}, -1
    v_cmp_gt_u32 vcc, 32, v{lane}
    v_mov_b32 v{Q2F+1}, 0
    v_mov_b32 v{K2F+1}, 0x3f803f80
    v_cndmask_b32 v{t+2}, v{t+2}, v{t+1}, vcc
    s_waitcnt lgkmcnt(0)
    """)
    if prof: prof.mark()
    srd(k, 8, 4, WS_END)
    vm = SB(k, "vmcnt", 63)
    k.e(f"buffer_load_dwordx4 {vr(QF,4)}, v{vK}, s[8:11], s26 offen"); vm.issue("Q")
    k.e(f"buffer_load_dword v{Q2F}, v{t+2}, s[8:11], s28 offen"); vm.issue("Q")
    for j in range(19):
        k.e(f"s_add_u32 m0, s25, {j*8192}")
        k.e(f"s_add_u32 s27, s24, {j*8192}")
        k.e(f"buffer_load_dwordx4 v{vK}, s[8:11], s27 offen lds"); vm.issue(("D", j))
    if prof: prof.mark()
    k.e(f"""
    v_add_u32 v{vK2}, 8192, v{t+1}
    v_lshrrev_b32 v{t+3}, 5, v{lane}
    v_mul_u32_u24 v{t+3}, 304, v{t+3}
    v_mov_b32 v{t+4}, 0
    v_mov_b32 v{t+5}, 4
    v_cmp_gt_u32 vcc, 19, v{t}
    v_cmp_lt_u32 s[30:31], 19, v{t}
    v_cmp_gt_u32 s[32:33], 28, v{t}
    s_and_b64 s[30:31], s[30:31], s[32:33]
    v_cndmask_b32 v{t+5}, v{t+5}, v{t+4}, s[30:31]
    v_cndmask_b32 v{t+5}, v{t+5}, v{t}, vcc
    v_lshl_add_u32 v{t+5}, v{t+5}, 4, v{t+3}
    v_add_u32 v{vV}, 9216, v{t+5}
    s_mov_b32 s40, 0
    """)
    vm.wait_for([("D", 3)])
    if prof: prof.mark()
    k.e("s_barrier")
    if prof: prof.mark()
    lstart = k.newlabel("start")
    k.label(lstart)
    for i in range(16): k.e(f"v_mov_b32 v{O+i}, 0")
    for i in range(4): k.e(f"v_mov_b32 v{P+4+i}, 0")
    for i in range(4): k.e(f"v_mov_b32 v{V1+i}, 0")
    k.e(f"""
    v_lshlrev_b32 v{vK}, 4, v{lane}
    v_and_b32 v{t}, 31, v{lane}
    v_lshlrev_b32 v{vK2}, 2, v{t}
    v_add_u32 v{vK2}, 8192, v{vK2}
    v_add_u32 v{vV}, 9216, v{t+5}
    """)
    k.e(f"""
    ds_read_b128 {vr(KF,4)}, v{vK}
    ds_read_b32 v{K2F}, v{vK2}
    s_waitcnt lgkmcnt(0)
    v_mfma_f32_32x32x16_bf16 {vr(SA,16)}, {vr(KF,4)}, {vr(QF,4)}, 0
    v_mfma_f32_32x32x8_bf16 {vr(SA,16)}, {vr(K2F,2)}, {vr(Q2F,2)}, {vr(SA,16)}
    ds_read_b128 {vr(KF,4)}, v{vK} offset:1024
    ds_read_b32 v{K2F}, v{vK2} offset:128
    ds_read_b128 {vr(V0,4)}, v{vV}
    s_mov_b32 s41, 0
    s_waitcnt lgkmcnt(0)
    s_nop 7
    """)
    if "noprio" not in var: k.e("s_setprio 3")
    lloop = k.newlabel("loop")
    k.label(lloop)
    def tile(tin):
        cur = SA if tin % 2 == 0 else SBUF
        nxt = SBUF if tin % 2 == 0 else SA
        def ex(i): k.e(f"v_exp_f32 v{cur+i}, v{cur+i}")
        def cv(j): k.e(f"v_cvt_pk_bf16_f32 v{P+j}, v{cur+2*j}, v{cur+2*j+1}")
        def grp(g):
            for i in range(4): ex(4*g + i)
            cv(2*g); cv(2*g + 1)
        E = (lambda x: None) if "nolds" in var else k.e
        W = (lambda x: None) if ("nolds" in var or "nowait" in var) else k.e
        M = (lambda x: None) if "nomfma" in var else k.e
        W("s_waitcnt lgkmcnt(3)")
        M(f"v_mfma_f32_32x32x16_bf16 {vr(nxt,16)}, {vr(KF,4)}, {vr(QF,4)}, 0")
        E(f"ds_read_b128 {vr(KF,4)}, v{vK} offset:{koff(tin+2)}")
        grp(0)
        W("s_waitcnt lgkmcnt(3)")
        M(f"v_mfma_f32_32x32x16_bf16 {vr(O,16)}, {vr(V1,4)}, {vr(P+4,4)}, {vr(O,16)}")
        E(f"ds_read_b128 {vr(V1,4)}, v{vV} offset:{voff(2*tin+1)}")
        grp(1)
        W("s_waitcnt lgkmcnt(3)")
        M(f"v_mfma_f32_32x32x8_bf16 {vr(nxt,16)}, {vr(K2F,2)}, {vr(Q2F,2)}, {vr(nxt,16)}")
        E(f"ds_read_b32 v{K2F}, v{vK2} offset:{k2off(tin+2)}")
        grp(2)
        W("s_waitcnt lgkmcnt(3)")
        M(f"v_mfma_f32_32x32x16_bf16 {vr(O,16)}, {vr(V0,4)}, {vr(P,4)}, {vr(O,16)}")
        E(f"ds_read_b128 {vr(V0,4)}, v{vV} offset:{voff(2*tin+2)}")
        grp(3)
    def koff(tt): return (tt >> 3) * CH + (tt & 7) * 1024
    def k2off(tt): return (tt >> 3) * CH + (tt & 7) * 128
    def voff(ks): return (ks >> 4) * CH + (ks & 15) * 608
    for tin in range(8): tile(tin)
    lskip = k.newlabel("nobar")
    k.e(f"""
    v_add_u32 v{vK}, {CH}, v{vK}
    v_add_u32 v{vK2}, {CH}, v{vK2}
    v_add_u32 v{vV}, {CH}, v{vV}
    s_add_u32 s41, s41, 1
    s_cmp_eq_u32 s41, 1
    s_cbranch_scc0 {lskip}
    s_cmp_eq_u32 s40, 0
    s_cbranch_scc0 {lskip}
    s_waitcnt vmcnt(0)
    s_barrier
    """)
    k.label(lskip)
    if "noprio" not in var:
        for (cnt, pr) in ((5, 2), (6, 1), (7, 0)):
            l2 = k.newlabel("pr")
            k.e(f"s_cmp_eq_u32 s41, {cnt}")
            k.e(f"s_cbranch_scc0 {l2}")
            k.e(f"s_setprio {pr}")
            k.label(l2)
    k.e("s_cmp_lt_u32 s41, 8")
    k.e(f"s_cbranch_scc1 {lloop}")
    k.e(f"""
    s_waitcnt lgkmcnt(0)
    v_mfma_f32_32x32x16_bf16 {vr(O,16)}, {vr(V1,4)}, {vr(P+4,4)}, {vr(O,16)}
    """)
    if prof: prof.mark()
    k.nop(12)
    lfin = k.newlabel("fin"); lfb = k.newlabel("fb")
    k.e(f"""
    v_mov_b32 v{t}, v{O+10}
    v_mov_b32 v{t+1}, v{O+10}
    s_nop 1
    v_permlane32_swap_b32 v{t}, v{t+1}
    s_cmp_eq_u32 s40, {1 if set(var) & {'nolds','nomfma','nowait'} else 0}
    s_cbranch_scc0 {lfin}
    s_mov_b32 s42, {f2u(2.0**-64)}
    s_mov_b32 s43, {f2u(2.0**40)}
    v_cmp_le_f32 vcc, s42, v{t}
    v_cmp_ge_f32 s[30:31], s43, v{t}
    s_and_b64 s[30:31], s[30:31], vcc
    s_cmp_eq_u64 s[30:31], exec
    s_cbranch_scc0 {lfb}
    """)
    k.label(lfin)
    k.e(f"""
    v_rcp_f32 v{t}, v{t}
    v_and_b32 v{t+2}, 31, v{lane}
    v_lshrrev_b32 v{t+3}, 5, v{lane}
    s_lshl_b32 s26, s21, 5
    v_add_u32 v{t+2}, s26, v{t+2}
    v_mul_u32_u24 v{t+2}, 1152, v{t+2}
    v_lshl_add_u32 v{t+2}, v{t+3}, 3, v{t+2}
    s_mul_i32 s27, s20, 36
    s_add_u32 s27, s27, {OA}
    """)
    for r in range(10): k.e(f"v_mul_f32 v{O+r}, v{O+r}, v{t}")
    for j in range(5): k.e(f"v_cvt_pk_bf16_f32 v{P+j}, v{O+2*j}, v{O+2*j+1}")
    k.e(f"""
    buffer_store_dwordx2 {vr(P,2)}, v{t+2}, s[8:11], s27 offen
    buffer_store_dwordx2 {vr(P+2,2)}, v{t+2}, s[8:11], s27 offen offset:16
    s_mov_b32 exec_hi, 0
    buffer_store_dword v{P+4}, v{t+2}, s[8:11], s27 offen offset:32
    s_mov_b64 exec, -1
    """)
    lend = k.newlabel("end")
    k.e(f"s_branch {lend}")
    k.label(lfb)
    k.c("fallback: compute the true row max and redo the pass")
    k.e(f"""
    s_waitcnt vmcnt(0)
    v_lshlrev_b32 v{vK}, 4, v{lane}
    v_and_b32 v{t}, 31, v{lane}
    v_lshlrev_b32 v{vK2}, 2, v{t}
    v_add_u32 v{vK2}, 8192, v{vK2}
    v_mov_b32 v{t+6}, 0xff800000
    s_mov_b32 s41, 0
    """)
    lm = k.newlabel("mx")
    k.label(lm)
    for tin in range(8):
        k.e(f"""
        ds_read_b128 {vr(KF,4)}, v{vK} offset:{tin*1024}
        ds_read_b32 v{K2F}, v{vK2} offset:{tin*128}
        s_waitcnt lgkmcnt(0)
        v_mfma_f32_32x32x16_bf16 {vr(SA,16)}, {vr(KF,4)}, {vr(QF,4)}, 0
        v_mfma_f32_32x32x8_bf16 {vr(SA,16)}, {vr(K2F,2)}, {vr(Q2F,2)}, {vr(SA,16)}
        """)
        k.nop(12)
        for i in range(8):
            k.e(f"v_max3_f32 v{t+6}, v{SA+2*i}, v{SA+2*i+1}, v{t+6}")
    k.e(f"""
    v_add_u32 v{vK}, {CH}, v{vK}
    v_add_u32 v{vK2}, {CH}, v{vK2}
    s_add_u32 s41, s41, 1
    s_cmp_lt_u32 s41, 8
    s_cbranch_scc1 {lm}
    v_mov_b32 v{t+7}, v{t+6}
    s_nop 1
    v_permlane32_swap_b32 v{t+6}, v{t+7}
    s_nop 1
    v_max_f32 v{t+6}, v{t+6}, v{t+7}
    v_cvt_pk_bf16_f32 v{t+7}, v{t+6}, v{t+6}
    v_lshlrev_b32 v{t+8}, 16, v{t+7}
    v_sub_f32 v{t+8}, v{t+6}, v{t+8}
    v_cvt_pk_bf16_f32 v{t+7}, -v{t+6}, -v{t+8}
    v_mov_b32 v{t+9}, 0
    v_cmp_gt_u32 vcc, 32, v{lane}
    s_mov_b32 s40, 1
    s_nop 0
    v_cndmask_b32 v{Q2F+1}, v{t+9}, v{t+7}, vcc
    s_branch {lstart}
    """)
    k.label(lend)
```

```python
from g import *
from sb import SB
from layout import *
from k_qkv import srd, f2u

NST = 4
XST = 16384
WBASE = NST * XST
WST = 8192
OP_LDS = WBASE + NST * WST
ACC = 16
XF = [32, 36]
WF = [40, 44]
vXd, vXd2, vWd = 4, 5, 6
vXr = [8, 9, 10, 11]
vWr = 12
T0 = 48
NV = 64

def gen_oproj(k, prof=None):
    lane = 2; t = T0
    k.c("---- output projection ----")
    k.e(f"""
    s_load_dwordx4 s[4:7], s[0:1], 72
    s_load_dwordx2 s[28:29], s[0:1], 96
    v_lshrrev_b32 v1, 6, v0
    v_and_b32 v2, 63, v0
    s_and_b32 s30, s2, 7
    v_readfirstlane_b32 s19, v1
    s_lshr_b32 s31, s2, 3
    """)
    k.e(f"""
    s_lshl_b32 s21, s30, 1
    s_and_b32 s32, s31, 1
    s_add_u32 s21, s21, s32
    s_lshr_b32 s22, s31, 1
    s_and_b32 s20, s19, 3
    s_lshr_b32 s43, s19, 2
    s_lshl_b32 s24, s21, 7
    s_lshl_b32 s33, s20, 5
    s_add_u32 s24, s24, s33
    s_lshl_b32 s33, s43, 4
    s_add_u32 s24, s24, s33
    s_mul_i32 s24, s24, 1152
    s_add_u32 s24, s24, {OA}
    s_lshl_b32 s25, s22, 7
    s_mul_i32 s33, s19, {8*1152}
    s_add_u32 s25, s25, s33
    s_lshl_b32 s26, s20, 12
    s_lshl_b32 s33, s43, 11
    s_add_u32 s48, s26, s33
    s_lshl_b32 s27, s19, 10
    s_add_u32 s27, s27, {WBASE}
    v_lshrrev_b32 v{t}, 3, v{lane}
    v_mul_u32_u24 v{t}, 1152, v{t}
    v_and_b32 v{t+1}, 7, v{lane}
    v_lshrrev_b32 v{t+2}, 4, v{lane}
    v_xor_b32 v{t+3}, v{t+1}, v{t+2}
    v_lshl_add_u32 v{vXd}, v{t+3}, 4, v{t}
    v_xor_b32 v{t+3}, 4, v{t+3}
    v_lshl_add_u32 v{vXd2}, v{t+3}, 4, v{t}
    v_bfe_u32 v{t+3}, v{lane}, 4, 1
    v_lshlrev_b32 v{t+3}, 2, v{t+3}
    v_xor_b32 v{t+3}, v{t+1}, v{t+3}
    v_lshl_add_u32 v{vWd}, v{t+3}, 4, v{t}
    s_waitcnt lgkmcnt(0)
    """)
    srd(k, 8, 28, WS_END)
    srd(k, 12, 4, WOB)
    srd(k, 16, 6, OUTB)
    vm = SB(k, "vmcnt", 63)
    def dma_list(c):
        st = c % NST
        out = []
        for jj in range(2):
            out.append((f"""s_add_u32 m0, s48, {st*XST + jj*1024}
            s_add_u32 s28, s24, {jj*9216 + c*128}
            buffer_load_dwordx4 v{vXd if jj == 0 else vXd2}, s[8:11], s28 offen lds""", ("D", c)))
        out.append((f"""s_add_u32 m0, s27, {st*WST}
            s_add_u32 s28, s25, {c*64*1152}
            buffer_load_dwordx4 v{vWd}, s[12:15], s28 offen lds""", ("D", c)))
        return out
    def emit_dma(d):
        k.e(d[0]); vm.issue(d[1])
    for d in dma_list(0): emit_dma(d)
    k.e("s_barrier")
    for c in range(1, NST - 1):
        for d in dma_list(c): emit_dma(d)
    k.e(f"""
    v_and_b32 v{t}, 31, v{lane}
    v_lshrrev_b32 v{t+1}, 5, v{lane}
    v_bfe_u32 v{t+2}, v{t}, 1, 3
    v_lshlrev_b32 v{t}, 7, v{t}
    v_add_u32 v{t}, s26, v{t}
    """)
    for sx in range(4):
        k.e(f"""
        v_add_u32 v{t+3}, {2*sx}, v{t+1}
        v_xor_b32 v{t+3}, v{t+3}, v{t+2}
        v_lshl_add_u32 v{vXr[sx]}, v{t+3}, 4, v{t}
        """)
    k.e(f"""
    v_bfe_u32 v{t}, v{lane}, 2, 2
    v_lshrrev_b32 v{t+1}, 5, v{lane}
    v_lshl_add_u32 v{t}, v{t+1}, 3, v{t}
    v_lshlrev_b32 v{t}, 7, v{t}
    v_add_u32 v{t}, {WBASE}, v{t}
    v_bfe_u32 v{t+1}, v{lane}, 4, 1
    v_and_b32 v{t+2}, 3, v{lane}
    v_bfe_u32 v{t+3}, v{lane}, 3, 1
    v_and_b32 v{t+4}, 1, v{t+2}
    v_lshl_add_u32 v{t+4}, v{t+1}, 1, v{t+4}
    v_xor_b32 v{t+3}, s43, v{t+3}
    v_lshl_add_u32 v{t+4}, v{t+3}, 2, v{t+4}
    v_lshlrev_b32 v{t+4}, 4, v{t+4}
    v_lshrrev_b32 v{t+5}, 1, v{t+2}
    v_lshl_add_u32 v{t+4}, v{t+5}, 3, v{t+4}
    v_add_u32 v{vWr}, v{t}, v{t+4}
    """)
    lg = SB(k, "lgkmcnt", 15)
    def reads(c, sx, buf):
        st = c % NST
        r = [(f"ds_read_b128 {vr(XF[buf],4)}, v{vXr[sx]} offset:{st*XST}", ("X", c, sx))]
        for z in range(2):
            r.append((f"ds_read_b64_tr_b16 {vr(WF[buf]+2*z,2)}, v{vWr} offset:{st*WST + sx*2048 + z*512}", ("W", c, sx, z)))
        return r
    first = [True]
    def mfma(c, sx, buf):
        lg.wait_for([("X", c, sx), ("W", c, sx, 0), ("W", c, sx, 1)])
        d = vr(ACC, 16)
        k.e(f"v_mfma_f32_32x32x16_bf16 {d}, {vr(WF[buf],4)}, {vr(XF[buf],4)}, {'0' if first[0] else d}")
        first[0] = False
    for c in range(9):
        vm.wait_for([("D", c)])
        lg.wait_all()
        k.e("s_barrier")
        if prof: prof.mark()
        dm = dma_list(c + NST - 1) if c + NST - 1 < 9 else []
        for (txt, tag) in reads(c, 0, 0):
            k.e(txt); lg.issue(tag)
        if c > 0: mfma(c - 1, 3, 1)
        for sx in range(3 if c < 8 else 4):
            buf = sx & 1
            if sx < 3:
                for (txt, tag) in reads(c, sx + 1, buf ^ 1):
                    k.e(txt); lg.issue(tag)
            if dm: emit_dma(dm.pop(0))
            mfma(c, sx, buf)
        assert not dm
    if prof: prof.mark()
    k.e(f"""
    s_lshl_b32 s30, s21, 7
    s_lshl_b32 s31, s20, 5
    s_add_u32 s30, s30, s31
    s_mul_i32 s30, s30, 2304
    s_lshl_b32 s31, s22, 7
    s_add_u32 s30, s30, s31
    s_lshl_b32 s31, s43, 6
    s_add_u32 s30, s30, s31
    s_add_u32 s30, s30, 1152
    v_and_b32 v{t}, 31, v{lane}
    v_mul_u32_u24 v{t}, 2304, v{t}
    v_lshrrev_b32 v{t+1}, 5, v{lane}
    v_lshl_add_u32 v{t}, v{t+1}, 4, v{t}
    """)
    k.nop(4)
    for g in range(2):
        for i in range(4):
            k.e(f"v_cvt_pk_bf16_f32 v{32+4*g+i}, v{ACC+8*g+2*i}, v{ACC+8*g+2*i+1}")
        k.e(f"buffer_store_dwordx4 {vr(32+4*g,4)}, v{t}, s[16:19], s30 offen offset:{32*g}")
```

```python
from g import *
from sb import SB
from layout import *
import struct

def f2u(x): return struct.unpack("<I", struct.pack("<f", x))[0]

def srd(k, dst, ptr, size):
    k.e(f"s_mov_b32 s{dst}, s{ptr}")
    k.e(f"s_and_b32 s{dst+1}, s{ptr+1}, 0xffff")
    k.e(f"s_mov_b32 s{dst+2}, {size}")
    k.e(f"s_mov_b32 s{dst+3}, 0x00020000")

XST = 16384
WBASE = 3 * XST
WST = 24576
GEMM_LDS = WBASE + 3 * WST

ACC = 16
XF = [64, 68]
WF = [72, 84]
vXd = 4
vXd2 = 5
vWp = [6, 7, 8]
vXr = [9, 10, 11, 12]
vWr01 = [13, 14, 15]
vWr2 = [96, 97, 98]
T0 = 100
NV = 116

def gen_qkv(k, prof=None):
    k.c("---- QKV GEMM ----")
    lane = 2
    t = T0
    k.e("""
    s_load_dwordx4 s[4:7], s[0:1], 56
    s_load_dwordx2 s[28:29], s[0:1], 96
    v_lshrrev_b32 v1, 6, v0
    v_and_b32 v2, 63, v0
    s_and_b32 s30, s2, 7
    v_readfirstlane_b32 s49, v1
    s_lshr_b32 s31, s2, 3
    """)
    k.e("""
    s_lshr_b32 s21, s30, 1
    s_lshl_b32 s21, s21, 2
    s_and_b32 s32, s31, 3
    s_add_u32 s21, s21, s32
    s_and_b32 s32, s30, 1
    s_mul_i32 s32, s32, 6
    s_lshr_b32 s33, s31, 2
    s_add_u32 s32, s32, s33
    s_lshr_b32 s22, s32, 2
    s_and_b32 s23, s32, 3
    s_and_b32 s20, s49, 3
    s_lshr_b32 s43, s49, 2
    """)
    k.e(f"""
    s_lshl_b32 s24, s21, 7
    s_lshl_b32 s33, s20, 5
    s_add_u32 s24, s24, s33
    s_lshl_b32 s33, s43, 4
    s_add_u32 s24, s24, s33
    s_mul_i32 s24, s24, 1152
    s_mul_i32 s25, s22, 1152
    s_mul_i32 s33, s23, 288
    s_add_u32 s25, s25, s33
    s_mul_i32 s33, s49, {8*3456}
    s_add_u32 s25, s25, s33
    s_lshl_b32 s26, s20, 12
    s_lshl_b32 s33, s43, 11
    s_add_u32 s48, s26, s33
    s_mul_i32 s27, s49, 3072
    s_add_u32 s27, s27, {WBASE}
    """)
    k.e(f"""
    v_lshrrev_b32 v{t}, 3, v{lane}
    v_mul_u32_u24 v{t}, 1152, v{t}
    v_and_b32 v{t+1}, 7, v{lane}
    v_lshrrev_b32 v{t+2}, 4, v{lane}
    v_xor_b32 v{t+3}, v{t+1}, v{t+2}
    v_lshl_add_u32 v{vXd}, v{t+3}, 4, v{t}
    v_xor_b32 v{t+3}, 4, v{t+3}
    v_lshl_add_u32 v{vXd2}, v{t+3}, 4, v{t}
    """)
    for pat in range(3):
        k.e(f"""
        v_add_u32 v{t}, {64*pat}, v{lane}
        v_mul_u32_u24 v{t+1}, 2731, v{t}
        v_lshrrev_b32 v{t+1}, 16, v{t+1}
        v_mul_u32_u24 v{t+2}, 24, v{t+1}
        v_sub_u32 v{t+2}, v{t}, v{t+2}
        v_bfe_u32 v{t+3}, v{t+1}, 1, 1
        v_lshlrev_b32 v{t+4}, 2, v{t+3}
        v_xor_b32 v{t+4}, v{t+2}, v{t+4}
        v_lshrrev_b32 v{t+5}, 1, v{t+4}
        v_mul_u32_u24 v{t+5}, 36, v{t+5}
        v_and_b32 v{t+4}, 1, v{t+4}
        v_lshl_add_u32 v{t+5}, v{t+4}, 4, v{t+5}
        v_subrev_u32 v{t+6}, 16, v{t+2}
        v_mul_u32_u24 v{t+6}, 36, v{t+6}
        v_add_u32 v{t+6}, 32, v{t+6}
        v_lshlrev_b32 v{t+3}, 3, v{t+3}
        v_sub_u32 v{t+6}, v{t+6}, v{t+3}
        v_cmp_gt_u32 vcc, 16, v{t+2}
        v_mul_u32_u24 v{t+1}, 3456, v{t+1}
        s_nop 0
        v_cndmask_b32 v{t+5}, v{t+6}, v{t+5}, vcc
        v_add_u32 v{vWp[pat]}, v{t+1}, v{t+5}
        """)
    k.e("s_waitcnt lgkmcnt(0)")
    srd(k, 8, 4, XB)
    srd(k, 12, 6, WB)
    srd(k, 16, 28, WS_END)

    vm = SB(k, "vmcnt", 63)
    def dma_list(c):
        st = c % 3
        out = []
        for jj in range(2):
            out.append((f"""s_add_u32 m0, s48, {st*XST + jj*1024}
            s_add_u32 s28, s24, {jj*9216 + c*128}
            buffer_load_dwordx4 v{vXd if jj == 0 else vXd2}, s[8:11], s28 offen lds""", ("D", c)))
        for ii in range(3):
            out.append((f"""s_add_u32 m0, s27, {st*WST + ii*1024}
            s_add_u32 s28, s25, {c*64*3456}
            buffer_load_dwordx4 v{vWp[ii]}, s[12:15], s28 offen lds""", ("D", c)))
        return out
    def emit_dma(d):
        k.e(d[0]); vm.issue(d[1])
    for d in dma_list(0) + dma_list(1): emit_dma(d)
    k.e(f"""
    s_lshl_b32 s33, s31, 3
    s_add_u32 s33, s33, s49
    s_lshr_b32 s34, s30, 1
    s_mul_i32 s34, s34, {512*1152}
    s_mul_i32 s35, s33, {24*128}
    s_add_u32 s34, s34, s35
    v_lshlrev_b32 v{t}, 7, v{lane}
    v_mov_b32 v{t+4}, -1
    v_cmp_gt_u32 vcc, 24, v{lane}
    v_mul_u32_u24 v{t+1}, 4682, v{lane}
    v_lshrrev_b32 v{t+1}, 16, v{t+1}
    v_cndmask_b32 v{t}, v{t+4}, v{t}, vcc
    v_mul_u32_u24 v{t+2}, 14, v{t+1}
    v_sub_u32 v{t+2}, v{lane}, v{t+2}
    v_mul_u32_u24 v{t+1}, 3456, v{t+1}
    v_lshl_add_u32 v{t+1}, v{t+2}, 7, v{t+1}
    v_cmp_gt_u32 vcc, 42, v{lane}
    s_and_b32 s35, s30, 1
    s_mul_i32 s35, s35, 1664
    s_mul_i32 s36, s33, {3*3456}
    s_add_u32 s35, s35, s36
    v_cndmask_b32 v{t+1}, v{t+4}, v{t+1}, vcc
    buffer_load_dword v{t+8}, v{t}, s[8:11], s34 offen
    buffer_load_dword v{t+9}, v{t+1}, s[12:15], s35 offen
    """)
    vm.issue("P"); vm.issue("P")
    k.e(f"""
    v_and_b32 v{t}, 31, v{lane}
    v_lshrrev_b32 v{t+1}, 5, v{lane}
    v_bfe_u32 v{t+2}, v{t}, 1, 3
    v_lshlrev_b32 v{t}, 7, v{t}
    v_add_u32 v{t}, s26, v{t}
    """)
    for sx in range(4):
        k.e(f"""
        v_add_u32 v{t+3}, {2*sx}, v{t+1}
        v_xor_b32 v{t+3}, v{t+3}, v{t+2}
        v_lshl_add_u32 v{vXr[sx]}, v{t+3}, 4, v{t}
        """)
    k.e(f"""
    v_bfe_u32 v{t}, v{lane}, 2, 2
    v_lshrrev_b32 v{t+1}, 5, v{lane}
    v_lshl_add_u32 v{t}, v{t+1}, 3, v{t}
    v_mul_u32_u24 v{t}, 384, v{t}
    v_add_u32 v{t}, {WBASE}, v{t}
    v_bfe_u32 v{t+1}, v{lane}, 4, 1
    v_and_b32 v{t+2}, 3, v{lane}
    v_bfe_u32 v{t+3}, v{lane}, 3, 1
    v_and_b32 v{t+4}, 1, v{t+2}
    v_lshl_add_u32 v{t+4}, v{t+1}, 1, v{t+4}
    v_lshlrev_b32 v{t+4}, 4, v{t+4}
    v_lshrrev_b32 v{t+5}, 1, v{t+2}
    v_lshl_add_u32 v{t+4}, v{t+5}, 3, v{t+4}
    v_add_u32 v{t+4}, v{t}, v{t+4}
    v_lshl_add_u32 v{t+6}, v{t+3}, 6, v{t+4}
    v_xor_b32 v{t+5}, 1, v{t+3}
    v_lshl_add_u32 v{t+7}, v{t+5}, 6, v{t+4}
    v_lshl_add_u32 v{t+4}, v{t+1}, 2, v{t+2}
    v_add_u32 v{t+4}, 16, v{t+4}
    v_lshl_add_u32 v{t+4}, v{t+4}, 4, v{t}
    v_lshl_add_u32 v{t+10}, v{t+3}, 3, v{t+4}
    """)
    EV, OD, LF = t+6, t+7, t+10

    def reads(c, sx, buf, nt):
        st = c % 3
        wr = vWr2 if st == 2 else vWr01
        wo = (0 if st == 2 else st * WST) + sx * 6144
        r = [(f"ds_read_b128 {vr(XF[buf],4)}, v{vXr[sx]} offset:{st*XST}", ("X", c, sx))]
        for j in range(nt):
            for z in range(2):
                r.append((f"ds_read_b64_tr_b16 {vr(WF[buf]+4*j+2*z,2)}, v{wr[j]} offset:{wo + z*1536}", ("W", c, sx, j, z)))
        return r

    def mainloop(isV, nt):
        lg = SB(k, "lgkmcnt", 15)
        first = [True] * nt
        def mfma(c, sx, buf, j):
            lg.wait_for([("X", c, sx), ("W", c, sx, j, 0), ("W", c, sx, j, 1)])
            a, b = vr(WF[buf] + 4*j, 4), vr(XF[buf], 4)
            if isV: a, b = b, a
            d = vr(ACC + 16*j, 16)
            k.e(f"v_mfma_f32_32x32x16_bf16 {d}, {a}, {b}, {'0' if first[j] else d}")
            first[j] = False
        vmq = list(vm.q)
        for c in range(9):
            vm.wait_for([("D", c)])
            lg.wait_all()
            k.e("s_barrier")
            if prof: prof.mark()
            dm = dma_list(c + 2) if c + 2 < 9 else []
            rd = reads(c, 0, 0, nt)
            for (txt, tag) in rd:
                k.e(txt); lg.issue(tag)
            if c > 0:
                for j in range(nt):
                    mfma(c - 1, 3, 1, j)
                    if dm: emit_dma(dm.pop(0))
            for sx in range(3 if c < 8 else 4):
                buf = sx & 1
                nxt = reads(c, sx + 1, buf ^ 1, nt) if sx < 3 else []
                for j in range(nt):
                    mfma(c, sx, buf, j)
                    n = len(nxt) if j == nt - 1 else 3
                    for (txt, tag) in nxt[:n]:
                        k.e(txt); lg.issue(tag)
                    nxt = nxt[n:]
                    if dm and j == 0: emit_dma(dm.pop(0))
            while dm: emit_dma(dm.pop(0))
        vm.q = vmq

    def epi_qk(tiles):
        k.c("Q/K epilogue")
        k.e(f"""
        s_lshl_b32 s30, s21, 2
        s_add_u32 s30, s30, s20
        s_lshr_b32 s31, s30, 3
        s_and_b32 s32, s30, 7
        s_cmp_eq_u32 s22, 0
        s_cselect_b32 s33, {f2u(QSCALE)}, 1.0
        s_mov_b32 s34, {HB}
        s_cselect_b32 s35, 8192, s34
        s_cselect_b32 s34, 65536, s34
        s_mul_i32 s36, s31, {CH}
        s_lshl_b32 s37, s32, 10
        s_add_u32 s37, s37, s36
        s_lshl_b32 s38, s32, 7
        s_add_u32 s38, s38, s36
        s_add_u32 s38, s38, 8192
        s_lshl_b32 s39, s30, 10
        s_add_u32 s39, s39, {QM}
        s_lshl_b32 s40, s30, 7
        s_add_u32 s40, s40, {Q2}
        s_cmp_eq_u32 s22, 0
        s_cselect_b32 s37, s39, s37
        s_cselect_b32 s38, s40, s38
        s_lshl_b32 s41, s23, 3
        s_mul_i32 s42, s41, s35
        s_add_u32 s38, s38, s42
        s_add_u32 s41, s41, {2*tiles[0]}
        s_mul_i32 s42, s41, s34
        s_add_u32 s37, s37, s42
        v_lshlrev_b32 v{T0}, 4, v{lane}
        v_and_b32 v{T0+1}, 31, v{lane}
        v_lshlrev_b32 v{T0+1}, 2, v{T0+1}
        v_lshrrev_b32 v{T0+2}, 5, v{lane}
        v_mul_lo_u32 v{T0+2}, v{T0+2}, s35
        v_add_u32 v{T0+1}, v{T0+1}, v{T0+2}
        """)
        tmp = 64
        for slot, j in enumerate(tiles):
            if j < 4:
                for hh in range(2):
                    base = ACC + 16*slot + 8*hh
                    tr = tmp + (8 if hh else 0)
                    for i in range(8):
                        k.e(f"v_mul_f32 v{base+i}, s33, v{base+i}")
                    for i in range(4):
                        k.e(f"v_cvt_pk_bf16_f32 v{tr+i}, v{base+2*i}, v{base+2*i+1}")
                    k.e(f"buffer_store_dwordx4 {vr(tr,4)}, v{T0}, s[16:19], s37 offen")
                    k.e("s_add_u32 s37, s37, s34")
            else:
                base = ACC + 16*slot
                for q in range(4):
                    k.e(f"v_mul_f32 v{base+4*q}, s33, v{base+4*q}")
                    k.e(f"v_mul_f32 v{base+4*q+1}, s33, v{base+4*q+1}")
                    k.e(f"v_cvt_pk_bf16_f32 v{80+q}, v{base+4*q}, v{base+4*q+1}")
                    k.e(f"buffer_store_dword v{80+q}, v{T0+1}, s[16:19], s38 offen")
                    k.e("s_add_u32 s38, s38, s35")
                    k.e("s_add_u32 s38, s38, s35")

    def epi_v(tiles):
        k.c("V epilogue")
        k.e(f"""
        s_lshl_b32 s30, s21, 2
        s_add_u32 s30, s30, s20
        s_lshr_b32 s31, s30, 3
        s_and_b32 s32, s30, 7
        s_mul_i32 s36, s31, {CH}
        s_mul_i32 s37, s32, {2*608}
        s_add_u32 s37, s37, s36
        s_add_u32 s37, s37, 9216
        s_lshl_b32 s41, s23, 3
        s_mul_i32 s42, s41, {HB}
        s_add_u32 s38, s37, s42
        s_add_u32 s37, s38, {2*tiles[0]*HB}
        s_mov_b32 s34, {HB}
        v_bfe_u32 v{T0}, v{lane}, 4, 1
        v_bfe_u32 v{T0+1}, v{lane}, 2, 1
        v_bfe_u32 v{T0+2}, v{lane}, 3, 1
        v_and_b32 v{T0+3}, 3, v{lane}
        v_lshrrev_b32 v{T0+4}, 5, v{lane}
        v_mul_u32_u24 v{T0+4}, 304, v{T0+4}
        v_lshl_add_u32 v{T0+5}, v{T0+1}, 3, v{T0+3}
        v_lshl_add_u32 v{T0+5}, v{T0+2}, 2, v{T0+5}
        v_lshl_add_u32 v{T0+5}, v{T0+5}, 4, v{T0+4}
        v_mul_lo_u32 v{T0+6}, v{T0}, s34
        v_add_u32 v{T0+5}, v{T0+5}, v{T0+6}
        v_bfe_u32 v{T0+7}, v{lane}, 2, 2
        v_lshl_add_u32 v{T0+7}, v{T0}, 2, v{T0+7}
        v_mul_lo_u32 v{T0+7}, v{T0+7}, s34
        v_add_u32 v{T0+8}, 16, v{T0+3}
        v_lshl_add_u32 v{T0+8}, v{T0+8}, 4, v{T0+4}
        v_add_u32 v{T0+7}, v{T0+7}, v{T0+8}
        """)
        tmp = 64
        for slot, j in enumerate(tiles):
            if j < 4:
                for kl in range(2):
                    base = ACC + 16*slot + 8*kl
                    tr = tmp + (8 if kl else 0)
                    for i in range(4):
                        k.e(f"v_cvt_pk_bf16_f32 v{tr+i}, v{base+2*i}, v{base+2*i+1}")
                    k.e(f"buffer_store_dwordx4 {vr(tr,4)}, v{T0+5}, s[16:19], s37 offen offset:{kl*608}")
                k.e("s_add_u32 s37, s37, s34")
                k.e("s_add_u32 s37, s37, s34")
            else:
                k.e(f"""
                v_mov_b32 v{T0+9}, 0x3f803f80
                v_cmp_eq_u32 s[44:45], 2, v{T0+3}
                v_cmp_gt_u32 vcc, 3, v{T0+3}
                """)
                base = ACC + 16*slot
                for kl in range(2):
                    tr = 80 + 4*kl
                    for i in range(4):
                        k.e(f"v_cvt_pk_bf16_f32 v{tr+i}, v{base+8*kl+2*i}, v{base+8*kl+2*i+1}")
                    for i in range(4):
                        k.e(f"v_cndmask_b32 v{tr+i}, v{tr+i}, v{T0+9}, s[44:45]")
                k.e("s_and_saveexec_b64 s[46:47], vcc")
                for kl in range(2):
                    k.e(f"buffer_store_dwordx4 {vr(80+4*kl,4)}, v{T0+7}, s[16:19], s38 offen offset:{kl*608}")
                k.e("s_mov_b64 exec, s[46:47]")

    le = k.newlabel("end")
    lh1 = k.newlabel("half1")
    k.e("s_cmp_eq_u32 s43, 1")
    k.e(f"s_cbranch_scc1 {lh1}")
    for half in range(2):
        if half == 1: k.label(lh1)
        tiles = [0, 1, 2] if half == 0 else [3, 4]
        src = {0: (EV, 0), 1: (OD, 0), 2: (EV, 128), 3: (OD, 128), 4: (LF, 0)}
        for slot, j in enumerate(tiles):
            a, off = src[j]
            k.e(f"v_add_u32 v{vWr01[slot]}, {off}, v{a}")
            k.e(f"v_add_u32 v{vWr2[slot]}, {off + 2*WST}, v{a}")
        lv = k.newlabel("v")
        k.e("s_cmp_eq_u32 s22, 2")
        k.e(f"s_cbranch_scc1 {lv}")
        n0 = prof.n if prof else 0
        if prof: prof.mark()
        mainloop(False, len(tiles))
        if prof: prof.mark()
        epi_qk(tiles)
        k.e(f"s_branch {le}")
        k.label(lv)
        if prof: prof.n = n0; prof.mark()
        mainloop(True, len(tiles))
        if prof: prof.mark()
        epi_v(tiles)
        if half == 0: k.e(f"s_branch {le}")
        if prof and half == 0: prof.n = n0
    k.label(le)
```

```python
from g import *
from sb import SB
from layout import *
from k_qkv import srd, f2u
import math

LOG2E = 1.4426950408889634
UB = 2048 * 576 * 2

UT_LDS = 36864
def gen_utrans(k, wg="s2", nw=4):
    lane = 2; t = 20
    k.c("---- u transposition ----")
    k.e(f"""
    s_load_dwordx2 s[4:5], s[0:1], 0
    s_load_dwordx2 s[6:7], s[0:1], 96
    v_lshrrev_b32 v1, 6, v0
    v_and_b32 v2, 63, v0
    s_lshr_b32 s21, {wg}, 2
    v_readfirstlane_b32 s19, v1
    s_and_b32 s22, {wg}, 3
    s_mul_i32 s24, s21, {128*1152}
    s_mul_i32 s25, s22, 288
    s_add_u32 s24, s24, s25
    s_mul_i32 s26, s19, {9*1024}
    """)
    k.e(f"""
    s_mul_i32 s27, s19, 576
    v_add_u32 v{t}, s27, v{lane}
    s_waitcnt lgkmcnt(0)
    """)
    srd(k, 8, 4, UB)
    srd(k, 12, 6, WS_END)
    k.e("s_mov_b32 s30, 3641")
    for i in range(9):
        k.e(f"""
        v_add_u32 v{t+1}, {64*i}, v{t}
        v_mul_lo_u32 v{t+2}, v{t+1}, s30
        v_lshrrev_b32 v{t+2}, 16, v{t+2}
        v_mul_u32_u24 v{t+3}, 18, v{t+2}
        v_sub_u32 v{t+3}, v{t+1}, v{t+3}
        v_mul_u32_u24 v{t+2}, 1152, v{t+2}
        v_lshl_add_u32 v{t+2}, v{t+3}, 4, v{t+2}
        s_add_u32 m0, s26, {i*1024}
        s_nop 0
        buffer_load_dwordx4 v{t+2}, s[8:11], s24 offen lds
        """)
    k.e(f"""
    v_mov_b32 v8, 0
    v_mov_b32 v9, 0
    v_mov_b32 v10, 0
    v_mov_b32 v11, 0
    s_mul_i32 s31, s22, {144*UPC}
    s_lshl_b32 s32, s21, 5
    s_add_u32 s31, s31, s32
    s_add_u32 s31, s31, {UP}
    v_and_b32 v{t+6}, 255, v0
    """)
    for i in range(5):
        k.e(f"""
        v_add_u32 v{t+1}, {256*i}, v{t+6}
        v_lshrrev_b32 v{t+2}, 3, v{t+1}
        v_mul_u32_u24 v{t+2}, {UPC}, v{t+2}
        v_bfe_u32 v{t+3}, v{t+1}, 1, 2
        v_mul_u32_u24 v{t+3}, 1536, v{t+3}
        v_add_u32 v{t+2}, v{t+2}, v{t+3}
        v_and_b32 v{t+3}, 1, v{t+1}
        v_lshl_add_u32 v{t+2}, v{t+3}, 4, v{t+2}
        """)
        if i == 4:
            k.e(f"""
            v_cmp_gt_u32 vcc, 1152, v{t+1}
            v_mov_b32 v{t+3}, -1
            s_nop 0
            v_cndmask_b32 v{t+2}, v{t+3}, v{t+2}, vcc
            s_mov_b32 s33, 0
            v_cmp_gt_u32 vcc, 1152, v{t+1}
            s_and_saveexec_b64 s[34:35], vcc
            buffer_store_dwordx4 v[8:11], v{t+2}, s[12:15], s31 offen
            s_mov_b64 exec, s[34:35]
            """)
        else:
            k.e(f"buffer_store_dwordx4 v[8:11], v{t+2}, s[12:15], s31 offen")
    k.e(f"""
    v_lshrrev_b32 v{t+1}, 4, v{lane}
    v_bfe_u32 v{t+2}, v{lane}, 2, 2
    v_lshl_add_u32 v{t+2}, v{t+1}, 5, v{t+2}
    v_mul_u32_u24 v{t+2}, 288, v{t+2}
    v_and_b32 v{t+3}, 3, v{lane}
    v_lshl_add_u32 v{t+2}, v{t+3}, 3, v{t+2}
    v_and_b32 v{t+3}, 15, v{lane}
    v_mul_u32_u24 v{t+3}, {UPC}, v{t+3}
    v_lshl_add_u32 v{t+3}, v{t+1}, 4, v{t+3}
    s_mul_i32 s31, s22, {144*UPC}
    s_lshl_b32 s32, s21, 6
    s_add_u32 s31, s31, s32
    s_add_u32 s31, s31, {UP + 512}
    s_mul_i32 s32, s19, 1536
    s_add_u32 s31, s31, s32
    s_mul_i32 s33, s19, {8*288}
    v_add_u32 v{t+2}, s33, v{t+2}
    s_waitcnt vmcnt(5)
    s_barrier
    """)
    for dg in range(9):
        b = 12 + 4 * (dg & 1)
        k.e(f"""
        ds_read_b64_tr_b16 {vr(b,2)}, v{t+2} offset:{32*dg}
        ds_read_b64_tr_b16 {vr(b+2,2)}, v{t+2} offset:{32*dg + 4*288}
        s_waitcnt lgkmcnt(0)
        buffer_store_dwordx4 {vr(b,4)}, v{t+3}, s[12:15], s31 offen
        s_add_u32 s31, s31, {16*UPC}
        """)

KG_LDS_WAVE = 53 * 256
def gen_kgen(k, chan_sgpr, ldsbase_sgpr, barriers=0):
    lane = 2
    k.c("---- SSM kernel generation ----")
    ch = chan_sgpr; lb = ldsbase_sgpr
    k.e(f"""
    s_load_dwordx8 s[44:51], s[0:1], 8
    s_load_dwordx2 s[52:53], s[0:1], 40
    s_load_dwordx2 s[54:55], s[0:1], 96
    v_lshlrev_b32 v3, 1, v{lane}
    s_lshl_b32 s40, s{ch}, 8
    s_lshl_b32 s41, s{ch}, 1
    v_mov_b32 v4, s41
    s_waitcnt lgkmcnt(0)
    """)
    S = 60
    for i in range(4): srd(k, S + 4*i, 44 + 2*i, PB)
    srd(k, S + 16, 52, 1152)
    k.e(f"buffer_load_ushort v5, v4, s[{S+16}:{S+19}], 0 offen")
    for i in range(4):
        for ps in range(2):
            k.e(f"buffer_load_ushort v{8+2*i+ps}, v3, s[{S+4*i}:{S+4*i+3}], s40 offen offset:{128*ps}")
    srd(k, S + 16, 54, WS_END) if False else None
    AW = 16
    k.e("v_lshlrev_b32 v6, 2, v2")
    for j in range(16):
        k.e(f"v_xor_b32 v{AW+j}, {16*j}, v6")
        k.e(f"v_add_u32 v{AW+j}, s{lb}, v{AW+j}")
    k.e(f"""
    v_and_b32 v6, 31, v2
    v_lshrrev_b32 v7, 5, v2
    v_and_b32 v32, 15, v6
    v_xor_b32 v32, v32, v7
    v_lshlrev_b32 v32, 4, v32
    v_lshl_add_u32 v32, v6, 8, v32
    v_add_u32 v32, s{lb}, v32
    """)
    RB = 32
    D = 112
    k.e("s_waitcnt vmcnt(0)")
    c_l2e = f2u(LOG2E); c_i2pi = f2u(1.0 / (2 * math.pi))
    k.e(f"""
    v_lshlrev_b32 v5, 16, v5
    v_mul_f32 v5, {c_l2e}, v5
    v_exp_f32 v5, v5
    s_nop 0
    v_cvt_pk_bf16_f32 v5, v5, v5
    v_lshlrev_b32 v5, 16, v5
    """)
    DT = 5
    def cmul(d, a, b):
        k.e(f"v_mul_f32 v36, v{a+1}, v{b+1}")
        k.e(f"v_mul_f32 v37, v{a+1}, v{b}")
        k.e(f"v_fma_f32 v38, v{a}, v{b+1}, v37")
        k.e(f"v_fma_f32 v{d}, v{a}, v{b}, -v36")
        k.e(f"v_mov_b32 v{d+1}, v38")
    def cmul2(d, a, b, t0, t1):
        k.e(f"v_mul_f32 v{t0}, v{a+1}, v{b+1}")
        k.e(f"v_mul_f32 v{t1}, v{a+1}, v{b}")
        k.e(f"v_fma_f32 v{d}, v{a}, v{b}, -v{t0}")
        k.e(f"v_fma_f32 v{d+1}, v{a}, v{b+1}, v{t1}")
    ZR, ZI = 40, 41
    def cexp(d, tt):
        k.e(f"""
        v_mul_f32 v36, {f2u(float(tt))}, v{ZR}
        v_mul_f32 v37, {f2u(float(tt))}, v{ZI}
        v_exp_f32 v36, v36
        v_fract_f32 v37, v37
        v_cos_f32 v38, v37
        v_sin_f32 v39, v37
        s_nop 0
        v_mul_f32 v{d}, v36, v38
        v_mul_f32 v{d+1}, v36, v39
        """)
    W1, W2, W4, W8, W256, W512, W768, W1024 = 42, 44, 46, 48, 50, 52, 54, 56
    CC, XA, XB_, EA, EB, TT = 58, 60, 62, 64, 66, 68
    PK = 72
    nbar = [0]
    def store_row(row, re, im, isA):
        r = row if isA else row - 21
        off = row * 256
        pk = PK + (row & 3)
        k.e(f"v_cvt_pk_bf16_f32 v{pk}, v{re}, {'-' if isA else ''}v{im}")
        k.e(f"ds_write_b32 v{AW + (r & 15)}, v{pk} offset:{off}")
    for ps in range(2):
        k.e(f"""
        v_lshlrev_b32 v36, 16, v{8+ps}
        v_mul_f32 v36, {c_l2e}, v36
        v_exp_f32 v36, v36
        v_lshlrev_b32 v37, 16, v{10+ps}
        v_lshlrev_b32 v{CC}, 16, v{12+ps}
        v_cvt_pk_bf16_f32 v36, v36, v36
        v_lshlrev_b32 v36, 16, v36
        v_mul_f32 v36, v36, v{DT}
        v_mul_f32 v37, v37, v{DT}
        v_mul_f32 v{ZR}, {f2u(-LOG2E)}, v36
        v_mul_f32 v{ZI}, {c_i2pi}, v37
        v_lshlrev_b32 v{CC+1}, 16, v{14+ps}
        v_mul_f32 v{CC}, v{CC}, v{DT}
        v_mul_f32 v{CC+1}, v{CC+1}, v{DT}
        v_add_f32 v{CC}, v{CC}, v{CC}
        v_add_f32 v{CC+1}, v{CC+1}, v{CC+1}
        """)
        cexp(W1, 1); cexp(W8, 8); cexp(W256, 256)
        cmul2(W2, W1, W1, 36, 37)
        cmul2(W4, W2, W2, 36, 37)
        cmul2(W512, W256, W256, 36, 37)
        cmul2(W768, W512, W256, 36, 37)
        cmul2(W1024, W512, W512, 36, 37)
        k.e(f"v_mov_b32 v{EA}, 1.0")
        k.e(f"v_mov_b32 v{EA+1}, 0")
        Bops = []
        cur, nx = EA, EB
        Bops.append(lambda cur=cur: store_row(21, cur, cur + 1, False))
        for b in range(1, 32):
            if b == 1:
                Bops.append(lambda: (k.e(f"v_mov_b32 v{EB}, v{W8}"), k.e(f"v_mov_b32 v{EB+1}, v{W8+1}"), store_row(22, EB, EB + 1, False)))
                cur, nx = EB, EA
            else:
                Bops.append(lambda cur=cur, nx=nx, b=b: (cmul2(nx, cur, W8, 76, 77), store_row(21 + b, nx, nx + 1, False)))
                cur, nx = nx, cur
        Aops = []
        Aops.append(lambda: store_row(0, CC, CC + 1, True))
        pa, pb = CC, XA
        seq = [XA, XB_]
        prev = CC
        for j in range(1, 8):
            dst = seq[j & 1]
            Aops.append(lambda dst=dst, prev=prev, j=j: (cmul2(dst, prev, W1, 78, 79), store_row(j, dst, dst + 1, True)))
            prev = dst
        Aops.append(lambda: (cmul2(XA, CC, W256, 78, 79), store_row(8, XA, XA + 1, True)))
        prev = XA
        for j in range(1, 4):
            dst = XB_ if prev == XA else XA
            Aops.append(lambda dst=dst, prev=prev, j=j: (cmul2(dst, prev, W2, 78, 79), store_row(8 + j, dst, dst + 1, True)))
            prev = dst
        Aops.append(lambda: (cmul2(XA, CC, W512, 78, 79), store_row(12, XA, XA + 1, True)))
        Aops.append(lambda: (cmul2(XB_, XA, W4, 78, 79), store_row(13, XB_, XB_ + 1, True)))
        Aops.append(lambda: (cmul2(XA, CC, W768, 78, 79), store_row(14, XA, XA + 1, True)))
        Aops.append(lambda: (cmul2(XB_, XA, W4, 78, 79), store_row(15, XB_, XB_ + 1, True)))
        Aops.append(lambda: (cmul2(XA, CC, W1024, 78, 79), store_row(16, XA, XA + 1, True)))
        Aops.append(lambda: (cmul2(XB_, XA, W256, 78, 79), store_row(17, XB_, XB_ + 1, True)))
        Aops.append(lambda: (cmul2(TT, XA, W512, 78, 79), store_row(18, TT, TT + 1, True)))
        Aops.append(lambda: (cmul2(XB_, XA, W768, 78, 79), store_row(19, XB_, XB_ + 1, True)))
        Aops.append(lambda: (cmul2(TT, XA, W1024, 78, 79), store_row(20, TT, TT + 1, True)))
        ia = 0
        for ib, bo in enumerate(Bops):
            bo()
            if ia < len(Aops) and (ib * len(Aops)) // len(Bops) >= ia:
                Aops[ia](); ia += 1
        while ia < len(Aops):
            Aops[ia](); ia += 1
        k.e("s_waitcnt lgkmcnt(0)")
        FA, FB = 80, 96
        for ks in range(8):
            fa = FA + 4 * (ks & 3); fb = FB + 4 * (ks & 3)
            k.e(f"v_xor_b32 v36, {32*ks}, v{RB}")
            k.e(f"ds_read_b128 {vr(fa,4)}, v36")
            k.e(f"ds_read_b128 {vr(fb,4)}, v36 offset:{21*256}")
            if ks % 4 == 3:
                k.e("s_waitcnt lgkmcnt(0)")
                for q in range(ks - 3, ks + 1):
                    c = "0" if (ps == 0 and q == 0) else vr(D, 16)
                    k.e(f"v_mfma_f32_32x32x16_bf16 {vr(D,16)}, {vr(FA+4*(q&3),4)}, {vr(FB+4*(q&3),4)}, {c}")
    k.e(f"""
    v_and_b32 v6, 31, v2
    v_lshrrev_b32 v7, 5, v2
    v_lshlrev_b32 v40, 4, v6
    v_lshl_add_u32 v40, v7, 3, v40
    v_add_u32 v40, s{lb}, v40
    v_lshlrev_b32 v41, 3, v6
    v_add_u32 v41, 512, v41
    v_lshlrev_b32 v42, 2, v6
    v_add_u32 v42, 768, v42
    v_cmp_eq_u32 vcc, 1, v7
    v_mov_b32 v44, 4
    v_mov_b32 v45, 128
    v_cndmask_b32 v41, v41, v42, vcc
    v_cndmask_b32 v44, v44, v45, vcc
    v_add_u32 v41, s{lb}, v41
    v_add_u32 v42, v41, v44
    v_lshlrev_b32 v43, 1, v6
    v_add_u32 v43, 1024, v43
    v_mov_b32 v45, 1400
    v_mov_b32 v46, 1280
    v_cmp_eq_u32 s[56:57], 0, v6
    s_nop 1
    v_cndmask_b32 v45, v45, v46, s[56:57]
    v_cndmask_b32 v43, v43, v45, vcc
    v_add_u32 v43, s{lb}, v43
    """)
    k.nop(8)
    for j in range(6):
        k.e(f"v_cvt_pk_bf16_f32 v{48+j}, v{D+2*j}, v{D+2*j+1}")
    k.e("""
    ds_write_b16 v40, v48
    ds_write_b16_d16_hi v40, v48 offset:2
    ds_write_b16 v40, v49 offset:4
    ds_write_b16_d16_hi v40, v49 offset:6
    ds_write_b16 v41, v50
    ds_write_b16_d16_hi v41, v50 offset:2
    ds_write_b16 v42, v51
    ds_write_b16_d16_hi v42, v51 offset:2
    ds_write_b16 v43, v52
    ds_write_b16_d16_hi v43, v52 offset:64
    ds_write_b16 v43, v53 offset:128
    ds_write_b16_d16_hi v43, v53 offset:192
    """)
    E = 60
    k.e(f"""
    v_lshlrev_b32 v6, 5, v2
    v_sub_u32 v6, 2047, v6
    v_cvt_f32_u32 v7, v6
    v_add_u32 v40, -1, v6
    v_lshl_or_b32 v40, v40, 16, v6
    v_cmp_le_u32 s[56:57], 56, v2
    s_mov_b32 s58, 0x42804280
    s_waitcnt lgkmcnt(0)
    """)
    for jj in range(17):
        a = 80 + 4 * (jj & 3)
        k.e(f"""
        v_add_f32 v{a}, {f2u(-2.0*jj)}, v7
        v_add_f32 v{a+1}, {f2u(-2.0*jj-1)}, v7
        v_cvt_pk_bf16_f32 v{a}, v{a}, v{a+1}
        v_subrev_u32 v{a}, s58, v{a}
        v_add_u32 v{a+1}, {(-0x20002*jj) & 0xffffffff}, v40
        v_cndmask_b32 v{a}, v{a}, v{a+1}, s[56:57]
        v_lshlrev_b32 v{a}, 1, v{a}
        v_and_b32 v{a+1}, 0xffff, v{a}
        v_lshrrev_b32 v{a}, 16, v{a}
        v_add_u32 v{a+1}, s{lb}, v{a+1}
        v_add_u32 v{a}, s{lb}, v{a}
        ds_read_u16 v{E+jj}, v{a+1}
        ds_read_u16_d16_hi v{96+jj}, v{a}
        """)
        if jj % 4 == 3: k.e("s_waitcnt lgkmcnt(4)")
    k.e(f"""
    v_cmp_eq_u32 vcc, 63, v2
    v_mov_b32 v6, 0
    s_waitcnt lgkmcnt(0)
    """)
    for jj in range(17):
        k.e(f"v_and_b32 v{96+jj}, 0xffff0000, v{96+jj}")
        k.e(f"v_or_b32 v{E+jj}, v{E+jj}, v{96+jj}")
    k.e(f"v_cndmask_b32 v{E+16}, v{E+16}, v6, vcc")
    OO = 96
    for jj in range(16):
        k.e(f"v_alignbit_b32 v{OO+jj}, v{E+jj+1}, v{E+jj}, 16")
    srd(k, S, 54, WS_END)
    k.e(f"""
    s_mul_i32 s40, s{ch}, {KRC}
    s_add_u32 s40, s40, {KR}
    v_lshlrev_b32 v6, 6, v2
    v_lshlrev_b32 v7, 4, v2
    v_mov_b32 v8, 0
    v_mov_b32 v9, 0
    v_mov_b32 v10, 0
    v_mov_b32 v11, 0
    """)
    for i in range(4):
        k.e(f"buffer_store_dwordx4 {vr(E+4*i,4)}, v6, s[{S}:{S+3}], s40 offen offset:{16*i}")
    k.e(f"s_add_u32 s41, s40, {KRH}")
    for i in range(4):
        k.e(f"buffer_store_dwordx4 {vr(OO+4*i,4)}, v6, s[{S}:{S+3}], s41 offen offset:{16*i}")
    k.e(f"""
    s_add_u32 s40, s40, 4096
    s_add_u32 s41, s41, 4096
    s_mov_b64 exec, 0xff
    buffer_store_dwordx4 v[8:11], v7, s[{S}:{S+3}], s40 offen
    buffer_store_dwordx4 v[8:11], v7, s[{S}:{S+3}], s41 offen
    s_mov_b64 exec, -1
    """)

PD = 4
def gen_conv(k, widx_sgpr, prof=None):
    lane = 2
    W = widx_sgpr
    k.c("---- SSM convolution ----")
    lend = k.newlabel("cend"); l1 = k.newlabel("nt1"); ljob = k.newlabel("job")
    k.e(f"""
    s_load_dwordx2 s[54:55], s[0:1], 96
    s_cmp_ge_u32 s{W}, 864
    s_cbranch_scc1 {lend}
    s_mov_b32 s40, s{W}
    s_mov_b32 s41, 1
    s_mov_b32 s42, 64
    s_mov_b32 s43, 1
    s_cmp_lt_u32 s{W}, 576
    s_cbranch_scc1 {l1}
    s_sub_u32 s40, s{W}, 576
    s_lshl_b32 s40, s40, 1
    s_mov_b32 s41, 0
    s_mov_b32 s42, 32
    s_mov_b32 s43, 2
    """)
    k.label(l1)
    k.e(f"""
    v_and_b32 v3, 31, v{lane}
    v_lshrrev_b32 v4, 5, v{lane}
    v_and_b32 v5, 19, v3
    v_bfe_u32 v6, v3, 2, 1
    v_lshl_or_b32 v5, v6, 3, v5
    v_bfe_u32 v6, v3, 3, 1
    v_lshl_or_b32 v5, v6, 2, v5
    v_and_b32 v6, 1, v5
    v_xor_b32 v6, 1, v6
    v_sub_u32 v7, 2047, v5
    v_sub_u32 v7, v7, v6
    v_lshl_add_u32 v7, v4, 3, v7
    v_lshlrev_b32 v7, 1, v7
    v_mul_u32_u24 v6, {KRH}, v6
    v_add_u32 v7, v7, v6
    v_add_u32 v8, {KR - 4032}, v7
    v_mul_u32_u24 v6, 1536, v4
    v_lshl_add_u32 v6, v3, 4, v6
    v_add_u32 v9, {UP + 512 - 1008}, v6
    v_lshlrev_b32 v6, 6, v3
    v_lshl_add_u32 v10, v4, 4, v6
    s_waitcnt lgkmcnt(0)
    """)
    srd(k, 60, 54, WS_END)
    k.label(ljob)
    k.e(f"""
    s_mul_i32 s44, s40, {KRC}
    s_mul_i32 s45, s40, {UPC}
    s_lshl_b32 s46, s41, 9
    s_add_u32 s45, s45, s46
    v_add_u32 v11, s44, v8
    v_add_u32 v12, s45, v9
    s_mov_b32 s47, 4032
    s_mov_b32 s48, 1008
    """)
    ACC = 16; FR = 32
    def loads(slot):
        b = FR + 16 * slot
        k.e(f"buffer_load_dwordx4 {vr(b,4)}, v11, s[60:63], s47 offen")
        k.e(f"buffer_load_dwordx4 {vr(b+4,4)}, v12, s[60:63], s48 offen")
        k.e(f"buffer_load_dwordx4 {vr(b+8,4)}, v11, s[60:63], s47 offen offset:32")
        k.e(f"buffer_load_dwordx4 {vr(b+12,4)}, v12, s[60:63], s48 offen offset:3072")
        k.e("s_sub_u32 s47, s47, 64")
        k.e("s_max_i32 s47, s47, 0")
        k.e("s_sub_u32 s48, s48, 16")
        k.e("s_max_i32 s48, s48, 0")
    for i in range(16): k.e(f"v_mov_b32 v{ACC+i}, 0")
    for slot in range(PD): loads(slot)
    k.e("s_mov_b32 s49, 0")
    ll = k.newlabel("cl")
    k.label(ll)
    for slot in range(PD):
        b = FR + 16 * slot
        k.e(f"s_waitcnt vmcnt({4*(PD-1)+2})")
        k.e(f"v_mfma_f32_32x32x16_bf16 {vr(ACC,16)}, {vr(b,4)}, {vr(b+4,4)}, {vr(ACC,16)}")
        k.e(f"s_waitcnt vmcnt({4*(PD-1)})")
        k.e(f"v_mfma_f32_32x32x16_bf16 {vr(ACC,16)}, {vr(b+8,4)}, {vr(b+12,4)}, {vr(ACC,16)}")
        loads(slot)
    k.e(f"""
    s_add_u32 s49, s49, {PD}
    s_cmp_lt_u32 s49, s42
    s_cbranch_scc1 {ll}
    s_mul_i32 s44, s40, 4096
    s_lshl_b32 s46, s41, 11
    s_add_u32 s44, s44, s46
    s_add_u32 s44, s44, {YT}
    s_waitcnt vmcnt(0)
    """)
    k.nop(8)
    for g in range(2):
        for i in range(4):
            k.e(f"v_cvt_pk_bf16_f32 v{FR+4*g+i}, v{ACC+8*g+2*i}, v{ACC+8*g+2*i+1}")
        k.e(f"buffer_store_dwordx4 {vr(FR+4*g,4)}, v10, s[60:63], s44 offen offset:{32*g}")
    k.e(f"""
    s_add_u32 s40, s40, 1
    s_sub_u32 s43, s43, 1
    s_cmp_lg_u32 s43, 0
    s_nop 1
    s_cbranch_scc1 {ljob}
    """)
    k.label(lend)

FIN_LDS = 192 * 128
def gen_fin(k, wg="s2"):
    lane = 2; t = 32
    k.c("---- SSM finalisation ----")
    k.e(f"""
    s_load_dwordx2 s[4:5], s[0:1], 0
    s_load_dwordx2 s[6:7], s[0:1], 48
    s_load_dwordx2 s[26:27], s[0:1], 80
    s_load_dwordx2 s[28:29], s[0:1], 96
    v_lshrrev_b32 v1, 6, v0
    v_and_b32 v2, 63, v0
    s_mul_i32 s21, {wg}, 21846
    v_readfirstlane_b32 s38, v1
    s_lshr_b32 s21, s21, 16
    s_mul_i32 s22, s21, 3
    s_sub_u32 s22, {wg}, s22
    """)
    k.e(f"""
    s_mul_i32 s24, s22, {192*4096}
    s_lshl_b32 s25, s21, 7
    s_add_u32 s24, s24, s25
    s_mul_i32 s25, s38, {48*4096}
    s_add_u32 s24, s24, s25
    s_add_u32 s24, s24, {YT}
    s_mul_i32 s30, s38, 6144
    v_lshrrev_b32 v{t}, 3, v{lane}
    v_bfe_u32 v{t+1}, v{lane}, 4, 1
    v_lshlrev_b32 v{t+1}, 1, v{t+1}
    v_and_b32 v{t+2}, 7, v{lane}
    v_xor_b32 v{t+2}, v{t+2}, v{t+1}
    v_lshlrev_b32 v{t}, 12, v{t}
    v_lshl_add_u32 v{t+3}, v{t+2}, 4, v{t}
    v_xor_b32 v{t+2}, 4, v{t+2}
    v_lshl_add_u32 v{t+4}, v{t+2}, 4, v{t}
    s_waitcnt lgkmcnt(0)
    """)
    srd(k, 8, 28, WS_END)
    srd(k, 12, 4, UB)
    srd(k, 16, 26, OUTB)
    srd(k, 32, 6, 1152)
    for i in range(6):
        k.e(f"""
        s_add_u32 m0, s30, {i*1024}
        s_add_u32 s31, s24, {i*8*4096}
        buffer_load_dwordx4 v{t+3 if i % 2 == 0 else t+4}, s[8:11], s31 offen lds
        """)
    k.e(f"""
    v_lshrrev_b32 v{t}, 4, v{lane}
    v_bfe_u32 v{t+1}, v{lane}, 2, 2
    v_lshl_add_u32 v{t+2}, v{t}, 3, v{t+1}
    v_lshlrev_b32 v{t+2}, 7, v{t+2}
    v_bfe_u32 v{t+5}, v{lane}, 1, 1
    s_lshl_b32 s31, s38, 1
    v_add_u32 v{t+5}, s31, v{t+5}
    v_bfe_u32 v{t+6}, v{lane}, 3, 1
    v_lshlrev_b32 v{t+6}, 1, v{t+6}
    v_and_b32 v{t+7}, 1, v{t}
    v_lshl_or_b32 v{t+6}, v{t+7}, 2, v{t+6}
    v_xor_b32 v{t+5}, v{t+5}, v{t+6}
    v_lshl_add_u32 v{t+2}, v{t+5}, 4, v{t+2}
    v_and_b32 v{t+5}, 1, v{lane}
    v_lshl_add_u32 v{t+2}, v{t+5}, 3, v{t+2}
    v_and_b32 v{t+5}, 15, v{lane}
    s_lshl_b32 s31, s21, 6
    s_lshl_b32 s36, s38, 4
    s_add_u32 s31, s31, s36
    v_add_u32 v{t+5}, s31, v{t+5}
    v_mul_u32_u24 v{t+6}, 1152, v{t+5}
    v_lshl_add_u32 v{t+6}, v{t}, 4, v{t+6}
    v_mul_u32_u24 v{t+7}, 2304, v{t+5}
    v_lshl_add_u32 v{t+7}, v{t}, 4, v{t+7}
    v_lshlrev_b32 v{t+8}, 4, v{t}
    s_mul_i32 s36, s22, 384
    """)
    U = 48; DD = 72
    for oq in range(6):
        k.e(f"buffer_load_dwordx4 {vr(U+4*oq,4)}, v{t+6}, s[12:15], s36 offen offset:{64*oq}")
        k.e(f"buffer_load_dwordx4 {vr(DD+4*oq,4)}, v{t+8}, s[32:35], s36 offen offset:{64*oq}")
    k.e("s_waitcnt vmcnt(12)")
    k.e("s_barrier")
    k.e("s_mov_b32 s37, 0xffff0000")
    for oq in range(6):
        Y = 8
        k.e(f"""
        ds_read_b64_tr_b16 {vr(Y,2)}, v{t+2} offset:{oq*4096}
        ds_read_b64_tr_b16 {vr(Y+2,2)}, v{t+2} offset:{oq*4096 + 512}
        s_waitcnt vmcnt({2*(5-oq) + min(oq,1)*0}) lgkmcnt(0)
        """) if False else None
        k.e(f"""
        ds_read_b64_tr_b16 {vr(Y,2)}, v{t+2} offset:{oq*4096}
        ds_read_b64_tr_b16 {vr(Y+2,2)}, v{t+2} offset:{oq*4096 + 512}
        s_waitcnt vmcnt({2*(5-oq) + oq})
        """)
        for i in range(4):
            u = U + 4*oq + i; d = DD + 4*oq + i
            k.e(f"""
            v_lshlrev_b32 v12, 16, v{u}
            v_and_b32 v13, s37, v{u}
            v_lshlrev_b32 v14, 16, v{d}
            v_and_b32 v15, s37, v{d}
            v_mul_f32 v12, v12, v14
            v_mul_f32 v13, v13, v15
            v_cvt_pk_bf16_f32 v{16+i}, v12, v13
            """)
        k.e("s_waitcnt lgkmcnt(0)")
        O_ = 24 + 4 * (oq & 1)
        for i in range(4):
            k.e(f"""
            v_lshlrev_b32 v12, 16, v{16+i}
            v_and_b32 v13, s37, v{16+i}
            v_lshlrev_b32 v14, 16, v{Y+i}
            v_and_b32 v15, s37, v{Y+i}
            v_add_f32 v12, v12, v14
            v_add_f32 v13, v13, v15
            v_cvt_pk_bf16_f32 v{O_+i}, v12, v13
            """)
        k.e(f"buffer_store_dwordx4 {vr(O_,4)}, v{t+7}, s[16:19], s36 offen offset:{64*oq}")
```

```python
CH = 18944
HB = 8 * CH
BLOB = 0
QM = 0x500000
Q2 = 0x700000
OA = 0x800000
UP = 0xB00000
UPC = 6144
KR = 0xF00000
KRC = 8448
KRH = 4224
YT = 0x1400000
WS_END = 0x1700000
XB = 2048 * 576 * 2
WB = 576 * 1728 * 2
WOB = 576 * 576 * 2
OUTB = 2048 * 1152 * 2
PB = 576 * 128 * 2
QSCALE = 1.4426950408889634 / (18 ** 0.5)
```

```python
class SB:
    def __init__(self, k, name, maxn):
        self.k = k; self.name = name; self.maxn = maxn
        self.q = []
    def issue(self, tag):
        self.q.append(tag)
        assert len(self.q) <= 64, "too many outstanding"
    def wait_for(self, tags):
        tags = set(tags) if not isinstance(tags, (str, tuple)) else {tags}
        last = -1
        for i, t in enumerate(self.q):
            if t in tags: last = i
        if last < 0: return
        n = len(self.q) - 1 - last
        n_emit = min(n, self.maxn)
        self.k.e(f"s_waitcnt {self.name}({n_emit})")
        self.q = self.q[len(self.q) - n_emit:] if n_emit > 0 else []
    def wait_all(self):
        self.k.e(f"s_waitcnt {self.name}(0)")
        self.q = []
    def reset(self): self.q = []
```

```python
import sys
from g import *
from build import assemble
import k_qkv, k_attn, k_oproj
STAMPS = "stamps" in sys.argv
PROFON = "prof" in sys.argv
var = [a[2:] for a in sys.argv if a.startswith('v=')]
kernels = []; launches = []
def make(name, idx, nwg, block, lds, nv, body):
    k = K(name)
    if STAMPS: stamp_id(k, 8); stamp_begin(k)
    k.e(f"s_cmp_ge_u32 s2, {nwg}")
    k.e(f"s_cbranch_scc1 L_{name}_exit")
    PR = Prof(k, PROFON, idx)
    if PR.on:
        stamp_id(k, 8)
        k.e("s_memtime s[56:57]\ns_waitcnt lgkmcnt(0)\ns_mov_b32 s83, s56")
    body(k, PR if PR.on else None)
    if PR.on:
        PR.mark(); k.e("s_mov_b32 s82, s83"); PR.n = 23; PR.dump()
    if STAMPS: stamp_end(k, idx)
    k.label(f"L_{name}_exit")
    k.e("s_endpgm")
    kernels.append((k, nv, 96)); launches.append((name, nwg, block, lds))
make("qkv_kernel", 0, 192, 512, k_qkv.GEMM_LDS, k_qkv.NV, lambda k, p: k_qkv.gen_qkv(k, p))
import k_ssm
def kgen_body(k, p):
    k.e("""
    v_lshrrev_b32 v1, 6, v0
    v_and_b32 v2, 63, v0
    s_nop 0
    v_readfirstlane_b32 s19, v1
    s_lshl_b32 s20, s2, 2
    s_add_u32 s20, s20, s19
    s_mul_i32 s21, s19, %d
    """ % k_ssm.KG_LDS_WAVE)
    k_ssm.gen_kgen(k, 20, 21)
def conv_body(k, p):
    k.e("""
    v_lshrrev_b32 v1, 6, v0
    v_and_b32 v2, 63, v0
    s_nop 0
    v_readfirstlane_b32 s19, v1
    s_lshl_b32 s20, s19, 8
    s_add_u32 s20, s20, s2
    """)
    k_ssm.gen_conv(k, 20)
make("utrans_kernel", 3, 64, 256, k_ssm.UT_LDS, 32, lambda k, p: k_ssm.gen_utrans(k))
make("kgen_kernel", 4, 144, 256, 4 * k_ssm.KG_LDS_WAVE, 128, kgen_body)
make("conv_kernel", 5, 256, 256, 0, 128, conv_body)
make("fin_kernel", 6, 96, 256, k_ssm.FIN_LDS, 100, lambda k, p: k_ssm.gen_fin(k))
make("attn_kernel", 1, 256, 512, k_attn.ATT_LDS, k_attn.NV, lambda k, p: k_attn.gen_attn(k, p, var=var))
make("oproj_kernel", 2, 144, 512, k_oproj.OP_LDS, k_oproj.NV, lambda k, p: k_oproj.gen_oproj(k, p))
txt, nerr = assemble(kernels, launches)
open(sys.argv[1] if len(sys.argv) > 1 else "out.s", "w").write(txt)
print("lint errors:", nerr)
```

```python
from g import *
from sb import SB
from layout import *
from k_qkv import srd, f2u

QF, Q2A, Q2B = 4, 8, 10
KF, KX = 12, 16
V0, V1 = 20, 24
P = 28
SA, SBUF = 36, 52
O = 68
vK, vK2, vV = 84, 85, 86
T0 = 88
CA = 100
CR = 116
vA, vU, vY = 156, 157, 158
NV_K2 = 160
ATT_LDS = 163840

def koff(tt): return (tt >> 3) * CH + (tt & 7) * 1024
def kxoff(q): return (q >> 1) * CH + (q & 1) * 512
def voff(ks): return (ks >> 4) * CH + (ks & 15) * VKS

def gen_attn(k, prof=None, var=()):
    t = T0
    lane = 2
    conv = "noconv" not in var
    k.c("---- attention ----")
    k.e(f"""
    s_load_dwordx2 s[4:5], s[0:1], 96
    s_and_b32 s20, s2, 7
    s_lshr_b32 s21, s2, 3
    s_and_b32 s22, s21, 3
    s_lshl_b32 s20, s20, 2
    s_add_u32 s20, s20, s22
    s_lshr_b32 s21, s21, 2
    s_lshl_b32 s21, s21, 3
    s_add_u32 s21, s21, s19
    s_lshl_b32 s26, s20, 16
    s_lshl_b32 s27, s21, 10
    s_add_u32 s26, s26, s27
    s_add_u32 s26, s26, {QM}
    s_lshl_b32 s28, s20, 13
    s_lshl_b32 s27, s21, 7
    s_add_u32 s28, s28, s27
    s_add_u32 s28, s28, {Q2}
    v_lshlrev_b32 v{vK}, 4, v{lane}
    v_and_b32 v{t}, 31, v{lane}
    v_lshlrev_b32 v{t+1}, 2, v{t}
    v_mov_b32 v{t+2}, -1
    v_cmp_gt_u32 vcc, 32, v{lane}
    v_mov_b32 v{Q2A+1}, 0
    v_mov_b32 v{Q2B}, 0
    v_cndmask_b32 v{t+2}, v{t+2}, v{t+1}, vcc
    """)
    k.e("s_waitcnt lgkmcnt(0)")
    if prof: prof.mark()
    srd(k, 8, 4, WS_END)
    k.e(f"buffer_load_dwordx4 {vr(QF,4)}, v{vK}, s[8:11], s26 offen")
    k.e(f"buffer_load_dword v{Q2A}, v{t+2}, s[8:11], s28 offen")
    if conv:
        l6 = k.newlabel("u6"); lu = k.newlabel("ud"); l7 = k.newlabel("u7"); l8 = k.newlabel("u8")
        k.e(f"""
        s_cmp_ge_u32 s19, 6
        s_cbranch_scc1 {l6}
        s_mul_i32 s34, s19, 86
        s_lshr_b32 s34, s34, 8
        s_mul_i32 s35, s34, 3
        s_sub_u32 s35, s19, s35
        s_lshl_b32 s30, s2, 1
        s_add_u32 s30, s30, s34
        s_branch {lu}
        """)
        k.label(l6)
        k.e(f"""
        s_sub_u32 s34, s19, 6
        s_cmp_ge_u32 s2, 64
        s_cbranch_scc1 {l7}
        s_add_u32 s30, s2, 512
        s_add_u32 s35, s34, 1
        s_branch {lu}
        """)
        k.label(l7)
        k.e(f"""
        s_sub_u32 s30, s2, 64
        s_lshl_b32 s30, s30, 1
        s_add_u32 s30, s30, s34
        s_add_u32 s30, s30, 512
        s_mov_b32 s35, 0
        s_cmp_lt_u32 s2, 96
        s_cbranch_scc1 {lu}
        s_mov_b32 s30, 0
        s_mov_b32 s35, 3
        """)
        k.label(lu)
        k.e(f"""
        s_cmp_ge_u32 s35, 1
        s_cselect_b32 s31, 1, 0
        s_cmp_eq_u32 s35, 2
        s_cselect_b32 s32, 32, 0
        s_mul_i32 s36, s30, 4096
        s_lshl_b32 s37, s31, 11
        s_add_u32 s36, s36, s37
        s_add_u32 s36, s36, {YT}
        s_mul_i32 s37, s30, 2048
        s_add_u32 s37, s37, {YT2}
        s_cmp_eq_u32 s35, 2
        s_cselect_b32 s33, s37, s36
        s_cmp_eq_u32 s35, 3
        s_cselect_b32 s31, 0, s31
        v_and_b32 v{t+5}, 3, v{t}
        v_lshlrev_b32 v{t+5}, 1, v{t+5}
        v_bfe_u32 v{t+6}, v{t}, 2, 1
        v_or_b32 v{t+5}, v{t+5}, v{t+6}
        v_lshrrev_b32 v{t+6}, 3, v{t}
        v_lshl_or_b32 v{t+5}, v{t+6}, 3, v{t+5}
        v_and_b32 v{t+6}, 1, v{t+5}
        v_xor_b32 v{t+6}, 1, v{t+6}
        v_sub_u32 v{t+7}, 2047, v{t+5}
        v_sub_u32 v{t+7}, v{t+7}, v{t+6}
        v_lshrrev_b32 v{t+4}, 5, v{lane}
        v_lshl_add_u32 v{t+7}, v{t+4}, 3, v{t+7}
        v_lshlrev_b32 v{t+7}, 1, v{t+7}
        v_mul_u32_u24 v{t+6}, {KRH}, v{t+6}
        v_add_u32 v{t+7}, v{t+7}, v{t+6}
        s_mul_i32 s36, s30, {KRC}
        s_add_u32 s36, s36, {KR}
        s_sub_u32 s36, s36, 4288
        v_add_u32 v{vA}, s36, v{t+7}
        v_mul_u32_u24 v{t+6}, 1536, v{t+4}
        v_lshl_add_u32 v{t+6}, v{t}, 4, v{t+6}
        s_mul_i32 s36, s30, {UPC}
        s_lshl_b32 s37, s31, 9
        s_add_u32 s36, s36, s37
        s_add_u32 s36, s36, {UP + 512}
        s_sub_u32 s36, s36, 1072
        v_add_u32 v{vU}, s36, v{t+6}
        v_lshlrev_b32 v{t+6}, 6, v{t}
        v_lshl_add_u32 v{vY}, v{t+4}, 4, v{t+6}
        s_lshl_b32 s38, s32, 6
        s_sub_u32 s38, 4032, s38
        s_lshl_b32 s39, s32, 4
        s_sub_u32 s39, 1008, s39
        """)
    if conv:
        for i in range(56): k.e(f"v_mov_b32 v{CA+i}, 0")
    k.e(f"""
    v_lshrrev_b32 v{t+3}, 5, v{lane}
    v_mul_u32_u24 v{t+3}, {VH}, v{t+3}
    v_min_u32 v{t+5}, 19, v{t}
    v_lshl_add_u32 v{t+5}, v{t+5}, 4, v{t+3}
    v_add_u32 v{vV}, 9216, v{t+5}
    v_lshlrev_b32 v{vK2}, 4, v{t}
    v_add_u32 v{vK2}, 8192, v{vK2}
    """)
    for i in range(16): k.e(f"v_mov_b32 v{O+i}, 0")
    for i in range(4): k.e(f"v_mov_b32 v{P+4+i}, 0")
    for i in range(4): k.e(f"v_mov_b32 v{V1+i}, 0")
    k.e("s_waitcnt vmcnt(0)")
    k.e(f"v_mov_b32 v{Q2B+1}, v{Q2A}")
    if prof: prof.mark()
    k.e("s_barrier")
    if prof: prof.mark()
    k.e(f"""
    ds_read_b128 {vr(KF,4)}, v{vK}
    ds_read_b128 {vr(KX,4)}, v{vK2}
    s_waitcnt lgkmcnt(0)
    v_mfma_f32_32x32x16_bf16 {vr(SA,16)}, {vr(KF,4)}, {vr(QF,4)}, 0
    v_mfma_f32_32x32x8_bf16 {vr(SA,16)}, {vr(KX,2)}, {vr(Q2A,2)}, {vr(SA,16)}
    ds_read_b128 {vr(KF,4)}, v{vK} offset:1024
    ds_read_b128 {vr(V0,4)}, v{vV}
    s_mov_b32 s41, 0
    s_waitcnt lgkmcnt(0)
    s_nop 7
    """)
    if "noprio" not in var: k.e("s_setprio 3")
    PAT_PLAIN = "1 eeeecc p eeeecc 2 eeeecc P eeeecc"
    pats = {"a": "1 eeeec p ceeee X ccee 2 eeccee P eecc",
            "b": "1 eeeec p ceee X eccee 2 eecce P eeecc" ,
            "c": "1 eeeecc p eee X ecc 2 eeeecc P eeeecc",
            "d": "1 eeeec p ceeee 2 ccee X eeccee P eecc",
            "e": "1 eeeecc X eeeecc p ee 2 eecc P eeeecc"}
    PAT_CONV = pats[[x[3:] for x in var if x.startswith("pat")][0]] if any(x.startswith("pat") for x in var) else pats["a"]
    def cl(kk, r, j):
        dr = j >> 1; s_ = j & 1
        kk.e(f"buffer_load_dwordx4 {vr(r,4)}, v{vA}, s[8:11], s38 offen offset:{256 - 64*dr + 32*s_}")
        kk.e(f"buffer_load_dwordx4 {vr(r+4,4)}, v{vU}, s[8:11], s39 offen offset:{64 - 16*dr + 3072*s_}")
    PAT_CONV2 = "1 eeee p ccee X eecc 2 eeee X ccee P eecc"
    DBL = (2, 6)
    def body(kk, lg, cv_on, loopbody=False):
        for tin in range(8):
            cur = SA if tin % 2 == 0 else SBUF
            nxt = SBUF if tin % 2 == 0 else SA
            e = c = 0
            if tin == 0: xs = [0]
            if tin == 4 and loopbody and "noprio" not in var:
                lp = k.newlabel("pl")
                kk.e("s_cmp_eq_u32 s41, 7")
                kk.e(f"s_cbranch_scc0 {lp}")
                kk.e("s_setprio 0")
                kk.lines.append(lp + ":")
            pat = PAT_PLAIN if not cv_on else (PAT_CONV2 if tin in DBL else PAT_CONV)
            for tok in pat.replace(" ", ""):
                if tok == "e":
                    kk.e(f"v_exp_f32 v{cur+e}, v{cur+e}"); e += 1
                elif tok == "c":
                    assert e >= min(16, 2*c + 2)
                    kk.e(f"v_cvt_pk_bf16_f32 v{P+c}, v{cur+2*c}, v{cur+2*c+1}"); c += 1
                elif tok == "1":
                    lg.wait_for(["K"])
                    kk.e(f"v_mfma_f32_32x32x16_bf16 {vr(nxt,16)}, {vr(KF,4)}, {vr(QF,4)}, 0")
                    kk.e(f"ds_read_b128 {vr(KF,4)}, v{vK} offset:{koff(tin+2)}"); lg.issue("K")
                elif tok == "p":
                    assert c <= 4
                    lg.wait_for(["V1"])
                    kk.e(f"v_mfma_f32_32x32x16_bf16 {vr(O,16)}, {vr(V1,4)}, {vr(P+4,4)}, {vr(O,16)}")
                    kk.e(f"ds_read_b128 {vr(V1,4)}, v{vV} offset:{voff(2*tin+1)}"); lg.issue("V1")
                elif tok == "2":
                    t1 = tin + 1
                    lg.wait_for(["X"])
                    kx = KX + 2 * ((t1 & 3) >> 1)
                    q2 = Q2A if (t1 & 1) == 0 else Q2B
                    kk.e(f"v_mfma_f32_32x32x8_bf16 {vr(nxt,16)}, {vr(kx,2)}, {vr(q2,2)}, {vr(nxt,16)}")
                    if (t1 & 3) == 3:
                        kk.e(f"ds_read_b128 {vr(KX,4)}, v{vK2} offset:{kxoff((t1+1) >> 2)}"); lg.issue("X")
                elif tok == "P":
                    assert c >= 4
                    lg.wait_for(["V0"])
                    kk.e(f"v_mfma_f32_32x32x16_bf16 {vr(O,16)}, {vr(V0,4)}, {vr(P,4)}, {vr(O,16)}")
                    kk.e(f"ds_read_b128 {vr(V0,4)}, v{vV} offset:{voff(2*tin+2)}"); lg.issue("V0")
                elif tok == "X":
                    j = xs[0]; xs[0] += 1
                    r = CR + 8 * (j % 5)
                    kk.e("s_waitcnt vmcnt(8)")
                    if j == 9:
                        lx = k.newlabel("skipx")
                        kk.e("s_cmp_eq_u32 s41, 7")
                        kk.e(f"s_cbranch_scc1 {lx}")
                        kk.e(f"v_mfma_f32_32x32x16_bf16 {vr(CA,16)}, {vr(r,4)}, {vr(r+4,4)}, {vr(CA,16)}")
                        kk.lines.append(lx + ":")
                    else:
                        kk.e(f"v_mfma_f32_32x32x16_bf16 {vr(CA,16)}, {vr(r,4)}, {vr(r+4,4)}, {vr(CA,16)}")
                    cl(kk, r, j)
            assert e == 16 and c == 8
    def advance():
        k.e(f"""
        v_add_u32 v{vK}, {CH}, v{vK}
        v_add_u32 v{vK2}, {CH}, v{vK2}
        v_add_u32 v{vV}, {CH}, v{vV}
        """)
    tmp = K("tmp"); lg = SB(tmp, "lgkmcnt", 15)
    body(tmp, lg, False); state = list(lg.q)
    lg.k = k
    body(k, lg, False)
    assert lg.q == state
    advance()
    k.e("s_barrier")
    if prof: prof.mark()
    k.e("s_mov_b32 s41, 1")
    lloop = k.newlabel("loop")
    k.label(lloop)
    body(k, lg, conv, True)
    assert lg.q == state
    advance()
    lskip = k.newlabel("nobar")
    if conv:
        k.e("s_sub_u32 s38, s38, 320")
        k.e("s_sub_u32 s39, s39, 80")
    k.e(f"""
    s_add_u32 s41, s41, 1
    s_cmp_eq_u32 s41, 2
    s_cbranch_scc0 {lskip}
    s_barrier
    """)
    k.label(lskip)
    if prof:
        for cnt in range(2, 9):
            l2 = k.newlabel("pm")
            k.e(f"s_cmp_eq_u32 s41, {cnt}")
            k.e(f"s_cbranch_scc0 {l2}")
            prof.mark()
            k.label(l2)
    if "noprio" not in var:
        for (cnt, pr) in ((6, 2), (7, 1)):
            l2 = k.newlabel("pr")
            k.e(f"s_cmp_eq_u32 s41, {cnt}")
            k.e(f"s_cbranch_scc0 {l2}")
            k.e(f"s_setprio {pr}")
            k.label(l2)
    k.e("s_cmp_lt_u32 s41, 8")
    k.e(f"s_cbranch_scc1 {lloop}")
    k.e(f"""
    s_waitcnt lgkmcnt(0)
    v_mfma_f32_32x32x16_bf16 {vr(O,16)}, {vr(V1,4)}, {vr(P+4,4)}, {vr(O,16)}
    """)
    if prof: prof.mark()
    k.nop(12)
    lfin = k.newlabel("fin"); lfb = k.newlabel("fb")
    k.e(f"""
    v_mov_b32 v{t}, v{O+10}
    v_mov_b32 v{t+1}, v{O+10}
    s_mov_b32 s42, {f2u(2.0**-64)}
    s_mov_b32 s43, {f2u(2.0**40)}
    v_permlane32_swap_b32 v{t}, v{t+1}
    s_nop 1
    v_cmp_le_f32 vcc, s42, v{t}
    v_cmp_ge_f32 s[44:45], s43, v{t}
    s_and_b64 s[44:45], s[44:45], vcc
    s_cmp_eq_u64 s[44:45], exec
    s_cselect_b32 s46, 0, 1
    """)
    k.e("s_cmp_eq_u32 s46, 1")
    k.e(f"s_cbranch_scc1 {lfb}")
    k.label(lfin)
    k.e(f"""
    v_rcp_f32 v{t}, v{t}
    v_and_b32 v{t+2}, 31, v{lane}
    v_lshrrev_b32 v{t+3}, 5, v{lane}
    s_lshl_b32 s26, s21, 5
    v_add_u32 v{t+2}, s26, v{t+2}
    v_mul_u32_u24 v{t+2}, 1152, v{t+2}
    v_lshl_add_u32 v{t+2}, v{t+3}, 3, v{t+2}
    s_mul_i32 s27, s20, 36
    s_add_u32 s27, s27, {OA}
    """)
    for r in range(10): k.e(f"v_mul_f32 v{O+r}, v{O+r}, v{t}")
    for j in range(5): k.e(f"v_cvt_pk_bf16_f32 v{P+j}, v{O+2*j}, v{O+2*j+1}")
    k.e(f"""
    buffer_store_dwordx2 {vr(P,2)}, v{t+2}, s[8:11], s27 offen
    buffer_store_dwordx2 {vr(P+2,2)}, v{t+2}, s[8:11], s27 offen offset:16
    s_mov_b32 exec_hi, 0
    buffer_store_dword v{P+4}, v{t+2}, s[8:11], s27 offen offset:32
    s_mov_b64 exec, -1
    """)
    lend = k.newlabel("end")
    if conv:
        k.e("s_waitcnt vmcnt(3)")
        for g in range(2):
            for e in range(4):
                k.e(f"v_permlane32_swap_b32 v{CA+8*g+e}, v{CA+8*g+4+e}")
        k.e("s_nop 1")
        for g in range(2):
            for e in range(4):
                k.e(f"v_cvt_pk_bf16_f32 v{CR+4*g+e}, v{CA+8*g+e}, v{CA+8*g+4+e}")
        k.e("s_cmp_eq_u32 s35, 3")
        k.e(f"s_cbranch_scc1 {lend}")
        for g in range(2):
            k.e(f"buffer_store_dwordx4 {vr(CR+4*g,4)}, v{vY}, s[8:11], s33 offen offset:{32*g}")
    k.e(f"s_branch {lend}")
    k.label(lfb)
    k.c("fallback: pass 1 = true row max, pass 2 = exp(s - max)")
    mx = t + 6
    k.e(f"""
    v_mov_b32 v{mx}, 0xff800000
    s_mov_b32 s46, 0
    s_nop 7
    """)
    lpass = k.newlabel("pass")
    k.label(lpass)
    for i in range(16): k.e(f"v_mov_b32 v{O+i}, 0")
    k.e(f"s_mov_b32 s41, 0")
    lm = k.newlabel("sl")
    k.label(lm)
    k.e(f"""
    s_lshr_b32 s47, s41, 3
    s_mul_i32 s47, s47, {CH}
    s_and_b32 s48, s41, 7
    s_lshl_b32 s49, s48, 10
    s_add_u32 s49, s49, s47
    v_lshlrev_b32 v{t+7}, 4, v{lane}
    v_add_u32 v{t+7}, s49, v{t+7}
    s_lshr_b32 s49, s48, 2
    s_lshl_b32 s49, s49, 9
    s_and_b32 s50, s48, 3
    s_lshl_b32 s50, s50, 2
    s_add_u32 s49, s49, s50
    s_add_u32 s49, s49, s47
    s_add_u32 s49, s49, 8192
    v_and_b32 v{t+8}, 31, v{lane}
    v_lshlrev_b32 v{t+8}, 4, v{t+8}
    v_add_u32 v{t+8}, s49, v{t+8}
    s_mul_i32 s49, s48, {2*VKS}
    s_add_u32 s49, s49, s47
    s_add_u32 s49, s49, 9216
    v_add_u32 v{t+9}, s49, v{t+5}
    ds_read_b128 {vr(KF,4)}, v{t+7}
    ds_read_b32 v{KX}, v{t+8}
    v_mov_b32 v{KX+1}, 0
    ds_read_b128 {vr(V0,4)}, v{t+9}
    ds_read_b128 {vr(V1,4)}, v{t+9} offset:{VKS}
    s_waitcnt lgkmcnt(0)
    v_mfma_f32_32x32x16_bf16 {vr(SA,16)}, {vr(KF,4)}, {vr(QF,4)}, 0
    v_mfma_f32_32x32x8_bf16 {vr(SA,16)}, {vr(KX,2)}, {vr(Q2A,2)}, {vr(SA,16)}
    """)
    k.nop(12)
    lp2 = k.newlabel("p2"); lnx = k.newlabel("nx")
    k.e("s_cmp_eq_u32 s46, 1")
    k.e(f"s_cbranch_scc1 {lp2}")
    for i in range(8):
        k.e(f"v_max3_f32 v{mx}, v{SA+2*i}, v{SA+2*i+1}, v{mx}")
    k.e(f"s_branch {lnx}")
    k.label(lp2)
    for i in range(16):
        k.e(f"v_sub_f32 v{SA+i}, v{SA+i}, v{mx}")
    for i in range(16):
        k.e(f"v_exp_f32 v{SA+i}, v{SA+i}")
    k.e("s_nop 0")
    for j in range(8):
        k.e(f"v_cvt_pk_bf16_f32 v{P+j}, v{SA+2*j}, v{SA+2*j+1}")
    k.e(f"""
    s_nop 1
    v_mfma_f32_32x32x16_bf16 {vr(O,16)}, {vr(V0,4)}, {vr(P,4)}, {vr(O,16)}
    v_mfma_f32_32x32x16_bf16 {vr(O,16)}, {vr(V1,4)}, {vr(P+4,4)}, {vr(O,16)}
    """)
    k.label(lnx)
    ldone = k.newlabel("fbdone")
    k.e(f"""
    s_add_u32 s41, s41, 1
    s_cmp_lt_u32 s41, 64
    s_cbranch_scc1 {lm}
    s_cmp_eq_u32 s46, 1
    s_cbranch_scc1 {ldone}
    v_mov_b32 v{t+7}, v{mx}
    s_nop 1
    v_permlane32_swap_b32 v{mx}, v{t+7}
    s_nop 1
    v_max_f32 v{mx}, v{mx}, v{t+7}
    s_mov_b32 s46, 1
    s_branch {lpass}
    """)
    k.label(ldone)
    k.nop(12)
    k.e(f"""
    v_mov_b32 v{t}, v{O+10}
    v_mov_b32 v{t+1}, v{O+10}
    s_nop 1
    v_permlane32_swap_b32 v{t}, v{t+1}
    s_nop 1
    s_branch {lfin}
    """)
    k.label(lend)

def gen_loader(k):
    k.c("---- K/V loader ----")
    k.e(f"""
    s_load_dwordx2 s[4:5], s[0:1], 96
    s_and_b32 s20, s2, 7
    s_lshr_b32 s21, s2, 3
    s_and_b32 s22, s21, 3
    s_lshl_b32 s20, s20, 2
    s_add_u32 s20, s20, s22
    s_sub_u32 s23, s19, 8
    s_mul_i32 s24, s20, {HB}
    s_lshl_b32 s25, s23, 10
    s_add_u32 s24, s24, s25
    v_lshlrev_b32 v4, 4, v2
    s_setprio 3
    s_waitcnt lgkmcnt(0)
    """)
    srd(k, 8, 4, WS_END)
    def piece(j):
        k.e(f"s_add_u32 m0, s25, {j*4096}")
        k.e(f"s_add_u32 s27, s24, {j*4096}")
        k.e(f"buffer_load_dwordx4 v4, s[8:11], s27 offen lds")
    for j in range(8): piece(j)
    k.e("s_waitcnt vmcnt(0)")
    k.e("s_barrier")
    for j in range(8, 38): piece(j)
    k.e("s_waitcnt vmcnt(25)")
    k.e("s_barrier")
    k.e("s_waitcnt vmcnt(0)")
    k.e("s_barrier")

def gen_k2(k, prof=None, var=()):
    lconv = k.newlabel("loader"); lend = k.newlabel("k2end")
    k.e("""
    v_lshrrev_b32 v1, 6, v0
    v_and_b32 v2, 63, v0
    s_nop 0
    v_readfirstlane_b32 s19, v1
    s_nop 3
    s_cmp_ge_u32 s19, 8
    """)
    k.e(f"s_cbranch_scc1 {lconv}")
    gen_attn(k, prof, var)
    k.e(f"s_branch {lend}")
    k.label(lconv)
    gen_loader(k)
    k.label(lend)
```

```python
from g import *
from sb import SB
from layout import *
import struct

def f2u(x): return struct.unpack("<I", struct.pack("<f", x))[0]

def srd(k, dst, ptr, size):
    k.e(f"s_mov_b32 s{dst}, s{ptr}")
    k.e(f"s_and_b32 s{dst+1}, s{ptr+1}, 0xffff")
    k.e(f"s_mov_b32 s{dst+2}, {size}")
    k.e(f"s_mov_b32 s{dst+3}, 0x00020000")

NST = 3
XST = 16384
WBASE = NST * XST
WST = 24576
GEMM_LDS = WBASE + NST * WST

ACC = 16
XF = [64, 68]
WF = [72, 84]
vXd = 4
vXd2 = 5
vWp = [6, 7, 8]
vXr = [9, 10, 11, 12]
vWr01 = [13, 14, 15]
vWr2 = [96, 97, 98]
T0 = 100
NV = 116

def gen_qkv(k, prof=None):
    k.c("---- QKV GEMM ----")
    lane = 2
    t = T0
    k.e("""
    s_load_dwordx4 s[4:7], s[0:1], 56
    s_load_dwordx2 s[28:29], s[0:1], 96
    v_lshrrev_b32 v1, 6, v0
    v_and_b32 v2, 63, v0
    s_and_b32 s30, s2, 7
    v_readfirstlane_b32 s49, v1
    s_lshr_b32 s31, s2, 3
    """)
    k.e("""
    s_lshr_b32 s21, s30, 1
    s_lshl_b32 s21, s21, 2
    s_and_b32 s32, s31, 3
    s_add_u32 s21, s21, s32
    s_and_b32 s32, s30, 1
    s_mul_i32 s32, s32, 6
    s_lshr_b32 s33, s31, 2
    s_add_u32 s32, s32, s33
    s_lshr_b32 s22, s32, 2
    s_and_b32 s23, s32, 3
    s_and_b32 s20, s49, 3
    s_lshr_b32 s43, s49, 2
    """)
    k.e(f"""
    s_lshl_b32 s24, s21, 7
    s_lshl_b32 s33, s20, 5
    s_add_u32 s24, s24, s33
    s_lshl_b32 s33, s43, 4
    s_add_u32 s24, s24, s33
    s_mul_i32 s24, s24, 1152
    s_mul_i32 s25, s22, 1152
    s_mul_i32 s33, s23, 288
    s_add_u32 s25, s25, s33
    s_mul_i32 s33, s49, {8*3456}
    s_add_u32 s25, s25, s33
    s_lshl_b32 s26, s20, 12
    s_lshl_b32 s33, s43, 11
    s_add_u32 s48, s26, s33
    s_mul_i32 s27, s49, 3072
    s_add_u32 s27, s27, {WBASE}
    """)
    k.e(f"""
    v_lshrrev_b32 v{t}, 3, v{lane}
    v_mul_u32_u24 v{t}, 1152, v{t}
    v_and_b32 v{t+1}, 7, v{lane}
    v_lshrrev_b32 v{t+2}, 4, v{lane}
    v_xor_b32 v{t+3}, v{t+1}, v{t+2}
    v_lshl_add_u32 v{vXd}, v{t+3}, 4, v{t}
    v_xor_b32 v{t+3}, 4, v{t+3}
    v_lshl_add_u32 v{vXd2}, v{t+3}, 4, v{t}
    """)
    for pat in range(3):
        k.e(f"""
        v_add_u32 v{t}, {64*pat}, v{lane}
        v_mul_u32_u24 v{t+1}, 2731, v{t}
        v_lshrrev_b32 v{t+1}, 16, v{t+1}
        v_mul_u32_u24 v{t+2}, 24, v{t+1}
        v_sub_u32 v{t+2}, v{t}, v{t+2}
        v_bfe_u32 v{t+3}, v{t+1}, 1, 1
        v_lshlrev_b32 v{t+4}, 2, v{t+3}
        v_xor_b32 v{t+4}, v{t+2}, v{t+4}
        v_lshrrev_b32 v{t+5}, 1, v{t+4}
        v_mul_u32_u24 v{t+5}, 36, v{t+5}
        v_and_b32 v{t+4}, 1, v{t+4}
        v_lshl_add_u32 v{t+5}, v{t+4}, 4, v{t+5}
        v_subrev_u32 v{t+6}, 16, v{t+2}
        v_mul_u32_u24 v{t+6}, 36, v{t+6}
        v_add_u32 v{t+6}, 32, v{t+6}
        v_lshlrev_b32 v{t+3}, 3, v{t+3}
        v_sub_u32 v{t+6}, v{t+6}, v{t+3}
        v_cmp_gt_u32 vcc, 16, v{t+2}
        v_mul_u32_u24 v{t+1}, 3456, v{t+1}
        s_nop 0
        v_cndmask_b32 v{t+5}, v{t+6}, v{t+5}, vcc
        v_add_u32 v{vWp[pat]}, v{t+1}, v{t+5}
        """)
    k.e("s_waitcnt lgkmcnt(0)")
    srd(k, 8, 4, XB)
    srd(k, 12, 6, WB)
    srd(k, 16, 28, WS_END)

    vm = SB(k, "vmcnt", 63)
    def dma_list(c):
        st = c % NST
        out = []
        for jj in range(2):
            out.append((f"""s_add_u32 m0, s48, {st*XST + jj*1024}
            s_add_u32 s28, s24, {jj*9216 + c*128}
            buffer_load_dwordx4 v{vXd if jj == 0 else vXd2}, s[8:11], s28 offen lds""", ("D", c)))
        for ii in range(3):
            out.append((f"""s_add_u32 m0, s27, {st*WST + ii*1024}
            s_add_u32 s28, s25, {c*64*3456}
            buffer_load_dwordx4 v{vWp[ii]}, s[12:15], s28 offen lds""", ("D", c)))
        return out
    def emit_dma(d):
        k.e(d[0]); vm.issue(d[1])
    for c0 in range(NST - 1):
        for d in dma_list(c0): emit_dma(d)
    k.e(f"""
    s_lshl_b32 s33, s31, 3
    s_add_u32 s33, s33, s49
    s_lshr_b32 s34, s30, 1
    s_mul_i32 s34, s34, {512*1152}
    s_mul_i32 s35, s33, {24*128}
    s_add_u32 s34, s34, s35
    v_lshlrev_b32 v{t}, 7, v{lane}
    v_mov_b32 v{t+4}, -1
    v_cmp_gt_u32 vcc, 24, v{lane}
    v_mul_u32_u24 v{t+1}, 4682, v{lane}
    v_lshrrev_b32 v{t+1}, 16, v{t+1}
    v_cndmask_b32 v{t}, v{t+4}, v{t}, vcc
    v_mul_u32_u24 v{t+2}, 14, v{t+1}
    v_sub_u32 v{t+2}, v{lane}, v{t+2}
    v_mul_u32_u24 v{t+1}, 3456, v{t+1}
    v_lshl_add_u32 v{t+1}, v{t+2}, 7, v{t+1}
    v_cmp_gt_u32 vcc, 42, v{lane}
    s_and_b32 s35, s30, 1
    s_mul_i32 s35, s35, 1664
    s_mul_i32 s36, s33, {3*3456}
    s_add_u32 s35, s35, s36
    v_cndmask_b32 v{t+1}, v{t+4}, v{t+1}, vcc
    buffer_load_dword v{t+8}, v{t}, s[8:11], s34 offen
    buffer_load_dword v{t+9}, v{t+1}, s[12:15], s35 offen
    """)
    vm.issue("P"); vm.issue("P")
    k.e(f"""
    v_and_b32 v{t}, 31, v{lane}
    v_lshrrev_b32 v{t+1}, 5, v{lane}
    v_bfe_u32 v{t+2}, v{t}, 1, 3
    v_lshlrev_b32 v{t}, 7, v{t}
    v_add_u32 v{t}, s26, v{t}
    """)
    for sx in range(4):
        k.e(f"""
        v_add_u32 v{t+3}, {2*sx}, v{t+1}
        v_xor_b32 v{t+3}, v{t+3}, v{t+2}
        v_lshl_add_u32 v{vXr[sx]}, v{t+3}, 4, v{t}
        """)
    k.e(f"""
    v_bfe_u32 v{t}, v{lane}, 2, 2
    v_lshrrev_b32 v{t+1}, 5, v{lane}
    v_lshl_add_u32 v{t}, v{t+1}, 3, v{t}
    v_mul_u32_u24 v{t}, 384, v{t}
    v_add_u32 v{t}, {WBASE}, v{t}
    v_bfe_u32 v{t+1}, v{lane}, 4, 1
    v_and_b32 v{t+2}, 3, v{lane}
    v_bfe_u32 v{t+3}, v{lane}, 3, 1
    v_and_b32 v{t+4}, 1, v{t+2}
    v_lshl_add_u32 v{t+4}, v{t+1}, 1, v{t+4}
    v_lshlrev_b32 v{t+4}, 4, v{t+4}
    v_lshrrev_b32 v{t+5}, 1, v{t+2}
    v_lshl_add_u32 v{t+4}, v{t+5}, 3, v{t+4}
    v_add_u32 v{t+4}, v{t}, v{t+4}
    v_lshl_add_u32 v{t+6}, v{t+3}, 6, v{t+4}
    v_xor_b32 v{t+5}, 1, v{t+3}
    v_lshl_add_u32 v{t+7}, v{t+5}, 6, v{t+4}
    v_lshl_add_u32 v{t+4}, v{t+1}, 2, v{t+2}
    v_add_u32 v{t+4}, 16, v{t+4}
    v_lshl_add_u32 v{t+4}, v{t+4}, 4, v{t}
    v_lshl_add_u32 v{t+10}, v{t+3}, 3, v{t+4}
    """)
    EV, OD, LF = t+6, t+7, t+10

    def reads(c, sx, buf, nt):
        st = c % NST
        wr = vWr2 if st == 2 else vWr01
        wo = (0 if st == 2 else st * WST) + sx * 6144
        r = [(f"ds_read_b128 {vr(XF[buf],4)}, v{vXr[sx]} offset:{st*XST}", ("X", c, sx))]
        for j in range(nt):
            for z in range(2):
                r.append((f"ds_read_b64_tr_b16 {vr(WF[buf]+4*j+2*z,2)}, v{wr[j]} offset:{wo + z*1536}", ("W", c, sx, j, z)))
        return r

    def mainloop(isV, nt):
        lg = SB(k, "lgkmcnt", 15)
        first = [True] * nt
        def mfma(c, sx, buf, j):
            lg.wait_for([("X", c, sx), ("W", c, sx, j, 0), ("W", c, sx, j, 1)])
            a, b = vr(WF[buf] + 4*j, 4), vr(XF[buf], 4)
            if isV: a, b = b, a
            d = vr(ACC + 16*j, 16)
            k.e(f"v_mfma_f32_32x32x16_bf16 {d}, {a}, {b}, {'0' if first[j] else d}")
            first[j] = False
        vmq = list(vm.q)
        for c in range(9):
            vm.wait_for([("D", c)])
            lg.wait_all()
            k.e("s_barrier")
            if prof: prof.mark()
            dm = dma_list(c + NST - 1) if c + NST - 1 < 9 else []
            rd = reads(c, 0, 0, nt)
            for (txt, tag) in rd:
                k.e(txt); lg.issue(tag)
            if c > 0:
                for j in range(nt):
                    mfma(c - 1, 3, 1, j)
                    if dm: emit_dma(dm.pop(0))
            for sx in range(3 if c < 8 else 4):
                buf = sx & 1
                nxt = reads(c, sx + 1, buf ^ 1, nt) if sx < 3 else []
                for j in range(nt):
                    mfma(c, sx, buf, j)
                    n = len(nxt) if j == nt - 1 else 3
                    for (txt, tag) in nxt[:n]:
                        k.e(txt); lg.issue(tag)
                    nxt = nxt[n:]
                    if dm and j == 0: emit_dma(dm.pop(0))
            while dm: emit_dma(dm.pop(0))
        vm.q = vmq

    def epi_qk(tiles):
        k.c("Q/K epilogue")
        k.e(f"""
        s_lshl_b32 s30, s21, 2
        s_add_u32 s30, s30, s20
        s_lshr_b32 s31, s30, 3
        s_and_b32 s32, s30, 7
        s_cmp_eq_u32 s22, 0
        s_cselect_b32 s33, {f2u(QSCALE)}, 1.0
        s_mov_b32 s34, {HB}
        s_cselect_b32 s35, 8192, s34
        s_cselect_b32 s34, 65536, s34
        s_mul_i32 s36, s31, {CH}
        s_lshl_b32 s37, s32, 10
        s_add_u32 s37, s37, s36
        s_lshr_b32 s38, s32, 2
        s_lshl_b32 s38, s38, 9
        s_and_b32 s39, s32, 3
        s_lshl_b32 s39, s39, 2
        s_add_u32 s38, s38, s39
        s_add_u32 s38, s38, s36
        s_add_u32 s38, s38, 8192
        s_lshl_b32 s39, s30, 10
        s_add_u32 s39, s39, {QM}
        s_lshl_b32 s40, s30, 7
        s_add_u32 s40, s40, {Q2}
        s_cmp_eq_u32 s22, 0
        s_cselect_b32 s37, s39, s37
        s_cselect_b32 s38, s40, s38
        s_lshl_b32 s41, s23, 3
        s_mul_i32 s42, s41, s35
        s_add_u32 s38, s38, s42
        s_add_u32 s41, s41, {2*tiles[0]}
        s_mul_i32 s42, s41, s34
        s_add_u32 s37, s37, s42
        v_lshlrev_b32 v{T0}, 4, v{lane}
        v_and_b32 v{T0+1}, 31, v{lane}
        s_cmp_eq_u32 s22, 0
        s_cselect_b32 s39, 2, 4
        v_lshlrev_b32 v{T0+1}, s39, v{T0+1}
        v_lshrrev_b32 v{T0+2}, 5, v{lane}
        v_mul_lo_u32 v{T0+2}, v{T0+2}, s35
        v_add_u32 v{T0+1}, v{T0+1}, v{T0+2}
        """)
        tmp = 64
        for slot, j in enumerate(tiles):
            if j < 4:
                for hh in range(2):
                    base = ACC + 16*slot + 8*hh
                    tr = tmp + (8 if hh else 0)
                    for i in range(8):
                        k.e(f"v_mul_f32 v{base+i}, s33, v{base+i}")
                    for i in range(4):
                        k.e(f"v_cvt_pk_bf16_f32 v{tr+i}, v{base+2*i}, v{base+2*i+1}")
                    k.e(f"buffer_store_dwordx4 {vr(tr,4)}, v{T0}, s[16:19], s37 offen")
                    k.e("s_add_u32 s37, s37, s34")
            else:
                base = ACC + 16*slot
                for q in range(4):
                    k.e(f"v_mul_f32 v{base+4*q}, s33, v{base+4*q}")
                    k.e(f"v_mul_f32 v{base+4*q+1}, s33, v{base+4*q+1}")
                    k.e(f"v_cvt_pk_bf16_f32 v{80+q}, v{base+4*q}, v{base+4*q+1}")
                    k.e(f"buffer_store_dword v{80+q}, v{T0+1}, s[16:19], s38 offen")
                    k.e("s_add_u32 s38, s38, s35")
                    k.e("s_add_u32 s38, s38, s35")

    def epi_v(tiles):
        k.c("V epilogue")
        k.e(f"""
        s_lshl_b32 s30, s21, 2
        s_add_u32 s30, s30, s20
        s_lshr_b32 s31, s30, 3
        s_and_b32 s32, s30, 7
        s_mul_i32 s36, s31, {CH}
        s_mul_i32 s37, s32, {2*VKS}
        s_add_u32 s37, s37, s36
        s_add_u32 s37, s37, 9216
        s_lshl_b32 s41, s23, 3
        s_mul_i32 s42, s41, {HB}
        s_add_u32 s38, s37, s42
        s_add_u32 s37, s38, {2*tiles[0]*HB}
        s_mov_b32 s34, {HB}
        v_bfe_u32 v{T0}, v{lane}, 4, 1
        v_bfe_u32 v{T0+1}, v{lane}, 2, 1
        v_bfe_u32 v{T0+2}, v{lane}, 3, 1
        v_and_b32 v{T0+3}, 3, v{lane}
        v_lshrrev_b32 v{T0+4}, 5, v{lane}
        v_mul_u32_u24 v{T0+4}, {VH}, v{T0+4}
        v_lshl_add_u32 v{T0+5}, v{T0+1}, 3, v{T0+3}
        v_lshl_add_u32 v{T0+5}, v{T0+2}, 2, v{T0+5}
        v_lshl_add_u32 v{T0+5}, v{T0+5}, 4, v{T0+4}
        v_mul_lo_u32 v{T0+6}, v{T0}, s34
        v_add_u32 v{T0+5}, v{T0+5}, v{T0+6}
        v_bfe_u32 v{T0+7}, v{lane}, 2, 2
        v_lshl_add_u32 v{T0+7}, v{T0}, 2, v{T0+7}
        v_mul_lo_u32 v{T0+7}, v{T0+7}, s34
        v_add_u32 v{T0+8}, 16, v{T0+3}
        v_lshl_add_u32 v{T0+8}, v{T0+8}, 4, v{T0+4}
        v_add_u32 v{T0+7}, v{T0+7}, v{T0+8}
        """)
        tmp = 64
        for slot, j in enumerate(tiles):
            if j < 4:
                for kl in range(2):
                    base = ACC + 16*slot + 8*kl
                    tr = tmp + (8 if kl else 0)
                    for i in range(4):
                        k.e(f"v_cvt_pk_bf16_f32 v{tr+i}, v{base+2*i}, v{base+2*i+1}")
                    k.e(f"buffer_store_dwordx4 {vr(tr,4)}, v{T0+5}, s[16:19], s37 offen offset:{kl*VKS}")
                k.e("s_add_u32 s37, s37, s34")
                k.e("s_add_u32 s37, s37, s34")
            else:
                k.e(f"""
                v_mov_b32 v{T0+9}, 0x3f803f80
                v_mov_b32 v{T0+10}, 0
                v_cmp_eq_u32 s[44:45], 3, v{T0+3}
                v_cmp_le_u32 s[46:47], 2, v{T0+3}
                s_nop 1
                v_cndmask_b32 v{T0+9}, v{T0+9}, v{T0+10}, s[44:45]
                """)
                base = ACC + 16*slot
                for kl in range(2):
                    tr = 80 + 4*kl
                    for i in range(4):
                        k.e(f"v_cvt_pk_bf16_f32 v{tr+i}, v{base+8*kl+2*i}, v{base+8*kl+2*i+1}")
                    for i in range(4):
                        k.e(f"v_cndmask_b32 v{tr+i}, v{tr+i}, v{T0+9}, s[46:47]")
                for kl in range(2):
                    k.e(f"buffer_store_dwordx4 {vr(80+4*kl,4)}, v{T0+7}, s[16:19], s38 offen offset:{kl*VKS}")

    le = k.newlabel("end")
    lh1 = k.newlabel("half1")
    k.e("s_cmp_eq_u32 s43, 1")
    k.e(f"s_cbranch_scc1 {lh1}")
    for half in range(2):
        if half == 1: k.label(lh1)
        tiles = [0, 1, 2] if half == 0 else [3, 4]
        src = {0: (EV, 0), 1: (OD, 0), 2: (EV, 128), 3: (OD, 128), 4: (LF, 0)}
        for slot, j in enumerate(tiles):
            a, off = src[j]
            k.e(f"v_add_u32 v{vWr01[slot]}, {off}, v{a}")
            k.e(f"v_add_u32 v{vWr2[slot]}, {off + 2*WST}, v{a}")
        lv = k.newlabel("v")
        k.e("s_cmp_eq_u32 s22, 2")
        k.e(f"s_cbranch_scc1 {lv}")
        n0 = prof.n if prof else 0
        if prof: prof.mark()
        mainloop(False, len(tiles))
        if prof: prof.mark()
        epi_qk(tiles)
        k.e(f"s_branch {le}")
        k.label(lv)
        if prof: prof.n = n0; prof.mark()
        mainloop(True, len(tiles))
        if prof: prof.mark()
        epi_v(tiles)
        if half == 0: k.e(f"s_branch {le}")
        if prof and half == 0: prof.n = n0
    k.label(le)
```

```python
from g import *
from sb import SB
from layout import *
from k_qkv import srd, f2u
import math

LOG2E = 1.4426950408889634
UB = 2048 * 576 * 2

UT_LDS = 36864
def gen_utrans(k, wg="s2", nw=4):
    lane = 2; t = 20
    k.c("---- u transposition ----")
    k.e(f"""
    s_load_dwordx2 s[4:5], s[0:1], 0
    s_load_dwordx2 s[6:7], s[0:1], 96
    v_lshrrev_b32 v1, 6, v0
    v_and_b32 v2, 63, v0
    s_lshr_b32 s21, {wg}, 2
    v_readfirstlane_b32 s19, v1
    s_and_b32 s22, {wg}, 3
    s_mul_i32 s24, s21, {128*1152}
    s_mul_i32 s25, s22, 288
    s_add_u32 s24, s24, s25
    s_mul_i32 s26, s19, {9*1024}
    """)
    k.e(f"""
    s_mul_i32 s27, s19, 576
    v_add_u32 v{t}, s27, v{lane}
    s_waitcnt lgkmcnt(0)
    """)
    srd(k, 8, 4, UB)
    srd(k, 12, 6, WS_END)
    k.e("s_mov_b32 s30, 3641")
    for i in range(9):
        k.e(f"""
        v_add_u32 v{t+1}, {64*i}, v{t}
        v_mul_lo_u32 v{t+2}, v{t+1}, s30
        v_lshrrev_b32 v{t+2}, 16, v{t+2}
        v_mul_u32_u24 v{t+3}, 18, v{t+2}
        v_sub_u32 v{t+3}, v{t+1}, v{t+3}
        v_mul_u32_u24 v{t+2}, 1152, v{t+2}
        v_lshl_add_u32 v{t+2}, v{t+3}, 4, v{t+2}
        s_add_u32 m0, s26, {i*1024}
        s_nop 0
        buffer_load_dwordx4 v{t+2}, s[8:11], s24 offen lds
        """)
    k.e(f"""
    v_mov_b32 v8, 0
    v_mov_b32 v9, 0
    v_mov_b32 v10, 0
    v_mov_b32 v11, 0
    s_mul_i32 s31, s22, {144*UPC}
    s_lshl_b32 s32, s21, 5
    s_add_u32 s31, s31, s32
    s_add_u32 s31, s31, {UP}
    v_and_b32 v{t+6}, 255, v0
    """)
    for i in range(5):
        k.e(f"""
        v_add_u32 v{t+1}, {256*i}, v{t+6}
        v_lshrrev_b32 v{t+2}, 3, v{t+1}
        v_mul_u32_u24 v{t+2}, {UPC}, v{t+2}
        v_bfe_u32 v{t+3}, v{t+1}, 1, 2
        v_mul_u32_u24 v{t+3}, 1536, v{t+3}
        v_add_u32 v{t+2}, v{t+2}, v{t+3}
        v_and_b32 v{t+3}, 1, v{t+1}
        v_lshl_add_u32 v{t+2}, v{t+3}, 4, v{t+2}
        """)
        if i == 4:
            k.e(f"""
            v_cmp_gt_u32 vcc, 1152, v{t+1}
            v_mov_b32 v{t+3}, -1
            s_nop 0
            v_cndmask_b32 v{t+2}, v{t+3}, v{t+2}, vcc
            s_mov_b32 s33, 0
            v_cmp_gt_u32 vcc, 1152, v{t+1}
            s_and_saveexec_b64 s[34:35], vcc
            buffer_store_dwordx4 v[8:11], v{t+2}, s[12:15], s31 offen
            s_mov_b64 exec, s[34:35]
            """)
        else:
            k.e(f"buffer_store_dwordx4 v[8:11], v{t+2}, s[12:15], s31 offen")
    k.e(f"""
    v_lshrrev_b32 v{t+1}, 4, v{lane}
    v_bfe_u32 v{t+2}, v{lane}, 2, 2
    v_lshl_add_u32 v{t+2}, v{t+1}, 5, v{t+2}
    v_mul_u32_u24 v{t+2}, 288, v{t+2}
    v_and_b32 v{t+3}, 3, v{lane}
    v_lshl_add_u32 v{t+2}, v{t+3}, 3, v{t+2}
    v_and_b32 v{t+3}, 15, v{lane}
    v_mul_u32_u24 v{t+3}, {UPC}, v{t+3}
    v_lshl_add_u32 v{t+3}, v{t+1}, 4, v{t+3}
    s_mul_i32 s31, s22, {144*UPC}
    s_lshl_b32 s32, s21, 6
    s_add_u32 s31, s31, s32
    s_add_u32 s31, s31, {UP + 512}
    s_mul_i32 s32, s19, 1536
    s_add_u32 s31, s31, s32
    s_mul_i32 s33, s19, {8*288}
    v_add_u32 v{t+2}, s33, v{t+2}
    s_waitcnt vmcnt(5)
    s_barrier
    """)
    for dg in range(9):
        b = 12 + 4 * (dg & 1)
        k.e(f"""
        ds_read_b64_tr_b16 {vr(b,2)}, v{t+2} offset:{32*dg}
        ds_read_b64_tr_b16 {vr(b+2,2)}, v{t+2} offset:{32*dg + 4*288}
        s_waitcnt lgkmcnt(0)
        buffer_store_dwordx4 {vr(b,4)}, v{t+3}, s[12:15], s31 offen
        s_add_u32 s31, s31, {16*UPC}
        """)

KG_LDS_WAVE = 53 * 256
def gen_kgen(k, chan_sgpr, ldsbase_sgpr, barriers=0):
    lane = 2
    k.c("---- SSM kernel generation ----")
    ch = chan_sgpr; lb = ldsbase_sgpr
    k.e(f"""
    s_load_dwordx8 s[44:51], s[0:1], 8
    s_load_dwordx2 s[52:53], s[0:1], 40
    s_load_dwordx2 s[54:55], s[0:1], 96
    v_lshlrev_b32 v3, 1, v{lane}
    s_lshl_b32 s40, s{ch}, 8
    s_lshl_b32 s41, s{ch}, 1
    v_mov_b32 v4, s41
    s_waitcnt lgkmcnt(0)
    """)
    S = 60
    for i in range(4): srd(k, S + 4*i, 44 + 2*i, PB)
    srd(k, S + 16, 52, 1152)
    k.e(f"buffer_load_ushort v5, v4, s[{S+16}:{S+19}], 0 offen")
    for i in range(4):
        for ps in range(2):
            k.e(f"buffer_load_ushort v{8+2*i+ps}, v3, s[{S+4*i}:{S+4*i+3}], s40 offen offset:{128*ps}")
    srd(k, S + 16, 54, WS_END) if False else None
    AW = 16
    k.e("v_lshlrev_b32 v6, 2, v2")
    k.e(f"v_add_u32 v6, s{lb}, v6")
    for j in range(16):
        k.e(f"v_xor_b32 v{AW+j}, {16*j}, v6")
    k.e(f"""
    v_and_b32 v6, 31, v2
    v_lshrrev_b32 v7, 5, v2
    v_bfe_u32 v32, v6, 1, 4
    v_xor_b32 v32, v32, v7
    v_lshlrev_b32 v32, 4, v32
    v_lshl_add_u32 v32, v6, 8, v32
    v_add_u32 v32, s{lb}, v32
    """)
    RB = 32
    D = 112
    k.e("s_waitcnt vmcnt(0)")
    c_l2e = f2u(LOG2E); c_i2pi = f2u(1.0 / (2 * math.pi))
    k.e(f"""
    v_lshlrev_b32 v5, 16, v5
    v_mul_f32 v5, {c_l2e}, v5
    v_exp_f32 v5, v5
    s_nop 0
    v_cvt_pk_bf16_f32 v5, v5, v5
    v_lshlrev_b32 v5, 16, v5
    """)
    DT = 5
    def cmul(d, a, b):
        k.e(f"v_mul_f32 v36, v{a+1}, v{b+1}")
        k.e(f"v_mul_f32 v37, v{a+1}, v{b}")
        k.e(f"v_fma_f32 v38, v{a}, v{b+1}, v37")
        k.e(f"v_fma_f32 v{d}, v{a}, v{b}, -v36")
        k.e(f"v_mov_b32 v{d+1}, v38")
    def cmul2(d, a, b, t0, t1):
        k.e(f"v_mul_f32 v{t0}, v{a+1}, v{b+1}")
        k.e(f"v_mul_f32 v{t1}, v{a+1}, v{b}")
        k.e(f"v_fma_f32 v{d}, v{a}, v{b}, -v{t0}")
        k.e(f"v_fma_f32 v{d+1}, v{a}, v{b+1}, v{t1}")
    ZR, ZI = 40, 41
    def cexp(d, tt):
        k.e(f"""
        v_mul_f32 v36, {f2u(float(tt))}, v{ZR}
        v_mul_f32 v37, {f2u(float(tt))}, v{ZI}
        v_exp_f32 v36, v36
        v_fract_f32 v37, v37
        v_cos_f32 v38, v37
        v_sin_f32 v39, v37
        s_nop 0
        v_mul_f32 v{d}, v36, v38
        v_mul_f32 v{d+1}, v36, v39
        """)
    W1, W2, W4, W8, W256, W512, W768, W1024 = 42, 44, 46, 48, 50, 52, 54, 56
    CC, XA, XB_, EA, EB, TT = 58, 60, 62, 64, 66, 68
    PK = 72
    nbar = [0]
    pend = {True: None, False: None}
    def store_row(row, re, im, isA):
        r = row if isA else row - 21
        pk = (PK if isA else PK + 2) + (r & 1)
        k.e(f"v_cvt_pk_bf16_f32 v{pk}, v{re}, {'-' if isA else ''}v{im}")
        last = (r == 20) if isA else False
        if r & 1:
            k.e(f"ds_write2st64_b32 v{AW + ((r >> 1) & 15)}, v{pk-1}, v{pk} offset0:{row-1} offset1:{row}")
        elif last:
            k.e(f"ds_write_b32 v{AW + ((r >> 1) & 15)}, v{pk} offset:{row*256}")
    for ps in range(2):
        k.e(f"""
        v_lshlrev_b32 v36, 16, v{8+ps}
        v_mul_f32 v36, {c_l2e}, v36
        v_exp_f32 v36, v36
        v_lshlrev_b32 v37, 16, v{10+ps}
        v_lshlrev_b32 v{CC}, 16, v{12+ps}
        v_cvt_pk_bf16_f32 v36, v36, v36
        v_lshlrev_b32 v36, 16, v36
        v_mul_f32 v36, v36, v{DT}
        v_mul_f32 v37, v37, v{DT}
        v_mul_f32 v{ZR}, {f2u(-LOG2E)}, v36
        v_mul_f32 v{ZI}, {c_i2pi}, v37
        v_lshlrev_b32 v{CC+1}, 16, v{14+ps}
        v_mul_f32 v{CC}, v{CC}, v{DT}
        v_mul_f32 v{CC+1}, v{CC+1}, v{DT}
        v_add_f32 v{CC}, v{CC}, v{CC}
        v_add_f32 v{CC+1}, v{CC+1}, v{CC+1}
        """)
        cexp(W1, 1); cexp(W8, 8); cexp(W256, 256)
        cmul2(W2, W1, W1, 36, 37)
        cmul2(W4, W2, W2, 36, 37)
        cmul2(W512, W256, W256, 36, 37)
        cmul2(W768, W512, W256, 36, 37)
        cmul2(W1024, W512, W512, 36, 37)
        k.e(f"v_mov_b32 v{EA}, 1.0")
        k.e(f"v_mov_b32 v{EA+1}, 0")
        Bops = []
        cur, nx = EA, EB
        Bops.append(lambda cur=cur: store_row(21, cur, cur + 1, False))
        for b in range(1, 32):
            if b == 1:
                Bops.append(lambda: (k.e(f"v_mov_b32 v{EB}, v{W8}"), k.e(f"v_mov_b32 v{EB+1}, v{W8+1}"), store_row(22, EB, EB + 1, False)))
                cur, nx = EB, EA
            else:
                Bops.append(lambda cur=cur, nx=nx, b=b: (cmul2(nx, cur, W8, 76, 77), store_row(21 + b, nx, nx + 1, False)))
                cur, nx = nx, cur
        Aops = []
        Aops.append(lambda: store_row(0, CC, CC + 1, True))
        pa, pb = CC, XA
        seq = [XA, XB_]
        prev = CC
        for j in range(1, 8):
            dst = seq[j & 1]
            Aops.append(lambda dst=dst, prev=prev, j=j: (cmul2(dst, prev, W1, 78, 79), store_row(j, dst, dst + 1, True)))
            prev = dst
        Aops.append(lambda: (cmul2(XA, CC, W256, 78, 79), store_row(8, XA, XA + 1, True)))
        prev = XA
        for j in range(1, 4):
            dst = XB_ if prev == XA else XA
            Aops.append(lambda dst=dst, prev=prev, j=j: (cmul2(dst, prev, W2, 78, 79), store_row(8 + j, dst, dst + 1, True)))
            prev = dst
        Aops.append(lambda: (cmul2(XA, CC, W512, 78, 79), store_row(12, XA, XA + 1, True)))
        Aops.append(lambda: (cmul2(XB_, XA, W4, 78, 79), store_row(13, XB_, XB_ + 1, True)))
        Aops.append(lambda: (cmul2(XA, CC, W768, 78, 79), store_row(14, XA, XA + 1, True)))
        Aops.append(lambda: (cmul2(XB_, XA, W4, 78, 79), store_row(15, XB_, XB_ + 1, True)))
        Aops.append(lambda: (cmul2(XA, CC, W1024, 78, 79), store_row(16, XA, XA + 1, True)))
        Aops.append(lambda: (cmul2(XB_, XA, W256, 78, 79), store_row(17, XB_, XB_ + 1, True)))
        Aops.append(lambda: (cmul2(TT, XA, W512, 78, 79), store_row(18, TT, TT + 1, True)))
        Aops.append(lambda: (cmul2(XB_, XA, W768, 78, 79), store_row(19, XB_, XB_ + 1, True)))
        Aops.append(lambda: (cmul2(TT, XA, W1024, 78, 79), store_row(20, TT, TT + 1, True)))
        ia = 0
        for ib, bo in enumerate(Bops):
            bo()
            if ia < len(Aops) and (ib * len(Aops)) // len(Bops) >= ia:
                Aops[ia](); ia += 1
        while ia < len(Aops):
            Aops[ia](); ia += 1
        k.e("s_waitcnt lgkmcnt(0)")
        FA, FB = 80, 96
        for ks in range(8):
            fa = FA + 4 * (ks & 3); fb = FB + 4 * (ks & 3)
            k.e(f"v_xor_b32 v36, {32*ks}, v{RB}")
            k.e(f"ds_read_b128 {vr(fa,4)}, v36")
            k.e(f"ds_read_b128 {vr(fb,4)}, v36 offset:{21*256}")
            if ks % 4 == 3:
                k.e("s_waitcnt lgkmcnt(0)")
                for q in range(ks - 3, ks + 1):
                    c = "0" if (ps == 0 and q == 0) else vr(D, 16)
                    k.e(f"v_mfma_f32_32x32x16_bf16 {vr(D,16)}, {vr(FA+4*(q&3),4)}, {vr(FB+4*(q&3),4)}, {c}")
    k.e(f"""
    v_and_b32 v6, 31, v2
    v_lshrrev_b32 v7, 5, v2
    v_lshlrev_b32 v40, 4, v6
    v_lshl_add_u32 v40, v7, 3, v40
    v_add_u32 v40, s{lb}, v40
    v_lshlrev_b32 v41, 3, v6
    v_add_u32 v41, 512, v41
    v_lshlrev_b32 v42, 2, v6
    v_add_u32 v42, 768, v42
    v_cmp_eq_u32 vcc, 1, v7
    v_mov_b32 v44, 4
    v_mov_b32 v45, 128
    v_cndmask_b32 v41, v41, v42, vcc
    v_cndmask_b32 v44, v44, v45, vcc
    v_add_u32 v41, s{lb}, v41
    v_add_u32 v42, v41, v44
    v_lshlrev_b32 v43, 1, v6
    v_add_u32 v43, 1024, v43
    v_mov_b32 v45, 1400
    v_mov_b32 v46, 1280
    v_cmp_eq_u32 s[56:57], 0, v6
    s_nop 1
    v_cndmask_b32 v45, v45, v46, s[56:57]
    v_cndmask_b32 v43, v43, v45, vcc
    v_add_u32 v43, s{lb}, v43
    """)
    k.nop(8)
    for j in range(6):
        k.e(f"v_cvt_pk_bf16_f32 v{48+j}, v{D+2*j}, v{D+2*j+1}")
    k.e("""
    ds_write_b16 v40, v48
    ds_write_b16_d16_hi v40, v48 offset:2
    ds_write_b16 v40, v49 offset:4
    ds_write_b16_d16_hi v40, v49 offset:6
    ds_write_b16 v41, v50
    ds_write_b16_d16_hi v41, v50 offset:2
    ds_write_b16 v42, v51
    ds_write_b16_d16_hi v42, v51 offset:2
    ds_write_b16 v43, v52
    ds_write_b16_d16_hi v43, v52 offset:64
    ds_write_b16 v43, v53 offset:128
    ds_write_b16_d16_hi v43, v53 offset:192
    """)
    E = 60
    k.e(f"""
    v_lshlrev_b32 v6, 5, v2
    v_sub_u32 v6, 2047, v6
    v_add_u32 v40, -1, v6
    v_lshl_or_b32 v40, v40, 16, v6
    v_mov_b32 v41, 0
    v_mov_b32 v42, 0
    v_mov_b32 v43, 0
    v_cmp_gt_u32 vcc, 56, v2
    v_cmp_gt_u32 s[56:57], 48, v2
    v_cmp_gt_u32 s[58:59], 32, v2
    v_mov_b32 v44, 1
    v_mov_b32 v45, 2
    v_mov_b32 v46, 3
    v_cndmask_b32 v41, v41, v44, vcc
    v_cndmask_b32 v41, v41, v45, s[56:57]
    v_cndmask_b32 v41, v41, v46, s[58:59]
    v_mov_b32 v44, 128
    v_mov_b32 v45, 256
    v_mov_b32 v46, 384
    v_cndmask_b32 v42, v42, v44, vcc
    v_cndmask_b32 v42, v42, v45, s[56:57]
    v_cndmask_b32 v42, v42, v46, s[58:59]
    v_lshlrev_b32 v43, v41, v44
    v_lshrrev_b32 v43, 8, v43
    v_add_u32 v43, -1, v43
    v_max_i32 v43, 0, v43
    v_min_u32 v44, 1, v41
    v_lshl_or_b32 v41, v41, 16, v41
    v_lshl_or_b32 v43, v43, 16, v43
    v_lshl_or_b32 v44, v44, 16, v44
    s_lshr_b32 s58, s{lb}, 1
    v_add_u32 v42, s58, v42
    v_lshl_or_b32 v42, v42, 16, v42
    v_add_u32 v40, v40, v43
    s_waitcnt lgkmcnt(0)
    """)
    for jj in range(16):
        a_ = 80 + 4 * (jj & 3)
        k.e(f"""
        v_add_u32 v{a_}, {(-0x20002*jj) & 0xffffffff}, v40
        v_sub_u32 v{a_+1}, v{a_}, v43
        v_pk_lshrrev_b16 v{a_+1}, v41, v{a_+1}
        v_and_b32 v{a_+1}, v44, v{a_+1}
        v_add_u32 v{a_}, v{a_}, v{a_+1}
        v_pk_lshrrev_b16 v{a_}, v41, v{a_}
        v_add_u32 v{a_}, v{a_}, v42
        v_lshlrev_b32 v{a_+1}, 1, v{a_}
        v_and_b32 v{a_+1}, 0x1fffe, v{a_+1}
        v_lshrrev_b32 v{a_}, 15, v{a_}
        v_and_b32 v{a_}, 0x1fffe, v{a_}
        ds_read_u16 v{E+jj}, v{a_+1}
        ds_read_u16_d16_hi v{96+jj}, v{a_}
        """)
        if jj % 4 == 3: k.e("s_waitcnt lgkmcnt(4)")
    k.e("s_waitcnt lgkmcnt(0)")
    for jj in range(16):
        k.e(f"v_and_b32 v{96+jj}, 0xffff0000, v{96+jj}")
        k.e(f"v_or_b32 v{E+jj}, v{E+jj}, v{96+jj}")
    k.e("s_nop 1")
    k.e(f"v_mov_b32_dpp v{E+16}, v{E} wave_shl:1 row_mask:0xf bank_mask:0xf bound_ctrl:0")
    OO = 96
    for jj in range(16):
        k.e(f"v_alignbit_b32 v{OO+jj}, v{E+jj+1}, v{E+jj}, 16")
    srd(k, S, 54, WS_END)
    k.e(f"""
    s_mul_i32 s40, s{ch}, {KRC}
    s_add_u32 s40, s40, {KR}
    v_lshlrev_b32 v6, 6, v2
    v_lshlrev_b32 v7, 4, v2
    v_mov_b32 v8, 0
    v_mov_b32 v9, 0
    v_mov_b32 v10, 0
    v_mov_b32 v11, 0
    """)
    for i in range(4):
        k.e(f"buffer_store_dwordx4 {vr(E+4*i,4)}, v6, s[{S}:{S+3}], s40 offen offset:{16*i}")
    k.e(f"s_add_u32 s41, s40, {KRH}")
    for i in range(4):
        k.e(f"buffer_store_dwordx4 {vr(OO+4*i,4)}, v6, s[{S}:{S+3}], s41 offen offset:{16*i}")
    k.e(f"""
    s_add_u32 s40, s40, 4096
    s_add_u32 s41, s41, 4096
    s_mov_b64 exec, 0xff
    buffer_store_dwordx4 v[8:11], v7, s[{S}:{S+3}], s40 offen
    buffer_store_dwordx4 v[8:11], v7, s[{S}:{S+3}], s41 offen
    s_mov_b64 exec, -1
    """)

PD = 4
def gen_conv(k, ch_sgpr, prof=None, var=()):
    lane = 2
    k.c("---- SSM convolution ----")
    k.e(f"""
    s_load_dwordx2 s[54:55], s[0:1], 96
    v_and_b32 v3, 31, v{lane}
    v_lshrrev_b32 v4, 5, v{lane}
    v_and_b32 v5, 19, v3
    v_bfe_u32 v6, v3, 2, 1
    v_lshl_or_b32 v5, v6, 3, v5
    v_bfe_u32 v6, v3, 3, 1
    v_lshl_or_b32 v5, v6, 2, v5
    v_and_b32 v6, 1, v5
    v_xor_b32 v6, 1, v6
    v_sub_u32 v7, 2047, v5
    v_sub_u32 v7, v7, v6
    v_lshl_add_u32 v7, v4, 3, v7
    v_lshlrev_b32 v7, 1, v7
    v_mul_u32_u24 v6, {KRH}, v6
    v_add_u32 v7, v7, v6
    v_add_u32 v8, {KR - 4032}, v7
    v_mul_u32_u24 v6, 1536, v4
    v_lshl_add_u32 v6, v3, 4, v6
    v_add_u32 v9, {UP + 512 - 1008}, v6
    v_lshlrev_b32 v6, 6, v3
    v_lshl_add_u32 v10, v4, 4, v6
    s_mul_i32 s44, s{ch_sgpr}, {KRC}
    s_mul_i32 s45, s{ch_sgpr}, {UPC}
    v_add_u32 v11, s44, v8
    v_add_u32 v12, s45, v9
    v_add_u32 v13, 512, v12
    s_mov_b32 s47, 4032
    s_mov_b32 s48, 1008
    s_waitcnt lgkmcnt(0)
    """)
    srd(k, 60, 54, WS_END)
    ACC = 16; FR = 48
    def loads(slot, both):
        b = FR + 24 * slot
        k.e(f"buffer_load_dwordx4 {vr(b,4)}, v11, s[60:63], s47 offen")
        k.e(f"buffer_load_dwordx4 {vr(b+8,4)}, v13, s[60:63], s48 offen")
        if both: k.e(f"buffer_load_dwordx4 {vr(b+16,4)}, v12, s[60:63], s48 offen")
        k.e(f"buffer_load_dwordx4 {vr(b+4,4)}, v11, s[60:63], s47 offen offset:32")
        k.e(f"buffer_load_dwordx4 {vr(b+12,4)}, v13, s[60:63], s48 offen offset:3072")
        if both: k.e(f"buffer_load_dwordx4 {vr(b+20,4)}, v12, s[60:63], s48 offen offset:3072")
        k.e("s_sub_u32 s47, s47, 64")
        k.e("s_max_i32 s47, s47, 0")
        k.e("s_sub_u32 s48, s48, 16")
        k.e("s_max_i32 s48, s48, 0")
    for i in range(32): k.e(f"v_mov_b32 v{ACC+i}, 0")
    for slot in range(PD): loads(slot, True)
    A0, A1 = vr(ACC, 16), vr(ACC + 16, 16)
    k.e("s_mov_b32 s49, 0")
    l1 = k.newlabel("c1")
    k.label(l1)
    for slot in range(PD):
        b = FR + 24 * slot
        n = 6 * (PD - 1)
        k.e(f"s_waitcnt vmcnt({n + 3})")
        k.e(f"v_mfma_f32_32x32x16_bf16 {A1}, {vr(b,4)}, {vr(b+8,4)}, {A1}")
        if "csleep" in var: k.e("s_sleep 1")
        k.e(f"v_mfma_f32_32x32x16_bf16 {A0}, {vr(b,4)}, {vr(b+16,4)}, {A0}")
        if "csleep" in var: k.e("s_sleep 1")
        k.e(f"s_waitcnt vmcnt({n})")
        k.e(f"v_mfma_f32_32x32x16_bf16 {A1}, {vr(b+4,4)}, {vr(b+12,4)}, {A1}")
        if "csleep" in var: k.e("s_sleep 1")
        k.e(f"v_mfma_f32_32x32x16_bf16 {A0}, {vr(b+4,4)}, {vr(b+20,4)}, {A0}")
        if "csleep" in var: k.e("s_sleep 1")
        loads(slot, True)
    k.e(f"""
    s_add_u32 s49, s49, {PD}
    s_cmp_lt_u32 s49, 32
    s_cbranch_scc1 {l1}
    s_waitcnt vmcnt(0)
    """)
    l2 = k.newlabel("c2")
    k.label(l2)
    for slot in range(PD):
        b = FR + 24 * slot
        n = 4 * (PD - 1)
        k.e(f"s_waitcnt vmcnt({n + 2})")
        k.e(f"v_mfma_f32_32x32x16_bf16 {A1}, {vr(b,4)}, {vr(b+8,4)}, {A1}")
        k.e(f"s_waitcnt vmcnt({n})")
        k.e(f"v_mfma_f32_32x32x16_bf16 {A1}, {vr(b+4,4)}, {vr(b+12,4)}, {A1}")
        loads(slot, False)
    k.e(f"""
    s_add_u32 s49, s49, {PD}
    s_cmp_lt_u32 s49, 64
    s_cbranch_scc1 {l2}
    s_mul_i32 s44, s{ch_sgpr}, 4096
    s_add_u32 s44, s44, {YT}
    s_add_u32 s45, s44, 2048
    s_waitcnt vmcnt(0)
    """)
    k.nop(8)
    for nt in range(2):
        for g in range(2):
            r = FR + 8 * nt + 4 * g
            for i in range(4):
                k.e(f"v_cvt_pk_bf16_f32 v{r+i}, v{ACC+16*nt+8*g+2*i}, v{ACC+16*nt+8*g+2*i+1}")
            k.e(f"buffer_store_dwordx4 {vr(r,4)}, v10, s[60:63], s{44+nt} offen offset:{32*g}")

FIN_LDS = 2 * 192 * 128
def gen_fin(k, wg="s2"):
    lane = 2; t = 32
    k.c("---- SSM finalisation ----")
    k.e(f"""
    s_load_dwordx2 s[4:5], s[0:1], 0
    s_load_dwordx2 s[6:7], s[0:1], 48
    s_load_dwordx2 s[26:27], s[0:1], 80
    s_load_dwordx2 s[28:29], s[0:1], 96
    v_lshrrev_b32 v1, 6, v0
    v_and_b32 v2, 63, v0
    s_mul_i32 s21, {wg}, 21846
    v_readfirstlane_b32 s38, v1
    s_lshr_b32 s21, s21, 16
    s_mul_i32 s22, s21, 3
    s_sub_u32 s22, {wg}, s22
    """)
    k.e(f"""
    s_mul_i32 s24, s22, {192*4096}
    s_lshl_b32 s25, s21, 7
    s_add_u32 s24, s24, s25
    s_mul_i32 s25, s38, {48*4096}
    s_add_u32 s24, s24, s25
    s_add_u32 s24, s24, {YT}
    s_mul_i32 s30, s38, 6144
    v_lshrrev_b32 v{t}, 3, v{lane}
    v_bfe_u32 v{t+1}, v{lane}, 4, 1
    v_lshlrev_b32 v{t+1}, 1, v{t+1}
    v_and_b32 v{t+2}, 7, v{lane}
    v_xor_b32 v{t+2}, v{t+2}, v{t+1}
    v_lshlrev_b32 v{t}, 12, v{t}
    v_lshl_add_u32 v{t+3}, v{t+2}, 4, v{t}
    v_xor_b32 v{t+2}, 4, v{t+2}
    v_lshl_add_u32 v{t+4}, v{t+2}, 4, v{t}
    s_waitcnt lgkmcnt(0)
    """)
    srd(k, 8, 28, WS_END)
    srd(k, 12, 4, UB)
    srd(k, 16, 26, OUTB)
    srd(k, 32, 6, 1152)
    for i in range(6):
        k.e(f"""
        s_add_u32 m0, s30, {i*1024}
        s_add_u32 s31, s24, {i*8*4096}
        buffer_load_dwordx4 v{t+3 if i % 2 == 0 else t+4}, s[8:11], s31 offen lds
        """)
    k.e(f"""
    s_mul_i32 s39, s22, {192*2048}
    s_lshl_b32 s25, s21, 7
    s_add_u32 s39, s39, s25
    s_mul_i32 s25, s38, {48*2048}
    s_add_u32 s39, s39, s25
    s_add_u32 s39, s39, {YT2 - 2048}
    s_cmp_ge_u32 s21, 16
    s_cselect_b32 s39, s39, 0x40000000
    v_lshrrev_b32 v{t+9}, 3, v{lane}
    v_lshlrev_b32 v{t+9}, 11, v{t+9}
    v_sub_u32 v{t+10}, v{t+4}, v{t}
    v_sub_u32 v{t+11}, v{t+3}, v{t}
    v_add_u32 v{t+10}, v{t+10}, v{t+9}
    v_add_u32 v{t+11}, v{t+11}, v{t+9}
    """)
    for i in range(6):
        k.e(f"""
        s_add_u32 m0, s30, {24576 + i*1024}
        s_add_u32 s31, s39, {i*8*2048}
        buffer_load_dwordx4 v{t+11 if i % 2 == 0 else t+10}, s[8:11], s31 offen lds
        """)
    k.e(f"""
    v_lshrrev_b32 v{t}, 4, v{lane}
    v_bfe_u32 v{t+1}, v{lane}, 2, 2
    v_lshl_add_u32 v{t+2}, v{t}, 3, v{t+1}
    v_lshlrev_b32 v{t+2}, 7, v{t+2}
    v_bfe_u32 v{t+5}, v{lane}, 1, 1
    s_lshl_b32 s31, s38, 1
    v_add_u32 v{t+5}, s31, v{t+5}
    v_bfe_u32 v{t+6}, v{lane}, 3, 1
    v_lshlrev_b32 v{t+6}, 1, v{t+6}
    v_and_b32 v{t+7}, 1, v{t}
    v_lshl_or_b32 v{t+6}, v{t+7}, 2, v{t+6}
    v_xor_b32 v{t+5}, v{t+5}, v{t+6}
    v_lshl_add_u32 v{t+2}, v{t+5}, 4, v{t+2}
    v_and_b32 v{t+5}, 1, v{lane}
    v_lshl_add_u32 v{t+2}, v{t+5}, 3, v{t+2}
    v_and_b32 v{t+5}, 15, v{lane}
    s_lshl_b32 s31, s21, 6
    s_lshl_b32 s36, s38, 4
    s_add_u32 s31, s31, s36
    v_add_u32 v{t+5}, s31, v{t+5}
    v_mul_u32_u24 v{t+6}, 1152, v{t+5}
    v_lshl_add_u32 v{t+6}, v{t}, 4, v{t+6}
    v_mul_u32_u24 v{t+7}, 2304, v{t+5}
    v_lshl_add_u32 v{t+7}, v{t}, 4, v{t+7}
    v_lshlrev_b32 v{t+8}, 4, v{t}
    s_mul_i32 s36, s22, 384
    """)
    U = 48; DD = 72
    for oq in range(6):
        k.e(f"buffer_load_dwordx4 {vr(U+4*oq,4)}, v{t+6}, s[12:15], s36 offen offset:{64*oq}")
        k.e(f"buffer_load_dwordx4 {vr(DD+4*oq,4)}, v{t+8}, s[32:35], s36 offen offset:{64*oq}")
    k.e("s_waitcnt vmcnt(12)")
    k.e("s_barrier")
    k.e("s_mov_b32 s37, 0xffff0000")
    for oq in range(6):
        Y = 8
        k.e(f"""
        ds_read_b64_tr_b16 {vr(Y,2)}, v{t+2} offset:{oq*4096}
        ds_read_b64_tr_b16 {vr(Y+2,2)}, v{t+2} offset:{oq*4096 + 512}
        s_waitcnt vmcnt({2*(5-oq) + min(oq,1)*0}) lgkmcnt(0)
        """) if False else None
        k.e(f"""
        ds_read_b64_tr_b16 {vr(Y,2)}, v{t+2} offset:{oq*4096}
        ds_read_b64_tr_b16 {vr(Y+2,2)}, v{t+2} offset:{oq*4096 + 512}
        ds_read_b64_tr_b16 {vr(20,2)}, v{t+2} offset:{24576 + oq*4096}
        ds_read_b64_tr_b16 {vr(22,2)}, v{t+2} offset:{24576 + oq*4096 + 512}
        s_waitcnt vmcnt({2*(5-oq) + oq})
        """)
        for i in range(4):
            u = U + 4*oq + i; d = DD + 4*oq + i
            k.e(f"""
            v_lshlrev_b32 v12, 16, v{u}
            v_and_b32 v13, s37, v{u}
            v_lshlrev_b32 v14, 16, v{d}
            v_and_b32 v15, s37, v{d}
            v_mul_f32 v12, v12, v14
            v_mul_f32 v13, v13, v15
            v_cvt_pk_bf16_f32 v{16+i}, v12, v13
            """)
        k.e("s_waitcnt lgkmcnt(0)")
        for i in range(4):
            k.e(f"""
            v_lshlrev_b32 v12, 16, v{Y+i}
            v_and_b32 v13, s37, v{Y+i}
            v_lshlrev_b32 v14, 16, v{20+i}
            v_and_b32 v15, s37, v{20+i}
            v_add_f32 v12, v12, v14
            v_add_f32 v13, v13, v15
            v_cvt_pk_bf16_f32 v{Y+i}, v12, v13
            """)
        O_ = 24 + 4 * (oq & 1)
        for i in range(4):
            k.e(f"""
            v_lshlrev_b32 v12, 16, v{16+i}
            v_and_b32 v13, s37, v{16+i}
            v_lshlrev_b32 v14, 16, v{Y+i}
            v_and_b32 v15, s37, v{Y+i}
            v_add_f32 v12, v12, v14
            v_add_f32 v13, v13, v15
            v_cvt_pk_bf16_f32 v{O_+i}, v12, v13
            """)
        k.e(f"buffer_store_dwordx4 {vr(O_,4)}, v{t+7}, s[16:19], s36 offen offset:{64*oq}")


def gen_kgen_with_barriers(k, chan_sgpr, ldsbase_sgpr, nbar):
    tmp = K(k.name + "_kg")
    tmp.uid = k.uid + 1000
    gen_kgen(tmp, chan_sgpr, ldsbase_sgpr)
    k.uid = tmp.uid
    lines = tmp.lines
    idx = [i for i, l in enumerate(lines) if l.strip() and not l.strip().startswith(";") and not l.strip().endswith(":")]
    n = len(idx)
    first = next(i for i in idx if "s_waitcnt vmcnt(0)" in lines[i])
    rest = [i for i in idx if i > first]
    pos = [first] + [rest[int(len(rest) * 0.7 * j / (nbar - 1))] for j in range(1, nbar)]
    out = []
    ps = set(pos)
    assert len(ps) == nbar
    for i, l in enumerate(lines):
        out.append(l)
        if i in ps: out.append("    s_barrier")
    k.lines += out


UTW_LDS = 4096
def gen_utrans_wave(k, task_sgpr, lds_sgpr):
    T = task_sgpr; LB = lds_sgpr
    k.c("---- u transposition (per wave) ----")
    k.e(f"""
    s_load_dwordx2 s[4:5], s[0:1], 0
    s_load_dwordx2 s[6:7], s[0:1], 96
    s_mul_i32 s22, s{T}, 1821
    s_lshr_b32 s22, s22, 16
    s_mul_i32 s23, s22, 36
    s_sub_u32 s23, s{T}, s23
    s_mul_i32 s24, s22, {128*1152}
    s_lshl_b32 s25, s23, 5
    s_add_u32 s24, s24, s25
    v_lshrrev_b32 v3, 1, v2
    v_mul_u32_u24 v3, 1152, v3
    v_and_b32 v4, 1, v2
    v_lshl_add_u32 v3, v4, 4, v3
    s_waitcnt lgkmcnt(0)
    """)
    srd(k, 8, 4, UB)
    srd(k, 12, 6, WS_END)
    for i in range(4):
        k.e(f"""
        s_add_u32 m0, s{LB}, {i*1024}
        s_add_u32 s26, s24, {i*32*1152}
        buffer_load_dwordx4 v3, s[8:11], s26 offen lds
        """)
    k.e(f"""
    v_mov_b32 v8, 0
    v_mov_b32 v9, 0
    v_mov_b32 v10, 0
    v_mov_b32 v11, 0
    v_and_b32 v5, 15, v2
    v_mul_u32_u24 v5, {UPC}, v5
    v_lshrrev_b32 v6, 4, v2
    v_mul_u32_u24 v7, 1536, v6
    v_add_u32 v7, v7, v5
    s_mul_i32 s27, s23, {16*UPC}
    s_add_u32 s27, s27, {UP}
    s_lshl_b32 s28, s22, 5
    s_add_u32 s28, s28, s27
    buffer_store_dwordx4 v[8:11], v7, s[12:15], s28 offen
    buffer_store_dwordx4 v[8:11], v7, s[12:15], s28 offen offset:16
    v_lshl_add_u32 v5, v6, 4, v5
    s_lshl_b32 s28, s22, 6
    s_add_u32 s28, s28, s27
    s_add_u32 s28, s28, 512
    v_bfe_u32 v12, v2, 2, 2
    v_lshl_add_u32 v12, v6, 5, v12
    v_lshlrev_b32 v12, 5, v12
    v_and_b32 v13, 3, v2
    v_lshl_add_u32 v12, v13, 3, v12
    v_add_u32 v12, s{LB}, v12
    s_waitcnt vmcnt(2)
    """)
    for p in range(4):
        b = 16 + 4 * p
        k.e(f"ds_read_b64_tr_b16 {vr(b,2)}, v12 offset:{p*8*32}")
        k.e(f"ds_read_b64_tr_b16 {vr(b+2,2)}, v12 offset:{p*8*32 + 4*32}")
    for p in range(4):
        b = 16 + 4 * p
        k.e(f"s_waitcnt lgkmcnt({6 - 2*p})")
        k.e(f"buffer_store_dwordx4 {vr(b,4)}, v5, s[12:15], s28 offen offset:{p*1536 if p*1536 < 4096 else 0}" if p < 3 else f"s_add_u32 s28, s28, 4608\nbuffer_store_dwordx4 {vr(b,4)}, v5, s[12:15], s28 offen")


UTA_LDS = 64 * 288
def gen_utrans_aux(k, tb64_sgpr, db_sgpr, lds_sgpr):
    TB = tb64_sgpr; DB = db_sgpr; LB = lds_sgpr
    k.c("---- u transposition (aux wave) ----")
    k.e(f"""
    s_load_dwordx2 s[4:5], s[0:1], 0
    s_load_dwordx2 s[6:7], s[0:1], 96
    s_mul_i32 s24, s{TB}, {64*1152}
    s_mul_i32 s25, s{DB}, 288
    s_add_u32 s24, s24, s25
    s_mov_b32 s30, 3641
    s_waitcnt lgkmcnt(0)
    """)
    srd(k, 8, 4, UB)
    srd(k, 12, 6, WS_END)
    for i in range(18):
        k.e(f"""
        v_add_u32 v4, {64*i}, v2
        v_mul_lo_u32 v5, v4, s30
        v_lshrrev_b32 v5, 16, v5
        v_mul_u32_u24 v6, 18, v5
        v_sub_u32 v6, v4, v6
        v_mul_u32_u24 v5, 1152, v5
        v_lshl_add_u32 v5, v6, 4, v5
        s_add_u32 m0, s{LB}, {i*1024}
        s_nop 0
        buffer_load_dwordx4 v5, s[8:11], s24 offen lds
        """)
    k.e(f"""
    v_mov_b32 v8, 0
    v_mov_b32 v9, 0
    v_mov_b32 v10, 0
    v_mov_b32 v11, 0
    v_and_b32 v4, 15, v2
    v_mul_u32_u24 v4, {UPC}, v4
    v_lshrrev_b32 v5, 4, v2
    v_mul_u32_u24 v6, 1536, v5
    v_add_u32 v6, v6, v4
    s_mul_i32 s27, s{DB}, {144*UPC}
    s_add_u32 s27, s27, {UP}
    s_lshl_b32 s28, s{TB}, 4
    s_add_u32 s28, s28, s27
    """)
    for dg in range(9):
        k.e(f"buffer_store_dwordx4 v[8:11], v6, s[12:15], s28 offen")
        k.e(f"s_add_u32 s28, s28, {16*UPC}")
    k.e(f"""
    v_and_b32 v7, 1, v5
    v_lshrrev_b32 v12, 1, v5
    v_lshlrev_b32 v13, 5, v7
    v_lshl_add_u32 v13, v12, 3, v13
    v_bfe_u32 v14, v2, 2, 2
    v_add_u32 v13, v13, v14
    v_mul_u32_u24 v13, 288, v13
    v_and_b32 v14, 3, v2
    v_lshl_add_u32 v13, v14, 3, v13
    v_add_u32 v13, s{LB}, v13
    v_mul_u32_u24 v12, 1536, v12
    v_lshl_add_u32 v12, v7, 4, v12
    v_add_u32 v12, v12, v4
    s_lshl_b32 s28, s{TB}, 5
    s_add_u32 s28, s28, s27
    s_add_u32 s28, s28, 512
    s_waitcnt vmcnt(9)
    """)
    for dg in range(9):
        for pp in range(2):
            b = 16 + 4 * ((2 * dg + pp) & 3)
            k.e(f"ds_read_b64_tr_b16 {vr(b,2)}, v13 offset:{32*dg + pp*16*288}")
            k.e(f"ds_read_b64_tr_b16 {vr(b+2,2)}, v13 offset:{32*dg + pp*16*288 + 4*288}")
            k.e("s_waitcnt lgkmcnt(0)")
            k.e(f"buffer_store_dwordx4 {vr(b,4)}, v12, s[12:15], s28 offen offset:{pp*3072}")
        k.e(f"s_add_u32 s28, s28, {16*UPC}")
```

```python
CH = 19456
HB = 8 * CH
BLOB = 0
QM = 0x500000
Q2 = 0x700000
OA = 0x800000
UP = 0xB00000
UPC = 6144
KR = 0xF00000
KRC = 8448
KRH = 4224
YT = 0x1400000
YT2 = 0x1700000
WS_END = 0x1900000
XB = 2048 * 576 * 2
WB = 576 * 1728 * 2
WOB = 576 * 576 * 2
OUTB = 2048 * 1152 * 2
PB = 576 * 128 * 2
QSCALE = 1.4426950408889634 / (18 ** 0.5)
VKS = 640
VH = 320
```

```python
import sys
from g import *
from build import assemble
import k_qkv, k_attn, k_oproj
STAMPS = "stamps" in sys.argv
PROFON = "prof" in sys.argv
var = [a[2:] for a in sys.argv if a.startswith('v=')]
kernels = []; launches = []
def make(name, idx, nwg, block, lds, nv, body):
    k = K(name)
    if STAMPS: stamp_id(k, 8); stamp_begin(k)
    k.e(f"s_cmp_ge_u32 s2, {nwg}")
    k.e(f"s_cbranch_scc1 L_{name}_exit")
    PR = Prof(k, PROFON, idx)
    if PR.on:
        stamp_id(k, 8)
        k.e("s_memtime s[56:57]\ns_waitcnt lgkmcnt(0)\ns_mov_b32 s83, s56\ns_memrealtime s[56:57]\ns_waitcnt lgkmcnt(0)\ns_mov_b32 s55, s56")
    body(k, PR if PR.on else None)
    if PR.on:
        PR.mark(); k.e("s_mov_b32 s82, s83"); PR.n = 23; PR.dump()
    if STAMPS: stamp_end(k, idx)
    k.label(f"L_{name}_exit")
    k.e("s_endpgm")
    kernels.append((k, nv, 96)); launches.append((name, nwg, block, lds))

import k_ssm
K1_LDS = max(k_qkv.GEMM_LDS, 9 * k_ssm.KG_LDS_WAVE + 2 * k_ssm.UTA_LDS)
def k1_body(k, p):
    lut = k.newlabel("ut"); lkg = k.newlabel("kg"); lend = k.newlabel("k1end")
    k.e("""
    v_lshrrev_b32 v1, 6, v0
    v_and_b32 v2, 63, v0
    s_nop 0
    v_readfirstlane_b32 s49, v1
    s_cmp_ge_u32 s2, 192
    """)
    k.e(f"s_cbranch_scc1 {lkg}")
    k.e("s_cmp_ge_u32 s49, 8")
    k.e(f"s_cbranch_scc1 {lend}")
    k_qkv.gen_qkv(k, p)
    k.e(f"s_branch {lend}")
    k.label(lkg)
    k.e("s_cmp_ge_u32 s49, 9")
    k.e(f"s_cbranch_scc1 {lut}")
    k.e(f"""
    s_sub_u32 s20, s2, 192
    s_mul_i32 s20, s20, 9
    s_add_u32 s20, s20, s49
    s_mul_i32 s21, s49, {k_ssm.KG_LDS_WAVE}
    """)
    k_ssm.gen_kgen(k, 20, 21)
    k.e(f"s_branch {lend}")
    k.label(lut)
    k.e(f"""
    s_sub_u32 s40, s2, 192
    s_and_b32 s41, s40, 3
    s_lshr_b32 s40, s40, 2
    s_lshl_b32 s40, s40, 1
    s_sub_u32 s42, s49, 9
    s_add_u32 s40, s40, s42
    s_mul_i32 s42, s42, {k_ssm.UTA_LDS}
    s_add_u32 s42, s42, {9 * k_ssm.KG_LDS_WAVE}
    """)
    k_ssm.gen_utrans_aux(k, 40, 41, 42)
    k.label(lend)
def k3_body(k, p):
    lf = k.newlabel("fin"); lend = k.newlabel("k3end")
    k.e("s_cmp_ge_u32 s2, 144")
    k.e(f"s_cbranch_scc1 {lf}")
    k_oproj.gen_oproj(k, p)
    k.e(f"s_branch {lend}")
    k.label(lf)
    k.e("""
    v_lshrrev_b32 v1, 6, v0
    s_nop 0
    v_readfirstlane_b32 s49, v1
    s_nop 3
    s_cmp_ge_u32 s49, 4
    """)
    k.e(f"s_cbranch_scc1 {lend}")
    k.e("s_sub_u32 s50, s2, 144")
    k_ssm.gen_fin(k, wg="s50")
    k.label(lend)
make("k1_kernel", 0, 256, 704, K1_LDS, 128, k1_body)
make("k2_kernel", 1, 256, 768, k_attn.ATT_LDS, k_attn.NV_K2, lambda k, p: k_attn.gen_k2(k, p, var=var))
make("k3_kernel", 2, 240, 512, k_oproj.OP_LDS, 100, k3_body)
txt, nerr = assemble(kernels, launches)
open(sys.argv[1] if len(sys.argv) > 1 else "out.s", "w").write(txt)
print("lint errors:", nerr)
```

```python
from g import *
from sb import SB
from layout import *
from k_qkv import srd, f2u

QF, Q2A, Q2B = 4, 8, 10
KF, KX = 12, 16
V0, V1 = 20, 24
P = 28
SA, SBUF = 36, 52
O = 68
vK, vK2, vV = 84, 85, 86
T0 = 88
CA = 100
CR = 116
vA, vU, vY = 156, 157, 158
NV_K2 = 160
ATT_LDS = 163840

def koff(tt): return (tt >> 3) * CH + (tt & 7) * 1024
def kxoff(q): return (q >> 1) * CH + (q & 1) * 512
def voff(ks): return (ks >> 4) * CH + (ks & 15) * VKS

def gen_attn(k, prof=None, var=()):
    t = T0
    lane = 2
    conv = "noconv" not in var
    k.c("---- attention ----")
    k.e(f"""
    s_load_dwordx2 s[4:5], s[0:1], 96
    s_and_b32 s20, s2, 7
    s_lshr_b32 s21, s2, 3
    s_and_b32 s22, s21, 3
    s_lshl_b32 s20, s20, 2
    s_add_u32 s20, s20, s22
    s_lshr_b32 s21, s21, 2
    s_lshl_b32 s21, s21, 3
    s_add_u32 s21, s21, s19
    s_lshl_b32 s26, s20, 16
    s_lshl_b32 s27, s21, 10
    s_add_u32 s26, s26, s27
    s_add_u32 s26, s26, {QM}
    s_lshl_b32 s28, s20, 13
    s_lshl_b32 s27, s21, 7
    s_add_u32 s28, s28, s27
    s_add_u32 s28, s28, {Q2}
    v_lshlrev_b32 v{vK}, 4, v{lane}
    v_and_b32 v{t}, 31, v{lane}
    v_lshlrev_b32 v{t+1}, 2, v{t}
    v_mov_b32 v{t+2}, -1
    v_cmp_gt_u32 vcc, 32, v{lane}
    v_mov_b32 v{Q2A+1}, 0
    v_mov_b32 v{Q2B}, 0
    v_cndmask_b32 v{t+2}, v{t+2}, v{t+1}, vcc
    """)
    k.e("s_waitcnt lgkmcnt(0)")
    if prof: prof.mark()
    srd(k, 8, 4, WS_END)
    k.e(f"buffer_load_dwordx4 {vr(QF,4)}, v{vK}, s[8:11], s26 offen")
    k.e(f"buffer_load_dword v{Q2A}, v{t+2}, s[8:11], s28 offen")
    if conv:
        l6 = k.newlabel("u6"); lu = k.newlabel("ud"); l7 = k.newlabel("u7"); l8 = k.newlabel("u8")
        k.e(f"""
        s_cmp_ge_u32 s19, 6
        s_cbranch_scc1 {l6}
        s_mul_i32 s34, s19, 86
        s_lshr_b32 s34, s34, 8
        s_mul_i32 s35, s34, 3
        s_sub_u32 s35, s19, s35
        s_lshl_b32 s30, s2, 1
        s_add_u32 s30, s30, s34
        s_branch {lu}
        """)
        k.label(l6)
        k.e(f"""
        s_sub_u32 s34, s19, 6
        s_cmp_ge_u32 s2, 64
        s_cbranch_scc1 {l7}
        s_add_u32 s30, s2, 512
        s_add_u32 s35, s34, 1
        s_branch {lu}
        """)
        k.label(l7)
        k.e(f"""
        s_sub_u32 s30, s2, 64
        s_lshl_b32 s30, s30, 1
        s_add_u32 s30, s30, s34
        s_add_u32 s30, s30, 512
        s_mov_b32 s35, 0
        s_cmp_lt_u32 s2, 96
        s_cbranch_scc1 {lu}
        s_mov_b32 s30, 0
        s_mov_b32 s35, 3
        """)
        k.label(lu)
        k.e(f"""
        s_cmp_ge_u32 s35, 1
        s_cselect_b32 s31, 1, 0
        s_cmp_eq_u32 s35, 2
        s_cselect_b32 s32, 32, 0
        s_mul_i32 s36, s30, 4096
        s_lshl_b32 s37, s31, 11
        s_add_u32 s36, s36, s37
        s_add_u32 s36, s36, {YT}
        s_mul_i32 s37, s30, 2048
        s_add_u32 s37, s37, {YT2}
        s_cmp_eq_u32 s35, 2
        s_cselect_b32 s33, s37, s36
        s_cmp_eq_u32 s35, 3
        s_cselect_b32 s31, 0, s31
        v_and_b32 v{t+5}, 3, v{t}
        v_lshlrev_b32 v{t+5}, 1, v{t+5}
        v_bfe_u32 v{t+6}, v{t}, 2, 1
        v_or_b32 v{t+5}, v{t+5}, v{t+6}
        v_lshrrev_b32 v{t+6}, 3, v{t}
        v_lshl_or_b32 v{t+5}, v{t+6}, 3, v{t+5}
        v_and_b32 v{t+6}, 1, v{t+5}
        v_xor_b32 v{t+6}, 1, v{t+6}
        v_sub_u32 v{t+7}, 2047, v{t+5}
        v_sub_u32 v{t+7}, v{t+7}, v{t+6}
        v_lshrrev_b32 v{t+4}, 5, v{lane}
        v_lshl_add_u32 v{t+7}, v{t+4}, 3, v{t+7}
        v_lshlrev_b32 v{t+7}, 1, v{t+7}
        v_mul_u32_u24 v{t+6}, {KRH}, v{t+6}
        v_add_u32 v{t+7}, v{t+7}, v{t+6}
        s_mul_i32 s36, s30, {KRC}
        s_add_u32 s36, s36, {KR}
        s_sub_u32 s36, s36, 4288
        v_add_u32 v{vA}, s36, v{t+7}
        v_mul_u32_u24 v{t+6}, 1536, v{t+4}
        v_lshl_add_u32 v{t+6}, v{t}, 4, v{t+6}
        s_mul_i32 s36, s30, {UPC}
        s_lshl_b32 s37, s31, 9
        s_add_u32 s36, s36, s37
        s_add_u32 s36, s36, {UP + 512}
        s_sub_u32 s36, s36, 1072
        v_add_u32 v{vU}, s36, v{t+6}
        v_lshlrev_b32 v{t+6}, 6, v{t}
        v_lshl_add_u32 v{vY}, v{t+4}, 4, v{t+6}
        s_lshl_b32 s38, s32, 6
        s_sub_u32 s38, 4032, s38
        s_lshl_b32 s39, s32, 4
        s_sub_u32 s39, 1008, s39
        """)
    if conv:
        for i in range(56): k.e(f"v_mov_b32 v{CA+i}, 0")
    k.e(f"""
    v_lshrrev_b32 v{t+3}, 5, v{lane}
    v_mul_u32_u24 v{t+3}, {VH}, v{t+3}
    v_min_u32 v{t+5}, 19, v{t}
    v_lshl_add_u32 v{t+5}, v{t+5}, 4, v{t+3}
    v_add_u32 v{vV}, 9216, v{t+5}
    v_lshlrev_b32 v{vK2}, 4, v{t}
    v_add_u32 v{vK2}, 8192, v{vK2}
    """)
    for i in range(16): k.e(f"v_mov_b32 v{O+i}, 0")
    for i in range(4): k.e(f"v_mov_b32 v{P+4+i}, 0")
    for i in range(4): k.e(f"v_mov_b32 v{V1+i}, 0")
    k.e("s_waitcnt vmcnt(0)")
    k.e(f"v_mov_b32 v{Q2B+1}, v{Q2A}")
    if prof: prof.mark()
    k.e("s_barrier")
    if prof: prof.mark()
    k.e(f"""
    ds_read_b128 {vr(KF,4)}, v{vK}
    ds_read_b128 {vr(KX,4)}, v{vK2}
    s_waitcnt lgkmcnt(0)
    v_mfma_f32_32x32x16_bf16 {vr(SA,16)}, {vr(KF,4)}, {vr(QF,4)}, 0
    v_mfma_f32_32x32x8_bf16 {vr(SA,16)}, {vr(KX,2)}, {vr(Q2A,2)}, {vr(SA,16)}
    ds_read_b128 {vr(KF,4)}, v{vK} offset:1024
    ds_read_b128 {vr(V0,4)}, v{vV}
    s_mov_b32 s41, 0
    s_waitcnt lgkmcnt(0)
    s_nop 7
    """)
    if "noprio" not in var: k.e("s_setprio 3")
    PAT_PLAIN = "1 eeeecc p eeeecc 2 eeeecc P eeeecc"
    pats = {"a": "1 eeeec p ceeee X ccee 2 eeccee P eecc",
            "b": "1 eeeec p ceee X eccee 2 eecce P eeecc" ,
            "c": "1 eeeecc p eee X ecc 2 eeeecc P eeeecc",
            "d": "1 eeeec p ceeee 2 ccee X eeccee P eecc",
            "e": "1 eeeecc X eeeecc p ee 2 eecc P eeeecc"}
    PAT_CONV = pats[[x[3:] for x in var if x.startswith("pat")][0]] if any(x.startswith("pat") for x in var) else pats["a"]
    def cl(kk, r, j):
        dr = j >> 1; s_ = j & 1
        kk.e(f"buffer_load_dwordx4 {vr(r,4)}, v{vA}, s[8:11], s38 offen offset:{256 - 64*dr + 32*s_}")
        kk.e(f"buffer_load_dwordx4 {vr(r+4,4)}, v{vU}, s[8:11], s39 offen offset:{64 - 16*dr + 3072*s_}")
    PAT_CONV2 = "1 eeee p ccee X eecc 2 eeee X ccee P eecc"
    DBL = (2, 6)
    def body(kk, lg, cv_on, loopbody=False):
        for tin in range(8):
            cur = SA if tin % 2 == 0 else SBUF
            nxt = SBUF if tin % 2 == 0 else SA
            e = c = 0
            if tin == 0: xs = [0]
            if tin == 4 and loopbody and "noprio" not in var:
                lp = k.newlabel("pl")
                kk.e("s_cmp_eq_u32 s41, 7")
                kk.e(f"s_cbranch_scc0 {lp}")
                kk.e("s_setprio 0")
                kk.lines.append(lp + ":")
            pat = PAT_PLAIN if not cv_on else (PAT_CONV2 if tin in DBL else PAT_CONV)
            for tok in pat.replace(" ", ""):
                if tok == "e":
                    kk.e(f"v_exp_f32 v{cur+e}, v{cur+e}"); e += 1
                elif tok == "c":
                    assert e >= min(16, 2*c + 2)
                    kk.e(f"v_cvt_pk_bf16_f32 v{P+c}, v{cur+2*c}, v{cur+2*c+1}"); c += 1
                elif tok == "1":
                    lg.wait_for(["K"])
                    kk.e(f"v_mfma_f32_32x32x16_bf16 {vr(nxt,16)}, {vr(KF,4)}, {vr(QF,4)}, 0")
                    kk.e(f"ds_read_b128 {vr(KF,4)}, v{vK} offset:{koff(tin+2)}"); lg.issue("K")
                elif tok == "p":
                    assert c <= 4
                    lg.wait_for(["V1"])
                    kk.e(f"v_mfma_f32_32x32x16_bf16 {vr(O,16)}, {vr(V1,4)}, {vr(P+4,4)}, {vr(O,16)}")
                    kk.e(f"ds_read_b128 {vr(V1,4)}, v{vV} offset:{voff(2*tin+1)}"); lg.issue("V1")
                elif tok == "2":
                    t1 = tin + 1
                    lg.wait_for(["X"])
                    kx = KX + 2 * ((t1 & 3) >> 1)
                    q2 = Q2A if (t1 & 1) == 0 else Q2B
                    kk.e(f"v_mfma_f32_32x32x8_bf16 {vr(nxt,16)}, {vr(kx,2)}, {vr(q2,2)}, {vr(nxt,16)}")
                    if (t1 & 3) == 3:
                        kk.e(f"ds_read_b128 {vr(KX,4)}, v{vK2} offset:{kxoff((t1+1) >> 2)}"); lg.issue("X")
                elif tok == "P":
                    assert c >= 4
                    lg.wait_for(["V0"])
                    kk.e(f"v_mfma_f32_32x32x16_bf16 {vr(O,16)}, {vr(V0,4)}, {vr(P,4)}, {vr(O,16)}")
                    kk.e(f"ds_read_b128 {vr(V0,4)}, v{vV} offset:{voff(2*tin+2)}"); lg.issue("V0")
                elif tok == "X":
                    j = xs[0]; xs[0] += 1
                    r = CR + 8 * (j % 5)
                    kk.e("s_waitcnt vmcnt(8)")
                    if j == 9:
                        lx = k.newlabel("skipx")
                        kk.e("s_cmp_eq_u32 s41, 7")
                        kk.e(f"s_cbranch_scc1 {lx}")
                        kk.e(f"v_mfma_f32_32x32x16_bf16 {vr(CA,16)}, {vr(r,4)}, {vr(r+4,4)}, {vr(CA,16)}")
                        kk.lines.append(lx + ":")
                    else:
                        kk.e(f"v_mfma_f32_32x32x16_bf16 {vr(CA,16)}, {vr(r,4)}, {vr(r+4,4)}, {vr(CA,16)}")
                    cl(kk, r, j)
            assert e == 16 and c == 8
    def advance():
        k.e(f"""
        v_add_u32 v{vK}, {CH}, v{vK}
        v_add_u32 v{vK2}, {CH}, v{vK2}
        v_add_u32 v{vV}, {CH}, v{vV}
        """)
    tmp = K("tmp"); lg = SB(tmp, "lgkmcnt", 15)
    body(tmp, lg, False); state = list(lg.q)
    lg.k = k
    body(k, lg, False)
    assert lg.q == state
    advance()
    k.e("s_barrier")
    if prof: prof.mark()
    k.e("s_mov_b32 s41, 1")
    lloop = k.newlabel("loop")
    k.label(lloop)
    body(k, lg, conv, True)
    assert lg.q == state
    advance()
    lskip = k.newlabel("nobar")
    if conv:
        k.e("s_sub_u32 s38, s38, 320")
        k.e("s_sub_u32 s39, s39, 80")
    k.e(f"""
    s_add_u32 s41, s41, 1
    s_cmp_eq_u32 s41, 2
    s_cbranch_scc0 {lskip}
    s_barrier
    """)
    k.label(lskip)
    if prof:
        for cnt in range(2, 9):
            l2 = k.newlabel("pm")
            k.e(f"s_cmp_eq_u32 s41, {cnt}")
            k.e(f"s_cbranch_scc0 {l2}")
            prof.mark()
            k.label(l2)
    if "noprio" not in var:
        for (cnt, pr) in ((6, 2), (7, 1)):
            l2 = k.newlabel("pr")
            k.e(f"s_cmp_eq_u32 s41, {cnt}")
            k.e(f"s_cbranch_scc0 {l2}")
            k.e(f"s_setprio {pr}")
            k.label(l2)
    k.e("s_cmp_lt_u32 s41, 8")
    k.e(f"s_cbranch_scc1 {lloop}")
    k.e(f"""
    s_waitcnt lgkmcnt(0)
    v_mfma_f32_32x32x16_bf16 {vr(O,16)}, {vr(V1,4)}, {vr(P+4,4)}, {vr(O,16)}
    """)
    if prof: prof.mark()
    k.nop(12)
    lfin = k.newlabel("fin"); lfb = k.newlabel("fb")
    k.e(f"""
    v_mov_b32 v{t}, v{O+10}
    v_mov_b32 v{t+1}, v{O+10}
    s_mov_b32 s42, {f2u(2.0**-64)}
    s_mov_b32 s43, {f2u(2.0**40)}
    v_permlane32_swap_b32 v{t}, v{t+1}
    s_nop 1
    v_cmp_le_f32 vcc, s42, v{t}
    v_cmp_ge_f32 s[44:45], s43, v{t}
    s_and_b64 s[44:45], s[44:45], vcc
    s_cmp_eq_u64 s[44:45], exec
    s_cselect_b32 s46, 0, 1
    """)
    k.e("s_cmp_eq_u32 s46, 1")
    k.e(f"s_cbranch_scc1 {lfb}")
    k.label(lfin)
    k.e(f"""
    v_rcp_f32 v{t}, v{t}
    v_and_b32 v{t+2}, 31, v{lane}
    v_lshrrev_b32 v{t+3}, 5, v{lane}
    s_lshl_b32 s26, s21, 5
    v_add_u32 v{t+2}, s26, v{t+2}
    v_mul_u32_u24 v{t+2}, 1152, v{t+2}
    v_lshl_add_u32 v{t+2}, v{t+3}, 3, v{t+2}
    s_mul_i32 s27, s20, 36
    s_add_u32 s27, s27, {OA}
    """)
    for r in range(10): k.e(f"v_mul_f32 v{O+r}, v{O+r}, v{t}")
    for j in range(5): k.e(f"v_cvt_pk_bf16_f32 v{P+j}, v{O+2*j}, v{O+2*j+1}")
    k.e(f"""
    buffer_store_dwordx2 {vr(P,2)}, v{t+2}, s[8:11], s27 offen
    buffer_store_dwordx2 {vr(P+2,2)}, v{t+2}, s[8:11], s27 offen offset:16
    s_mov_b32 exec_hi, 0
    buffer_store_dword v{P+4}, v{t+2}, s[8:11], s27 offen offset:32
    s_mov_b64 exec, -1
    """)
    lend = k.newlabel("end")
    if conv:
        k.e("s_waitcnt vmcnt(3)")
        for g in range(2):
            for e in range(4):
                k.e(f"v_permlane32_swap_b32 v{CA+8*g+e}, v{CA+8*g+4+e}")
        k.e("s_nop 1")
        for g in range(2):
            for e in range(4):
                k.e(f"v_cvt_pk_bf16_f32 v{CR+4*g+e}, v{CA+8*g+e}, v{CA+8*g+4+e}")
        k.e("s_cmp_eq_u32 s35, 3")
        k.e(f"s_cbranch_scc1 {lend}")
        for g in range(2):
            k.e(f"buffer_store_dwordx4 {vr(CR+4*g,4)}, v{vY}, s[8:11], s33 offen offset:{32*g}")
    k.e(f"s_branch {lend}")
    k.label(lfb)
    k.c("fallback: pass 1 = true row max, pass 2 = exp(s - max)")
    mx = t + 6
    k.e(f"""
    v_mov_b32 v{mx}, 0xff800000
    s_mov_b32 s46, 0
    s_nop 7
    """)
    lpass = k.newlabel("pass")
    k.label(lpass)
    for i in range(16): k.e(f"v_mov_b32 v{O+i}, 0")
    k.e(f"s_mov_b32 s41, 0")
    lm = k.newlabel("sl")
    k.label(lm)
    k.e(f"""
    s_lshr_b32 s47, s41, 3
    s_mul_i32 s47, s47, {CH}
    s_and_b32 s48, s41, 7
    s_lshl_b32 s49, s48, 10
    s_add_u32 s49, s49, s47
    v_lshlrev_b32 v{t+7}, 4, v{lane}
    v_add_u32 v{t+7}, s49, v{t+7}
    s_lshr_b32 s49, s48, 2
    s_lshl_b32 s49, s49, 9
    s_and_b32 s50, s48, 3
    s_lshl_b32 s50, s50, 2
    s_add_u32 s49, s49, s50
    s_add_u32 s49, s49, s47
    s_add_u32 s49, s49, 8192
    v_and_b32 v{t+8}, 31, v{lane}
    v_lshlrev_b32 v{t+8}, 4, v{t+8}
    v_add_u32 v{t+8}, s49, v{t+8}
    s_mul_i32 s49, s48, {2*VKS}
    s_add_u32 s49, s49, s47
    s_add_u32 s49, s49, 9216
    v_add_u32 v{t+9}, s49, v{t+5}
    ds_read_b128 {vr(KF,4)}, v{t+7}
    ds_read_b32 v{KX}, v{t+8}
    v_mov_b32 v{KX+1}, 0
    ds_read_b128 {vr(V0,4)}, v{t+9}
    ds_read_b128 {vr(V1,4)}, v{t+9} offset:{VKS}
    s_waitcnt lgkmcnt(0)
    v_mfma_f32_32x32x16_bf16 {vr(SA,16)}, {vr(KF,4)}, {vr(QF,4)}, 0
    v_mfma_f32_32x32x8_bf16 {vr(SA,16)}, {vr(KX,2)}, {vr(Q2A,2)}, {vr(SA,16)}
    """)
    k.nop(12)
    lp2 = k.newlabel("p2"); lnx = k.newlabel("nx")
    k.e("s_cmp_eq_u32 s46, 1")
    k.e(f"s_cbranch_scc1 {lp2}")
    for i in range(8):
        k.e(f"v_max3_f32 v{mx}, v{SA+2*i}, v{SA+2*i+1}, v{mx}")
    k.e(f"s_branch {lnx}")
    k.label(lp2)
    for i in range(16):
        k.e(f"v_sub_f32 v{SA+i}, v{SA+i}, v{mx}")
    for i in range(16):
        k.e(f"v_exp_f32 v{SA+i}, v{SA+i}")
    k.e("s_nop 0")
    for j in range(8):
        k.e(f"v_cvt_pk_bf16_f32 v{P+j}, v{SA+2*j}, v{SA+2*j+1}")
    k.e(f"""
    s_nop 1
    v_mfma_f32_32x32x16_bf16 {vr(O,16)}, {vr(V0,4)}, {vr(P,4)}, {vr(O,16)}
    v_mfma_f32_32x32x16_bf16 {vr(O,16)}, {vr(V1,4)}, {vr(P+4,4)}, {vr(O,16)}
    """)
    k.label(lnx)
    ldone = k.newlabel("fbdone")
    k.e(f"""
    s_add_u32 s41, s41, 1
    s_cmp_lt_u32 s41, 64
    s_cbranch_scc1 {lm}
    s_cmp_eq_u32 s46, 1
    s_cbranch_scc1 {ldone}
    v_mov_b32 v{t+7}, v{mx}
    s_nop 1
    v_permlane32_swap_b32 v{mx}, v{t+7}
    s_nop 1
    v_max_f32 v{mx}, v{mx}, v{t+7}
    s_mov_b32 s46, 1
    s_branch {lpass}
    """)
    k.label(ldone)
    k.nop(12)
    k.e(f"""
    v_mov_b32 v{t}, v{O+10}
    v_mov_b32 v{t+1}, v{O+10}
    s_nop 1
    v_permlane32_swap_b32 v{t}, v{t+1}
    s_nop 1
    s_branch {lfin}
    """)
    k.label(lend)

def gen_loader(k):
    k.c("---- K/V loader ----")
    k.e(f"""
    s_load_dwordx2 s[4:5], s[0:1], 96
    s_and_b32 s20, s2, 7
    s_lshr_b32 s21, s2, 3
    s_and_b32 s22, s21, 3
    s_lshl_b32 s20, s20, 2
    s_add_u32 s20, s20, s22
    s_sub_u32 s23, s19, 8
    s_mul_i32 s24, s20, {HB}
    s_lshl_b32 s25, s23, 10
    s_add_u32 s24, s24, s25
    v_lshlrev_b32 v4, 4, v2
    s_setprio 3
    s_waitcnt lgkmcnt(0)
    """)
    srd(k, 8, 4, WS_END)
    def piece(j):
        k.e(f"s_add_u32 m0, s25, {j*4096}")
        k.e(f"s_add_u32 s27, s24, {j*4096}")
        k.e(f"buffer_load_dwordx4 v4, s[8:11], s27 offen lds")
    for j in range(8): piece(j)
    k.e("s_waitcnt vmcnt(0)")
    k.e("s_barrier")
    for j in range(8, 38): piece(j)
    k.e("s_waitcnt vmcnt(25)")
    k.e("s_barrier")
    k.e("s_waitcnt vmcnt(0)")
    k.e("s_barrier")
    k.e(f"""
    s_load_dwordx2 s[6:7], s[0:1], 72
    s_lshr_b32 s30, s2, 3
    s_lshl_b32 s30, s30, 2
    s_add_u32 s30, s30, s23
    s_mul_i32 s30, s30, {41*128}
    v_lshlrev_b32 v5, 7, v2
    v_cmp_gt_u32 vcc, 41, v2
    s_and_saveexec_b64 s[32:33], vcc
    s_waitcnt lgkmcnt(0)
    """)
    srd(k, 12, 6, WOB)
    k.e("buffer_load_dword v6, v5, s[12:15], s30 offen")
    k.e("s_waitcnt vmcnt(0)")

def gen_k2(k, prof=None, var=()):
    lconv = k.newlabel("loader"); lend = k.newlabel("k2end")
    k.e("""
    v_lshrrev_b32 v1, 6, v0
    v_and_b32 v2, 63, v0
    s_nop 0
    v_readfirstlane_b32 s19, v1
    s_nop 3
    s_cmp_ge_u32 s19, 8
    """)
    k.e(f"s_cbranch_scc1 {lconv}")
    gen_attn(k, prof, var)
    k.e(f"s_branch {lend}")
    k.label(lconv)
    gen_loader(k)
    k.label(lend)
```

```python
from g import *
from sb import SB
from layout import *
import struct

def f2u(x): return struct.unpack("<I", struct.pack("<f", x))[0]

def srd(k, dst, ptr, size):
    k.e(f"s_mov_b32 s{dst}, s{ptr}")
    k.e(f"s_and_b32 s{dst+1}, s{ptr+1}, 0xffff")
    k.e(f"s_mov_b32 s{dst+2}, {size}")
    k.e(f"s_mov_b32 s{dst+3}, 0x00020000")

NST = 3
XST = 16384
WBASE = NST * XST
WST = 24576
GEMM_LDS = WBASE + NST * WST

ACC = 16
XF = [64, 68]
WF = [72, 84]
vXd = 4
vXd2 = 5
vWp = [6, 7, 8]
vXr = [9, 10, 11, 12]
vWr01 = [13, 14, 15]
vWr2 = [96, 97, 98]
T0 = 100
NV = 116

def gen_qkv(k, prof=None):
    k.c("---- QKV GEMM ----")
    lane = 2
    t = T0
    k.e("""
    s_load_dwordx4 s[4:7], s[0:1], 56
    s_load_dwordx2 s[28:29], s[0:1], 96
    v_lshrrev_b32 v1, 6, v0
    v_and_b32 v2, 63, v0
    s_and_b32 s30, s2, 7
    v_readfirstlane_b32 s49, v1
    s_lshr_b32 s31, s2, 3
    """)
    k.e("""
    s_lshr_b32 s21, s30, 1
    s_lshl_b32 s21, s21, 2
    s_and_b32 s32, s31, 3
    s_add_u32 s21, s21, s32
    s_and_b32 s32, s30, 1
    s_mul_i32 s32, s32, 6
    s_lshr_b32 s33, s31, 2
    s_add_u32 s32, s32, s33
    s_lshr_b32 s22, s32, 2
    s_and_b32 s23, s32, 3
    s_and_b32 s20, s49, 3
    s_lshr_b32 s43, s49, 2
    """)
    k.e(f"""
    s_lshl_b32 s24, s21, 7
    s_lshl_b32 s33, s20, 5
    s_add_u32 s24, s24, s33
    s_lshl_b32 s33, s43, 4
    s_add_u32 s24, s24, s33
    s_mul_i32 s24, s24, 1152
    s_mul_i32 s25, s22, 1152
    s_mul_i32 s33, s23, 288
    s_add_u32 s25, s25, s33
    s_mul_i32 s33, s49, {8*3456}
    s_add_u32 s25, s25, s33
    s_lshl_b32 s26, s20, 12
    s_lshl_b32 s33, s43, 11
    s_add_u32 s48, s26, s33
    s_mul_i32 s27, s49, 3072
    s_add_u32 s27, s27, {WBASE}
    """)
    k.e(f"""
    v_lshrrev_b32 v{t}, 3, v{lane}
    v_mul_u32_u24 v{t}, 1152, v{t}
    v_and_b32 v{t+1}, 7, v{lane}
    v_lshrrev_b32 v{t+2}, 4, v{lane}
    v_xor_b32 v{t+3}, v{t+1}, v{t+2}
    v_lshl_add_u32 v{vXd}, v{t+3}, 4, v{t}
    v_xor_b32 v{t+3}, 4, v{t+3}
    v_lshl_add_u32 v{vXd2}, v{t+3}, 4, v{t}
    """)
    for pat in range(3):
        k.e(f"""
        v_add_u32 v{t}, {64*pat}, v{lane}
        v_mul_u32_u24 v{t+1}, 2731, v{t}
        v_lshrrev_b32 v{t+1}, 16, v{t+1}
        v_mul_u32_u24 v{t+2}, 24, v{t+1}
        v_sub_u32 v{t+2}, v{t}, v{t+2}
        v_bfe_u32 v{t+3}, v{t+1}, 1, 1
        v_lshlrev_b32 v{t+4}, 2, v{t+3}
        v_xor_b32 v{t+4}, v{t+2}, v{t+4}
        v_lshrrev_b32 v{t+5}, 1, v{t+4}
        v_mul_u32_u24 v{t+5}, 36, v{t+5}
        v_and_b32 v{t+4}, 1, v{t+4}
        v_lshl_add_u32 v{t+5}, v{t+4}, 4, v{t+5}
        v_subrev_u32 v{t+6}, 16, v{t+2}
        v_mul_u32_u24 v{t+6}, 36, v{t+6}
        v_add_u32 v{t+6}, 32, v{t+6}
        v_lshlrev_b32 v{t+3}, 3, v{t+3}
        v_sub_u32 v{t+6}, v{t+6}, v{t+3}
        v_cmp_gt_u32 vcc, 16, v{t+2}
        v_mul_u32_u24 v{t+1}, 3456, v{t+1}
        s_nop 0
        v_cndmask_b32 v{t+5}, v{t+6}, v{t+5}, vcc
        v_add_u32 v{vWp[pat]}, v{t+1}, v{t+5}
        """)
    k.e("s_waitcnt lgkmcnt(0)")
    srd(k, 8, 4, XB)
    srd(k, 12, 6, WB)
    srd(k, 16, 28, WS_END)

    vm = SB(k, "vmcnt", 63)
    def dma_list(c):
        st = c % NST
        out = []
        for jj in range(2):
            out.append((f"""s_add_u32 m0, s48, {st*XST + jj*1024}
            s_add_u32 s28, s24, {jj*9216 + c*128}
            buffer_load_dwordx4 v{vXd if jj == 0 else vXd2}, s[8:11], s28 offen lds""", ("D", c)))
        for ii in range(3):
            out.append((f"""s_add_u32 m0, s27, {st*WST + ii*1024}
            s_add_u32 s28, s25, {c*64*3456}
            buffer_load_dwordx4 v{vWp[ii]}, s[12:15], s28 offen lds""", ("D", c)))
        return out
    def emit_dma(d):
        k.e(d[0]); vm.issue(d[1])
    for d in dma_list(0): emit_dma(d)
    k.e("s_barrier")
    for c0 in range(1, NST - 1):
        for d in dma_list(c0): emit_dma(d)
    k.e(f"""
    v_and_b32 v{t}, 31, v{lane}
    v_lshrrev_b32 v{t+1}, 5, v{lane}
    v_bfe_u32 v{t+2}, v{t}, 1, 3
    v_lshlrev_b32 v{t}, 7, v{t}
    v_add_u32 v{t}, s26, v{t}
    """)
    for sx in range(4):
        k.e(f"""
        v_add_u32 v{t+3}, {2*sx}, v{t+1}
        v_xor_b32 v{t+3}, v{t+3}, v{t+2}
        v_lshl_add_u32 v{vXr[sx]}, v{t+3}, 4, v{t}
        """)
    k.e(f"""
    v_bfe_u32 v{t}, v{lane}, 2, 2
    v_lshrrev_b32 v{t+1}, 5, v{lane}
    v_lshl_add_u32 v{t}, v{t+1}, 3, v{t}
    v_mul_u32_u24 v{t}, 384, v{t}
    v_add_u32 v{t}, {WBASE}, v{t}
    v_bfe_u32 v{t+1}, v{lane}, 4, 1
    v_and_b32 v{t+2}, 3, v{lane}
    v_bfe_u32 v{t+3}, v{lane}, 3, 1
    v_and_b32 v{t+4}, 1, v{t+2}
    v_lshl_add_u32 v{t+4}, v{t+1}, 1, v{t+4}
    v_lshlrev_b32 v{t+4}, 4, v{t+4}
    v_lshrrev_b32 v{t+5}, 1, v{t+2}
    v_lshl_add_u32 v{t+4}, v{t+5}, 3, v{t+4}
    v_add_u32 v{t+4}, v{t}, v{t+4}
    v_lshl_add_u32 v{t+6}, v{t+3}, 6, v{t+4}
    v_xor_b32 v{t+5}, 1, v{t+3}
    v_lshl_add_u32 v{t+7}, v{t+5}, 6, v{t+4}
    v_lshl_add_u32 v{t+4}, v{t+1}, 2, v{t+2}
    v_add_u32 v{t+4}, 16, v{t+4}
    v_lshl_add_u32 v{t+4}, v{t+4}, 4, v{t}
    v_lshl_add_u32 v{t+10}, v{t+3}, 3, v{t+4}
    """)
    EV, OD, LF = t+6, t+7, t+10

    def reads(c, sx, buf, nt):
        st = c % NST
        wr = vWr2 if st >= 2 else vWr01
        wo = (st & 1) * WST + sx * 6144
        r = [(f"ds_read_b128 {vr(XF[buf],4)}, v{vXr[sx]} offset:{st*XST}", ("X", c, sx))]
        for j in range(nt):
            for z in range(2):
                r.append((f"ds_read_b64_tr_b16 {vr(WF[buf]+4*j+2*z,2)}, v{wr[j]} offset:{wo + z*1536}", ("W", c, sx, j, z)))
        return r

    def mainloop(isV, nt):
        lg = SB(k, "lgkmcnt", 15)
        first = [True] * nt
        def mfma(c, sx, buf, j):
            lg.wait_for([("X", c, sx), ("W", c, sx, j, 0), ("W", c, sx, j, 1)])
            a, b = vr(WF[buf] + 4*j, 4), vr(XF[buf], 4)
            if isV: a, b = b, a
            d = vr(ACC + 16*j, 16)
            k.e(f"v_mfma_f32_32x32x16_bf16 {d}, {a}, {b}, {'0' if first[j] else d}")
            first[j] = False
        vmq = list(vm.q)
        for c in range(9):
            vm.wait_for([("D", c)])
            lg.wait_all()
            k.e("s_barrier")
            if prof: prof.mark()
            dm = dma_list(c + NST - 1) if c + NST - 1 < 9 else []
            rd = reads(c, 0, 0, nt)
            for (txt, tag) in rd:
                k.e(txt); lg.issue(tag)
            if c > 0:
                for j in range(nt):
                    mfma(c - 1, 3, 1, j)
                    if dm: emit_dma(dm.pop(0))
            for sx in range(3 if c < 8 else 4):
                buf = sx & 1
                nxt = reads(c, sx + 1, buf ^ 1, nt) if sx < 3 else []
                for j in range(nt):
                    mfma(c, sx, buf, j)
                    n = len(nxt) if j == nt - 1 else 3
                    for (txt, tag) in nxt[:n]:
                        k.e(txt); lg.issue(tag)
                    nxt = nxt[n:]
                    if dm and j == 0: emit_dma(dm.pop(0))
            while dm: emit_dma(dm.pop(0))
        vm.q = vmq

    def epi_qk(tiles):
        k.c("Q/K epilogue")
        k.e(f"""
        s_lshl_b32 s30, s21, 2
        s_add_u32 s30, s30, s20
        s_lshr_b32 s31, s30, 3
        s_and_b32 s32, s30, 7
        s_cmp_eq_u32 s22, 0
        s_cselect_b32 s33, {f2u(QSCALE)}, 1.0
        s_mov_b32 s34, {HB}
        s_cselect_b32 s35, 8192, s34
        s_cselect_b32 s34, 65536, s34
        s_mul_i32 s36, s31, {CH}
        s_lshl_b32 s37, s32, 10
        s_add_u32 s37, s37, s36
        s_lshr_b32 s38, s32, 2
        s_lshl_b32 s38, s38, 9
        s_and_b32 s39, s32, 3
        s_lshl_b32 s39, s39, 2
        s_add_u32 s38, s38, s39
        s_add_u32 s38, s38, s36
        s_add_u32 s38, s38, 8192
        s_lshl_b32 s39, s30, 10
        s_add_u32 s39, s39, {QM}
        s_lshl_b32 s40, s30, 7
        s_add_u32 s40, s40, {Q2}
        s_cmp_eq_u32 s22, 0
        s_cselect_b32 s37, s39, s37
        s_cselect_b32 s38, s40, s38
        s_lshl_b32 s41, s23, 3
        s_mul_i32 s42, s41, s35
        s_add_u32 s38, s38, s42
        s_add_u32 s41, s41, {2*tiles[0]}
        s_mul_i32 s42, s41, s34
        s_add_u32 s37, s37, s42
        v_lshlrev_b32 v{T0}, 4, v{lane}
        v_and_b32 v{T0+1}, 31, v{lane}
        s_cmp_eq_u32 s22, 0
        s_cselect_b32 s39, 2, 4
        v_lshlrev_b32 v{T0+1}, s39, v{T0+1}
        v_lshrrev_b32 v{T0+2}, 5, v{lane}
        v_mul_lo_u32 v{T0+2}, v{T0+2}, s35
        v_add_u32 v{T0+1}, v{T0+1}, v{T0+2}
        """)
        tmp = 64
        for slot, j in enumerate(tiles):
            if j < 4:
                for hh in range(2):
                    base = ACC + 16*slot + 8*hh
                    tr = tmp + (8 if hh else 0)
                    for i in range(8):
                        k.e(f"v_mul_f32 v{base+i}, s33, v{base+i}")
                    for i in range(4):
                        k.e(f"v_cvt_pk_bf16_f32 v{tr+i}, v{base+2*i}, v{base+2*i+1}")
                    k.e(f"buffer_store_dwordx4 {vr(tr,4)}, v{T0}, s[16:19], s37 offen")
                    k.e("s_add_u32 s37, s37, s34")
            else:
                base = ACC + 16*slot
                for q in range(4):
                    k.e(f"v_mul_f32 v{base+4*q}, s33, v{base+4*q}")
                    k.e(f"v_mul_f32 v{base+4*q+1}, s33, v{base+4*q+1}")
                    k.e(f"v_cvt_pk_bf16_f32 v{80+q}, v{base+4*q}, v{base+4*q+1}")
                    k.e(f"buffer_store_dword v{80+q}, v{T0+1}, s[16:19], s38 offen")
                    k.e("s_add_u32 s38, s38, s35")
                    k.e("s_add_u32 s38, s38, s35")

    def epi_v(tiles):
        k.c("V epilogue")
        k.e(f"""
        s_lshl_b32 s30, s21, 2
        s_add_u32 s30, s30, s20
        s_lshr_b32 s31, s30, 3
        s_and_b32 s32, s30, 7
        s_mul_i32 s36, s31, {CH}
        s_mul_i32 s37, s32, {2*VKS}
        s_add_u32 s37, s37, s36
        s_add_u32 s37, s37, 9216
        s_lshl_b32 s41, s23, 3
        s_mul_i32 s42, s41, {HB}
        s_add_u32 s38, s37, s42
        s_add_u32 s37, s38, {2*tiles[0]*HB}
        s_mov_b32 s34, {HB}
        v_bfe_u32 v{T0}, v{lane}, 4, 1
        v_bfe_u32 v{T0+1}, v{lane}, 2, 1
        v_bfe_u32 v{T0+2}, v{lane}, 3, 1
        v_and_b32 v{T0+3}, 3, v{lane}
        v_lshrrev_b32 v{T0+4}, 5, v{lane}
        v_mul_u32_u24 v{T0+4}, {VH}, v{T0+4}
        v_lshl_add_u32 v{T0+5}, v{T0+1}, 3, v{T0+3}
        v_lshl_add_u32 v{T0+5}, v{T0+2}, 2, v{T0+5}
        v_lshl_add_u32 v{T0+5}, v{T0+5}, 4, v{T0+4}
        v_mul_lo_u32 v{T0+6}, v{T0}, s34
        v_add_u32 v{T0+5}, v{T0+5}, v{T0+6}
        v_bfe_u32 v{T0+7}, v{lane}, 2, 2
        v_lshl_add_u32 v{T0+7}, v{T0}, 2, v{T0+7}
        v_mul_lo_u32 v{T0+7}, v{T0+7}, s34
        v_add_u32 v{T0+8}, 16, v{T0+3}
        v_lshl_add_u32 v{T0+8}, v{T0+8}, 4, v{T0+4}
        v_add_u32 v{T0+7}, v{T0+7}, v{T0+8}
        """)
        tmp = 64
        for slot, j in enumerate(tiles):
            if j < 4:
                for kl in range(2):
                    base = ACC + 16*slot + 8*kl
                    tr = tmp + (8 if kl else 0)
                    for i in range(4):
                        k.e(f"v_cvt_pk_bf16_f32 v{tr+i}, v{base+2*i}, v{base+2*i+1}")
                    k.e(f"buffer_store_dwordx4 {vr(tr,4)}, v{T0+5}, s[16:19], s37 offen offset:{kl*VKS}")
                k.e("s_add_u32 s37, s37, s34")
                k.e("s_add_u32 s37, s37, s34")
            else:
                k.e(f"""
                v_mov_b32 v{T0+9}, 0x3f803f80
                v_mov_b32 v{T0+10}, 0
                v_cmp_eq_u32 s[44:45], 3, v{T0+3}
                v_cmp_le_u32 s[46:47], 2, v{T0+3}
                s_nop 1
                v_cndmask_b32 v{T0+9}, v{T0+9}, v{T0+10}, s[44:45]
                """)
                base = ACC + 16*slot
                for kl in range(2):
                    tr = 80 + 4*kl
                    for i in range(4):
                        k.e(f"v_cvt_pk_bf16_f32 v{tr+i}, v{base+8*kl+2*i}, v{base+8*kl+2*i+1}")
                    for i in range(4):
                        k.e(f"v_cndmask_b32 v{tr+i}, v{tr+i}, v{T0+9}, s[46:47]")
                for kl in range(2):
                    k.e(f"buffer_store_dwordx4 {vr(80+4*kl,4)}, v{T0+7}, s[16:19], s38 offen offset:{kl*VKS}")

    le = k.newlabel("end")
    lh1 = k.newlabel("half1")
    k.e("s_cmp_eq_u32 s43, 1")
    k.e(f"s_cbranch_scc1 {lh1}")
    for half in range(2):
        if half == 1: k.label(lh1)
        tiles = [0, 1, 2] if half == 0 else [3, 4]
        src = {0: (EV, 0), 1: (OD, 0), 2: (EV, 128), 3: (OD, 128), 4: (LF, 0)}
        for slot, j in enumerate(tiles):
            a, off = src[j]
            k.e(f"v_add_u32 v{vWr01[slot]}, {off}, v{a}")
            k.e(f"v_add_u32 v{vWr2[slot]}, {off + 2*WST}, v{a}")
        lv = k.newlabel("v")
        k.e("s_cmp_eq_u32 s22, 2")
        k.e(f"s_cbranch_scc1 {lv}")
        n0 = prof.n if prof else 0
        if prof: prof.mark()
        mainloop(False, len(tiles))
        if prof: prof.mark()
        epi_qk(tiles)
        k.e(f"s_branch {le}")
        k.label(lv)
        if prof: prof.n = n0; prof.mark()
        mainloop(True, len(tiles))
        if prof: prof.mark()
        epi_v(tiles)
        if half == 0: k.e(f"s_branch {le}")
        if prof and half == 0: prof.n = n0
    k.label(le)


def gen_prefetch(k, wave_sgpr, lds_dummy, first_after=1, burst=False):
    k.e(f"""
    s_load_dwordx4 s[60:63], s[0:1], 56
    s_and_b32 s65, s2, 7
    s_lshr_b32 s64, s2, 3
    s_mul_i32 s64, s64, 3
    s_add_u32 s64, s64, s{wave_sgpr}
    s_sub_u32 s64, s64, 8
    s_mov_b32 m0, {lds_dummy}
    """)
    for r in range(7):
        k.e(f"""
        v_add_u32 v4, {64*r}, v2
        v_mul_u32_u24 v5, 586, v4
        v_lshrrev_b32 v5, 16, v5
        v_mul_u32_u24 v6, 112, v5
        v_sub_u32 v6, v4, v6
        v_mul_u32_u24 v5, 3456, v5
        v_lshl_add_u32 v{8+r}, v6, 4, v5
        """)
    k.e(f"""
    v_lshrrev_b32 v5, 3, v2
    v_mul_u32_u24 v5, 1152, v5
    v_and_b32 v6, 7, v2
    v_lshl_add_u32 v16, v6, 4, v5
    s_waitcnt lgkmcnt(0)
    """)
    srd(k, 68, 60, XB)
    srd(k, 72, 62, WB)
    k.e(f"""
    s_and_b32 s79, s65, 1
    s_mul_i32 s79, s79, 1664
    s_lshr_b32 s78, s65, 1
    s_mul_i32 s78, s78, {512*1152}
    """)
    nb = 0
    for _ in range(1 + first_after):
        k.e("s_barrier"); nb += 1
    for j in range(3):
        lx = k.newlabel("px"); ld = k.newlabel("pd")
        k.e(f"""
        s_add_u32 s66, s64, {72*j}
        s_cmp_ge_u32 s66, 168
        s_cbranch_scc1 {ld}
        s_mul_i32 s67, s66, 2731
        s_lshr_b32 s67, s67, 16
        s_mul_i32 s76, s67, 24
        s_sub_u32 s76, s66, s76
        s_add_u32 s67, s67, 2
        s_cmp_ge_u32 s76, 16
        s_cbranch_scc1 {lx}
        s_lshl_b32 s77, s67, 6
        s_lshl_b32 s76, s76, 2
        s_add_u32 s77, s77, s76
        s_mul_i32 s77, s77, 3456
        s_add_u32 s77, s77, s79
        """)
        for r in range(7): k.e(f"buffer_load_dwordx4 v{8+r}, s[72:75], s77 offen lds")
        k.e(f"s_branch {ld}")
        k.label(lx)
        k.e(f"""
        s_sub_u32 s76, s76, 16
        s_mul_i32 s76, s76, {64*1152}
        s_lshl_b32 s77, s67, 7
        s_add_u32 s77, s77, s76
        s_add_u32 s77, s77, s78
        """)
        for r in range(8):
            k.e(f"buffer_load_dwordx4 v16, s[68:71], s77 offen lds")
            if r < 7: k.e(f"s_add_u32 s77, s77, {8*1152}")
        k.label(ld)
        if nb < 10 and not burst:
            k.e("s_barrier"); nb += 1
    while nb < 10:
        k.e("s_barrier"); nb += 1
```

```python
from g import *
from sb import SB
from layout import *
from k_qkv import srd, f2u
import math

LOG2E = 1.4426950408889634
UB = 2048 * 576 * 2

UT_LDS = 36864
def gen_utrans(k, wg="s2", nw=4):
    lane = 2; t = 20
    k.c("---- u transposition ----")
    k.e(f"""
    s_load_dwordx2 s[4:5], s[0:1], 0
    s_load_dwordx2 s[6:7], s[0:1], 96
    v_lshrrev_b32 v1, 6, v0
    v_and_b32 v2, 63, v0
    s_lshr_b32 s21, {wg}, 2
    v_readfirstlane_b32 s19, v1
    s_and_b32 s22, {wg}, 3
    s_mul_i32 s24, s21, {128*1152}
    s_mul_i32 s25, s22, 288
    s_add_u32 s24, s24, s25
    s_mul_i32 s26, s19, {9*1024}
    """)
    k.e(f"""
    s_mul_i32 s27, s19, 576
    v_add_u32 v{t}, s27, v{lane}
    s_waitcnt lgkmcnt(0)
    """)
    srd(k, 8, 4, UB)
    srd(k, 12, 6, WS_END)
    k.e("s_mov_b32 s30, 3641")
    for i in range(9):
        k.e(f"""
        v_add_u32 v{t+1}, {64*i}, v{t}
        v_mul_lo_u32 v{t+2}, v{t+1}, s30
        v_lshrrev_b32 v{t+2}, 16, v{t+2}
        v_mul_u32_u24 v{t+3}, 18, v{t+2}
        v_sub_u32 v{t+3}, v{t+1}, v{t+3}
        v_mul_u32_u24 v{t+2}, 1152, v{t+2}
        v_lshl_add_u32 v{t+2}, v{t+3}, 4, v{t+2}
        s_add_u32 m0, s26, {i*1024}
        s_nop 0
        buffer_load_dwordx4 v{t+2}, s[8:11], s24 offen lds
        """)
    k.e(f"""
    v_mov_b32 v8, 0
    v_mov_b32 v9, 0
    v_mov_b32 v10, 0
    v_mov_b32 v11, 0
    s_mul_i32 s31, s22, {144*UPC}
    s_lshl_b32 s32, s21, 5
    s_add_u32 s31, s31, s32
    s_add_u32 s31, s31, {UP}
    v_and_b32 v{t+6}, 255, v0
    """)
    for i in range(5):
        k.e(f"""
        v_add_u32 v{t+1}, {256*i}, v{t+6}
        v_lshrrev_b32 v{t+2}, 3, v{t+1}
        v_mul_u32_u24 v{t+2}, {UPC}, v{t+2}
        v_bfe_u32 v{t+3}, v{t+1}, 1, 2
        v_mul_u32_u24 v{t+3}, 1536, v{t+3}
        v_add_u32 v{t+2}, v{t+2}, v{t+3}
        v_and_b32 v{t+3}, 1, v{t+1}
        v_lshl_add_u32 v{t+2}, v{t+3}, 4, v{t+2}
        """)
        if i == 4:
            k.e(f"""
            v_cmp_gt_u32 vcc, 1152, v{t+1}
            v_mov_b32 v{t+3}, -1
            s_nop 0
            v_cndmask_b32 v{t+2}, v{t+3}, v{t+2}, vcc
            s_mov_b32 s33, 0
            v_cmp_gt_u32 vcc, 1152, v{t+1}
            s_and_saveexec_b64 s[34:35], vcc
            buffer_store_dwordx4 v[8:11], v{t+2}, s[12:15], s31 offen
            s_mov_b64 exec, s[34:35]
            """)
        else:
            k.e(f"buffer_store_dwordx4 v[8:11], v{t+2}, s[12:15], s31 offen")
    k.e(f"""
    v_lshrrev_b32 v{t+1}, 4, v{lane}
    v_bfe_u32 v{t+2}, v{lane}, 2, 2
    v_lshl_add_u32 v{t+2}, v{t+1}, 5, v{t+2}
    v_mul_u32_u24 v{t+2}, 288, v{t+2}
    v_and_b32 v{t+3}, 3, v{lane}
    v_lshl_add_u32 v{t+2}, v{t+3}, 3, v{t+2}
    v_and_b32 v{t+3}, 15, v{lane}
    v_mul_u32_u24 v{t+3}, {UPC}, v{t+3}
    v_lshl_add_u32 v{t+3}, v{t+1}, 4, v{t+3}
    s_mul_i32 s31, s22, {144*UPC}
    s_lshl_b32 s32, s21, 6
    s_add_u32 s31, s31, s32
    s_add_u32 s31, s31, {UP + 512}
    s_mul_i32 s32, s19, 1536
    s_add_u32 s31, s31, s32
    s_mul_i32 s33, s19, {8*288}
    v_add_u32 v{t+2}, s33, v{t+2}
    s_waitcnt vmcnt(5)
    s_barrier
    """)
    for dg in range(9):
        b = 12 + 4 * (dg & 1)
        k.e(f"""
        ds_read_b64_tr_b16 {vr(b,2)}, v{t+2} offset:{32*dg}
        ds_read_b64_tr_b16 {vr(b+2,2)}, v{t+2} offset:{32*dg + 4*288}
        s_waitcnt lgkmcnt(0)
        buffer_store_dwordx4 {vr(b,4)}, v{t+3}, s[12:15], s31 offen
        s_add_u32 s31, s31, {16*UPC}
        """)

KG_LDS_WAVE = 53 * 256
def gen_kgen(k, chan_sgpr, ldsbase_sgpr, prof=None, after_loads=None):
    lane = 2
    k.c("---- SSM kernel generation ----")
    ch = chan_sgpr; lb = ldsbase_sgpr
    k.e(f"""
    s_load_dwordx8 s[44:51], s[0:1], 8
    s_load_dwordx2 s[52:53], s[0:1], 40
    s_load_dwordx2 s[54:55], s[0:1], 96
    v_lshlrev_b32 v3, 1, v{lane}
    s_lshl_b32 s22, s{ch}, 8
    s_lshl_b32 s23, s{ch}, 1
    v_mov_b32 v4, s23
    s_waitcnt lgkmcnt(0)
    """)
    S = 24
    for i in range(4): srd(k, S + 4*i, 44 + 2*i, PB)
    srd(k, S + 16, 52, 1152)
    k.e(f"buffer_load_ushort v5, v4, s[{S+16}:{S+19}], 0 offen")
    for i in range(4):
        for ps in range(2):
            k.e(f"buffer_load_ushort v{8+2*i+ps}, v3, s[{S+4*i}:{S+4*i+3}], s22 offen offset:{128*ps}")
    if after_loads: after_loads()
    AW = 16
    k.e("v_lshlrev_b32 v6, 2, v2")
    k.e(f"v_add_u32 v6, s{lb}, v6")
    for j in range(16):
        k.e(f"v_xor_b32 v{AW+j}, {16*j}, v6")
    k.e(f"""
    v_and_b32 v6, 31, v2
    v_lshrrev_b32 v7, 5, v2
    v_bfe_u32 v32, v6, 1, 4
    v_xor_b32 v32, v32, v7
    v_lshlrev_b32 v32, 4, v32
    v_lshl_add_u32 v32, v6, 8, v32
    v_add_u32 v32, s{lb}, v32
    """)
    RB = 32
    D = 112
    k.e("s_waitcnt vmcnt(0)")
    if prof: prof.mark()
    c_l2e = f2u(LOG2E); c_i2pi = f2u(1.0 / (2 * math.pi))
    k.e(f"""
    v_lshlrev_b32 v5, 16, v5
    v_mul_f32 v5, {c_l2e}, v5
    v_exp_f32 v5, v5
    s_nop 0
    v_cvt_pk_bf16_f32 v5, v5, v5
    v_lshlrev_b32 v5, 16, v5
    """)
    DT = 5
    def cmul(d, a, b):
        k.e(f"v_mul_f32 v36, v{a+1}, v{b+1}")
        k.e(f"v_mul_f32 v37, v{a+1}, v{b}")
        k.e(f"v_fma_f32 v38, v{a}, v{b+1}, v37")
        k.e(f"v_fma_f32 v{d}, v{a}, v{b}, -v36")
        k.e(f"v_mov_b32 v{d+1}, v38")
    def cmul2(d, a, b, t0, t1):
        k.e(f"v_mul_f32 v{t0}, v{a+1}, v{b+1}")
        k.e(f"v_mul_f32 v{t1}, v{a+1}, v{b}")
        k.e(f"v_fma_f32 v{d}, v{a}, v{b}, -v{t0}")
        k.e(f"v_fma_f32 v{d+1}, v{a}, v{b+1}, v{t1}")
    ZR, ZI = 40, 41
    def cexp(d, tt):
        k.e(f"""
        v_mul_f32 v36, {f2u(float(tt))}, v{ZR}
        v_mul_f32 v37, {f2u(float(tt))}, v{ZI}
        v_exp_f32 v36, v36
        v_fract_f32 v37, v37
        v_cos_f32 v38, v37
        v_sin_f32 v39, v37
        s_nop 0
        v_mul_f32 v{d}, v36, v38
        v_mul_f32 v{d+1}, v36, v39
        """)
    W1, W2, W4, W8, W256, W512, W768, W1024 = 42, 44, 46, 48, 50, 52, 54, 56
    CC, XA, XB_, EA, EB, TT = 58, 60, 62, 64, 66, 68
    PK = 72
    nbar = [0]
    pend = {True: None, False: None}
    def store_row(row, re, im, isA):
        r = row if isA else row - 21
        pk = (PK if isA else PK + 2) + (r & 1)
        k.e(f"v_cvt_pk_bf16_f32 v{pk}, v{re}, {'-' if isA else ''}v{im}")
        last = (r == 20) if isA else False
        if r & 1:
            k.e(f"ds_write2st64_b32 v{AW + ((r >> 1) & 15)}, v{pk-1}, v{pk} offset0:{row-1} offset1:{row}")
        elif last:
            k.e(f"ds_write_b32 v{AW + ((r >> 1) & 15)}, v{pk} offset:{row*256}")
    k.e("s_setprio 3")
    for ps in range(2):
        if ps == 1: k.e("s_setprio 2")
        k.e(f"""
        v_lshlrev_b32 v36, 16, v{8+ps}
        v_mul_f32 v36, {c_l2e}, v36
        v_exp_f32 v36, v36
        v_lshlrev_b32 v37, 16, v{10+ps}
        v_lshlrev_b32 v{CC}, 16, v{12+ps}
        v_cvt_pk_bf16_f32 v36, v36, v36
        v_lshlrev_b32 v36, 16, v36
        v_mul_f32 v36, v36, v{DT}
        v_mul_f32 v37, v37, v{DT}
        v_mul_f32 v{ZR}, {f2u(-LOG2E)}, v36
        v_mul_f32 v{ZI}, {c_i2pi}, v37
        v_lshlrev_b32 v{CC+1}, 16, v{14+ps}
        v_mul_f32 v{CC}, v{CC}, v{DT}
        v_mul_f32 v{CC+1}, v{CC+1}, v{DT}
        v_add_f32 v{CC}, v{CC}, v{CC}
        v_add_f32 v{CC+1}, v{CC+1}, v{CC+1}
        """)
        cexp(W1, 1); cexp(W8, 8); cexp(W256, 256)
        cmul2(W2, W1, W1, 36, 37)
        cmul2(W4, W2, W2, 36, 37)
        cmul2(W512, W256, W256, 36, 37)
        cmul2(W768, W512, W256, 36, 37)
        cmul2(W1024, W512, W512, 36, 37)
        k.e(f"v_mov_b32 v{EA}, 1.0")
        k.e(f"v_mov_b32 v{EA+1}, 0")
        Bops = []
        cur, nx = EA, EB
        Bops.append(lambda cur=cur: store_row(21, cur, cur + 1, False))
        for b in range(1, 32):
            if b == 1:
                Bops.append(lambda: (k.e(f"v_mov_b32 v{EB}, v{W8}"), k.e(f"v_mov_b32 v{EB+1}, v{W8+1}"), store_row(22, EB, EB + 1, False)))
                cur, nx = EB, EA
            else:
                Bops.append(lambda cur=cur, nx=nx, b=b: (cmul2(nx, cur, W8, 76, 77), store_row(21 + b, nx, nx + 1, False)))
                cur, nx = nx, cur
        Aops = []
        Aops.append(lambda: store_row(0, CC, CC + 1, True))
        pa, pb = CC, XA
        seq = [XA, XB_]
        prev = CC
        for j in range(1, 8):
            dst = seq[j & 1]
            Aops.append(lambda dst=dst, prev=prev, j=j: (cmul2(dst, prev, W1, 78, 79), store_row(j, dst, dst + 1, True)))
            prev = dst
        Aops.append(lambda: (cmul2(XA, CC, W256, 78, 79), store_row(8, XA, XA + 1, True)))
        prev = XA
        for j in range(1, 4):
            dst = XB_ if prev == XA else XA
            Aops.append(lambda dst=dst, prev=prev, j=j: (cmul2(dst, prev, W2, 78, 79), store_row(8 + j, dst, dst + 1, True)))
            prev = dst
        Aops.append(lambda: (cmul2(XA, CC, W512, 78, 79), store_row(12, XA, XA + 1, True)))
        Aops.append(lambda: (cmul2(XB_, XA, W4, 78, 79), store_row(13, XB_, XB_ + 1, True)))
        Aops.append(lambda: (cmul2(XA, CC, W768, 78, 79), store_row(14, XA, XA + 1, True)))
        Aops.append(lambda: (cmul2(XB_, XA, W4, 78, 79), store_row(15, XB_, XB_ + 1, True)))
        Aops.append(lambda: (cmul2(XA, CC, W1024, 78, 79), store_row(16, XA, XA + 1, True)))
        Aops.append(lambda: (cmul2(XB_, XA, W256, 78, 79), store_row(17, XB_, XB_ + 1, True)))
        Aops.append(lambda: (cmul2(TT, XA, W512, 78, 79), store_row(18, TT, TT + 1, True)))
        Aops.append(lambda: (cmul2(XB_, XA, W768, 78, 79), store_row(19, XB_, XB_ + 1, True)))
        Aops.append(lambda: (cmul2(TT, XA, W1024, 78, 79), store_row(20, TT, TT + 1, True)))
        ia = 0
        for ib, bo in enumerate(Bops):
            bo()
            if ia < len(Aops) and (ib * len(Aops)) // len(Bops) >= ia:
                Aops[ia](); ia += 1
        while ia < len(Aops):
            Aops[ia](); ia += 1
        k.e("s_waitcnt lgkmcnt(0)")
        if prof: prof.mark()
        FA, FB = 80, 96
        for ks in range(8):
            fa = FA + 4 * (ks & 3); fb = FB + 4 * (ks & 3)
            k.e(f"v_xor_b32 v36, {32*ks}, v{RB}")
            k.e(f"ds_read_b128 {vr(fa,4)}, v36")
            k.e(f"ds_read_b128 {vr(fb,4)}, v36 offset:{21*256}")
            if ks % 4 == 3:
                k.e("s_waitcnt lgkmcnt(0)")
                for q in range(ks - 3, ks + 1):
                    c = "0" if (ps == 0 and q == 0) else vr(D, 16)
                    k.e(f"v_mfma_f32_32x32x16_bf16 {vr(D,16)}, {vr(FA+4*(q&3),4)}, {vr(FB+4*(q&3),4)}, {c}")
    k.e("s_setprio 1")
    if prof: prof.mark()
    k.e(f"""
    v_and_b32 v6, 31, v2
    v_lshrrev_b32 v7, 5, v2
    v_lshlrev_b32 v40, 4, v6
    v_lshl_add_u32 v40, v7, 3, v40
    v_add_u32 v40, s{lb}, v40
    v_lshlrev_b32 v41, 3, v6
    v_add_u32 v41, 512, v41
    v_lshlrev_b32 v42, 2, v6
    v_add_u32 v42, 768, v42
    v_cmp_eq_u32 vcc, 1, v7
    v_mov_b32 v44, 4
    v_mov_b32 v45, 128
    v_cndmask_b32 v41, v41, v42, vcc
    v_cndmask_b32 v44, v44, v45, vcc
    v_add_u32 v41, s{lb}, v41
    v_add_u32 v42, v41, v44
    v_lshlrev_b32 v43, 1, v6
    v_add_u32 v43, 1024, v43
    v_mov_b32 v45, 1400
    v_mov_b32 v46, 1280
    v_cmp_eq_u32 s[56:57], 0, v6
    s_nop 1
    v_cndmask_b32 v45, v45, v46, s[56:57]
    v_cndmask_b32 v43, v43, v45, vcc
    v_add_u32 v43, s{lb}, v43
    """)
    k.nop(8)
    for j in range(6):
        k.e(f"v_cvt_pk_bf16_f32 v{48+j}, v{D+2*j}, v{D+2*j+1}")
    k.e("""
    ds_write_b16 v40, v48
    ds_write_b16_d16_hi v40, v48 offset:2
    ds_write_b16 v40, v49 offset:4
    ds_write_b16_d16_hi v40, v49 offset:6
    ds_write_b16 v41, v50
    ds_write_b16_d16_hi v41, v50 offset:2
    ds_write_b16 v42, v51
    ds_write_b16_d16_hi v42, v51 offset:2
    ds_write_b16 v43, v52
    ds_write_b16_d16_hi v43, v52 offset:64
    ds_write_b16 v43, v53 offset:128
    ds_write_b16_d16_hi v43, v53 offset:192
    """)
    E = 60
    k.e(f"""
    v_lshlrev_b32 v6, 3, v2
    v_sub_u32 v6, 2047, v6
    v_add_u32 v40, -1, v6
    v_lshl_or_b32 v40, v40, 16, v6
    s_lshr_b32 s58, s{lb}, 1
    v_cmp_gt_u32 s[56:57], 32, v2
    v_mov_b32 v41, 0
    v_mov_b32 v42, 0x00010001
    v_mov_b32 v43, s58
    v_add_u32 v44, 128, v43
    v_cndmask_b32 v41, v41, v42, s[56:57]
    v_cndmask_b32 v43, v43, v44, s[56:57]
    v_lshl_or_b32 v43, v43, 16, v43
    s_add_u32 s59, s58, 384
    s_lshl_b32 s57, s59, 16
    s_or_b32 s59, s59, s57
    s_add_u32 s58, s58, 256
    s_lshl_b32 s57, s58, 16
    s_or_b32 s58, s58, s57
    v_mov_b32 v45, s59
    v_mov_b32 v46, s58
    v_mov_b32 v47, 0x00030003
    v_mov_b32 v48, 0x00020002
    s_waitcnt lgkmcnt(0)
    """)
    k.e("s_setprio 0")
    if prof: prof.mark()
    n = 0
    for i in range(4):
        for d in range(4):
            a_ = 80 + 4 * (n & 3); n += 1
            off = (-(512 * i + 2 * d) * 0x10001) & 0xffffffff
            k.e(f"v_add_u32 v{a_}, {off}, v40")
            if i < 3:
                sh = 3 if i < 2 else 2
                c = (1 << sh >> 1) - 1
                k.e(f"""
                v_lshrrev_b32 v{a_+1}, {sh}, v{a_}
                v_and_b32 v{a_+1}, 0x00010001, v{a_+1}
                v_add_u32 v{a_}, {c * 0x10001}, v{a_}
                v_add_u32 v{a_}, v{a_}, v{a_+1}
                v_pk_lshrrev_b16 v{a_}, v{47 if sh == 3 else 48}, v{a_}
                v_add_u32 v{a_}, v{a_}, v{45 if i < 2 else 46}
                """)
            else:
                k.e(f"""
                v_lshrrev_b32 v{a_+1}, 1, v{a_}
                v_and_b32 v{a_+1}, v41, v{a_+1}
                v_add_u32 v{a_}, v{a_}, v{a_+1}
                v_pk_lshrrev_b16 v{a_}, v41, v{a_}
                v_add_u32 v{a_}, v{a_}, v43
                """)
            k.e(f"""
            v_add_u32 v{a_+1}, v{a_}, v{a_}
            v_and_b32 v{a_+1}, 0x1fffe, v{a_+1}
            v_lshrrev_b32 v{a_}, 15, v{a_}
            v_and_b32 v{a_}, 0x1fffe, v{a_}
            ds_read_u16 v{E+4*i+d}, v{a_+1}
            ds_read_u16_d16_hi v{96+4*i+d}, v{a_}
            """)
            if n % 4 == 0: k.e("s_waitcnt lgkmcnt(4)")
    k.e("s_waitcnt lgkmcnt(0)")
    for jj in range(16):
        k.e(f"v_and_b32 v{96+jj}, 0xffff0000, v{96+jj}")
        k.e(f"v_or_b32 v{E+jj}, v{E+jj}, v{96+jj}")
    k.e("s_nop 1")
    for i in range(4):
        k.e(f"v_mov_b32_dpp v{76+i}, v{E+4*i} wave_shl:1 row_mask:0xf bank_mask:0xf bound_ctrl:0")
    for i in range(3):
        k.e(f"v_readlane_b32 s56, v{E+4*(i+1)}, 0")
        k.e("s_nop 3")
        k.e(f"v_writelane_b32 v{76+i}, s56, 63")
    if prof: prof.mark()
    OO = 96
    for i in range(4):
        for d in range(4):
            nx = E + 4*i + d + 1 if d < 3 else 76 + i
            k.e(f"v_alignbit_b32 v{OO+4*i+d}, v{nx}, v{E+4*i+d}, 16")
    srd(k, S, 54, WS_END)
    k.e(f"""
    s_mul_i32 s40, s{ch}, {KRC}
    s_add_u32 s40, s40, {KR}
    s_add_u32 s41, s40, {KRH}
    v_lshlrev_b32 v7, 4, v2
    v_mov_b32 v8, 0
    v_mov_b32 v9, 0
    v_mov_b32 v10, 0
    v_mov_b32 v11, 0
    """)
    for i in range(4):
        k.e(f"buffer_store_dwordx4 {vr(E+4*i,4)}, v7, s[{S}:{S+3}], s40 offen offset:{1024*i}")
        k.e(f"buffer_store_dwordx4 {vr(OO+4*i,4)}, v7, s[{S}:{S+3}], s41 offen offset:{1024*i}")
    k.e(f"""
    s_add_u32 s40, s40, 4096
    s_add_u32 s41, s41, 4096
    s_mul_i32 s42, s{ch}, {UPC}
    s_add_u32 s42, s42, {UP}
    v_lshrrev_b32 v6, 5, v2
    v_mul_u32_u24 v6, 1536, v6
    v_and_b32 v12, 31, v2
    v_lshl_add_u32 v6, v12, 4, v6
    buffer_store_dwordx4 v[8:11], v6, s[{S}:{S+3}], s42 offen
    buffer_store_dwordx4 v[8:11], v6, s[{S}:{S+3}], s42 offen offset:3072
    s_mov_b64 exec, 0xff
    buffer_store_dwordx4 v[8:11], v7, s[{S}:{S+3}], s40 offen
    buffer_store_dwordx4 v[8:11], v7, s[{S}:{S+3}], s41 offen
    s_mov_b64 exec, -1
    """)

PD = 4
def gen_conv(k, ch_sgpr, prof=None, var=()):
    lane = 2
    k.c("---- SSM convolution ----")
    k.e(f"""
    s_load_dwordx2 s[54:55], s[0:1], 96
    v_and_b32 v3, 31, v{lane}
    v_lshrrev_b32 v4, 5, v{lane}
    v_and_b32 v5, 19, v3
    v_bfe_u32 v6, v3, 2, 1
    v_lshl_or_b32 v5, v6, 3, v5
    v_bfe_u32 v6, v3, 3, 1
    v_lshl_or_b32 v5, v6, 2, v5
    v_and_b32 v6, 1, v5
    v_xor_b32 v6, 1, v6
    v_sub_u32 v7, 2047, v5
    v_sub_u32 v7, v7, v6
    v_lshl_add_u32 v7, v4, 3, v7
    v_lshlrev_b32 v7, 1, v7
    v_mul_u32_u24 v6, {KRH}, v6
    v_add_u32 v7, v7, v6
    v_add_u32 v8, {KR - 4032}, v7
    v_mul_u32_u24 v6, 1536, v4
    v_lshl_add_u32 v6, v3, 4, v6
    v_add_u32 v9, {UP + 512 - 1008}, v6
    v_lshlrev_b32 v6, 6, v3
    v_lshl_add_u32 v10, v4, 4, v6
    s_mul_i32 s44, s{ch_sgpr}, {KRC}
    s_mul_i32 s45, s{ch_sgpr}, {UPC}
    v_add_u32 v11, s44, v8
    v_add_u32 v12, s45, v9
    v_add_u32 v13, 512, v12
    s_mov_b32 s47, 4032
    s_mov_b32 s48, 1008
    s_waitcnt lgkmcnt(0)
    """)
    srd(k, 60, 54, WS_END)
    ACC = 16; FR = 48
    def loads(slot, both):
        b = FR + 24 * slot
        k.e(f"buffer_load_dwordx4 {vr(b,4)}, v11, s[60:63], s47 offen")
        k.e(f"buffer_load_dwordx4 {vr(b+8,4)}, v13, s[60:63], s48 offen")
        if both: k.e(f"buffer_load_dwordx4 {vr(b+16,4)}, v12, s[60:63], s48 offen")
        k.e(f"buffer_load_dwordx4 {vr(b+4,4)}, v11, s[60:63], s47 offen offset:32")
        k.e(f"buffer_load_dwordx4 {vr(b+12,4)}, v13, s[60:63], s48 offen offset:3072")
        if both: k.e(f"buffer_load_dwordx4 {vr(b+20,4)}, v12, s[60:63], s48 offen offset:3072")
        k.e("s_sub_u32 s47, s47, 64")
        k.e("s_max_i32 s47, s47, 0")
        k.e("s_sub_u32 s48, s48, 16")
        k.e("s_max_i32 s48, s48, 0")
    for i in range(32): k.e(f"v_mov_b32 v{ACC+i}, 0")
    for slot in range(PD): loads(slot, True)
    A0, A1 = vr(ACC, 16), vr(ACC + 16, 16)
    k.e("s_mov_b32 s49, 0")
    l1 = k.newlabel("c1")
    k.label(l1)
    for slot in range(PD):
        b = FR + 24 * slot
        n = 6 * (PD - 1)
        k.e(f"s_waitcnt vmcnt({n + 3})")
        k.e(f"v_mfma_f32_32x32x16_bf16 {A1}, {vr(b,4)}, {vr(b+8,4)}, {A1}")
        if "csleep" in var: k.e("s_sleep 1")
        k.e(f"v_mfma_f32_32x32x16_bf16 {A0}, {vr(b,4)}, {vr(b+16,4)}, {A0}")
        if "csleep" in var: k.e("s_sleep 1")
        k.e(f"s_waitcnt vmcnt({n})")
        k.e(f"v_mfma_f32_32x32x16_bf16 {A1}, {vr(b+4,4)}, {vr(b+12,4)}, {A1}")
        if "csleep" in var: k.e("s_sleep 1")
        k.e(f"v_mfma_f32_32x32x16_bf16 {A0}, {vr(b+4,4)}, {vr(b+20,4)}, {A0}")
        if "csleep" in var: k.e("s_sleep 1")
        loads(slot, True)
    k.e(f"""
    s_add_u32 s49, s49, {PD}
    s_cmp_lt_u32 s49, 32
    s_cbranch_scc1 {l1}
    s_waitcnt vmcnt(0)
    """)
    l2 = k.newlabel("c2")
    k.label(l2)
    for slot in range(PD):
        b = FR + 24 * slot
        n = 4 * (PD - 1)
        k.e(f"s_waitcnt vmcnt({n + 2})")
        k.e(f"v_mfma_f32_32x32x16_bf16 {A1}, {vr(b,4)}, {vr(b+8,4)}, {A1}")
        k.e(f"s_waitcnt vmcnt({n})")
        k.e(f"v_mfma_f32_32x32x16_bf16 {A1}, {vr(b+4,4)}, {vr(b+12,4)}, {A1}")
        loads(slot, False)
    k.e(f"""
    s_add_u32 s49, s49, {PD}
    s_cmp_lt_u32 s49, 64
    s_cbranch_scc1 {l2}
    s_mul_i32 s44, s{ch_sgpr}, 4096
    s_add_u32 s44, s44, {YT}
    s_add_u32 s45, s44, 2048
    s_waitcnt vmcnt(0)
    """)
    k.nop(8)
    for nt in range(2):
        for g in range(2):
            r = FR + 8 * nt + 4 * g
            for i in range(4):
                k.e(f"v_cvt_pk_bf16_f32 v{r+i}, v{ACC+16*nt+8*g+2*i}, v{ACC+16*nt+8*g+2*i+1}")
            k.e(f"buffer_store_dwordx4 {vr(r,4)}, v10, s[60:63], s{44+nt} offen offset:{32*g}")

FIN_LDS = 2 * 192 * 128
def gen_fin(k, wg="s2"):
    lane = 2; t = 32
    k.c("---- SSM finalisation ----")
    k.e(f"""
    s_load_dwordx2 s[4:5], s[0:1], 0
    s_load_dwordx2 s[6:7], s[0:1], 48
    s_load_dwordx2 s[26:27], s[0:1], 80
    s_load_dwordx2 s[28:29], s[0:1], 96
    v_lshrrev_b32 v1, 6, v0
    v_and_b32 v2, 63, v0
    s_mul_i32 s21, {wg}, 21846
    v_readfirstlane_b32 s38, v1
    s_lshr_b32 s21, s21, 16
    s_mul_i32 s22, s21, 3
    s_sub_u32 s22, {wg}, s22
    """)
    k.e(f"""
    s_mul_i32 s24, s22, {192*4096}
    s_lshl_b32 s25, s21, 7
    s_add_u32 s24, s24, s25
    s_mul_i32 s25, s38, {48*4096}
    s_add_u32 s24, s24, s25
    s_add_u32 s24, s24, {YT}
    s_mul_i32 s30, s38, 6144
    v_lshrrev_b32 v{t}, 3, v{lane}
    v_bfe_u32 v{t+1}, v{lane}, 4, 1
    v_lshlrev_b32 v{t+1}, 1, v{t+1}
    v_and_b32 v{t+2}, 7, v{lane}
    v_xor_b32 v{t+2}, v{t+2}, v{t+1}
    v_lshlrev_b32 v{t}, 12, v{t}
    v_lshl_add_u32 v{t+3}, v{t+2}, 4, v{t}
    v_xor_b32 v{t+2}, 4, v{t+2}
    v_lshl_add_u32 v{t+4}, v{t+2}, 4, v{t}
    s_waitcnt lgkmcnt(0)
    """)
    srd(k, 8, 28, WS_END)
    srd(k, 12, 4, UB)
    srd(k, 16, 26, OUTB)
    srd(k, 32, 6, 1152)
    for i in range(6):
        k.e(f"""
        s_add_u32 m0, s30, {i*1024}
        s_add_u32 s31, s24, {i*8*4096}
        buffer_load_dwordx4 v{t+3 if i % 2 == 0 else t+4}, s[8:11], s31 offen lds
        """)
    k.e(f"""
    s_mul_i32 s39, s22, {192*2048}
    s_lshl_b32 s25, s21, 7
    s_add_u32 s39, s39, s25
    s_mul_i32 s25, s38, {48*2048}
    s_add_u32 s39, s39, s25
    s_add_u32 s39, s39, {YT2 - 2048}
    s_cmp_ge_u32 s21, 16
    s_cselect_b32 s39, s39, 0x40000000
    v_lshrrev_b32 v{t+9}, 3, v{lane}
    v_lshlrev_b32 v{t+9}, 11, v{t+9}
    v_sub_u32 v{t+10}, v{t+4}, v{t}
    v_sub_u32 v{t+11}, v{t+3}, v{t}
    v_add_u32 v{t+10}, v{t+10}, v{t+9}
    v_add_u32 v{t+11}, v{t+11}, v{t+9}
    """)
    for i in range(6):
        k.e(f"""
        s_add_u32 m0, s30, {24576 + i*1024}
        s_add_u32 s31, s39, {i*8*2048}
        buffer_load_dwordx4 v{t+11 if i % 2 == 0 else t+10}, s[8:11], s31 offen lds
        """)
    k.e(f"""
    v_lshrrev_b32 v{t}, 4, v{lane}
    v_bfe_u32 v{t+1}, v{lane}, 2, 2
    v_lshl_add_u32 v{t+2}, v{t}, 3, v{t+1}
    v_lshlrev_b32 v{t+2}, 7, v{t+2}
    v_bfe_u32 v{t+5}, v{lane}, 1, 1
    s_lshl_b32 s31, s38, 1
    v_add_u32 v{t+5}, s31, v{t+5}
    v_bfe_u32 v{t+6}, v{lane}, 3, 1
    v_lshlrev_b32 v{t+6}, 1, v{t+6}
    v_and_b32 v{t+7}, 1, v{t}
    v_lshl_or_b32 v{t+6}, v{t+7}, 2, v{t+6}
    v_xor_b32 v{t+5}, v{t+5}, v{t+6}
    v_lshl_add_u32 v{t+2}, v{t+5}, 4, v{t+2}
    v_and_b32 v{t+5}, 1, v{lane}
    v_lshl_add_u32 v{t+2}, v{t+5}, 3, v{t+2}
    v_and_b32 v{t+5}, 15, v{lane}
    s_lshl_b32 s31, s21, 6
    s_lshl_b32 s36, s38, 4
    s_add_u32 s31, s31, s36
    v_add_u32 v{t+5}, s31, v{t+5}
    v_mul_u32_u24 v{t+6}, 1152, v{t+5}
    v_lshl_add_u32 v{t+6}, v{t}, 4, v{t+6}
    v_mul_u32_u24 v{t+7}, 2304, v{t+5}
    v_lshl_add_u32 v{t+7}, v{t}, 4, v{t+7}
    v_lshlrev_b32 v{t+8}, 4, v{t}
    s_mul_i32 s36, s22, 384
    """)
    U = 48; DD = 72
    for oq in range(6):
        k.e(f"buffer_load_dwordx4 {vr(U+4*oq,4)}, v{t+6}, s[12:15], s36 offen offset:{64*oq}")
        k.e(f"buffer_load_dwordx4 {vr(DD+4*oq,4)}, v{t+8}, s[32:35], s36 offen offset:{64*oq}")
    k.e("s_waitcnt vmcnt(12)")
    k.e("s_barrier")
    k.e("s_mov_b32 s37, 0xffff0000")
    for oq in range(6):
        Y = 8
        k.e(f"""
        ds_read_b64_tr_b16 {vr(Y,2)}, v{t+2} offset:{oq*4096}
        ds_read_b64_tr_b16 {vr(Y+2,2)}, v{t+2} offset:{oq*4096 + 512}
        s_waitcnt vmcnt({2*(5-oq) + min(oq,1)*0}) lgkmcnt(0)
        """) if False else None
        k.e(f"""
        ds_read_b64_tr_b16 {vr(Y,2)}, v{t+2} offset:{oq*4096}
        ds_read_b64_tr_b16 {vr(Y+2,2)}, v{t+2} offset:{oq*4096 + 512}
        ds_read_b64_tr_b16 {vr(20,2)}, v{t+2} offset:{24576 + oq*4096}
        ds_read_b64_tr_b16 {vr(22,2)}, v{t+2} offset:{24576 + oq*4096 + 512}
        s_waitcnt vmcnt({2*(5-oq) + oq})
        """)
        for i in range(4):
            u = U + 4*oq + i; d = DD + 4*oq + i
            k.e(f"""
            v_lshlrev_b32 v12, 16, v{u}
            v_and_b32 v13, s37, v{u}
            v_lshlrev_b32 v14, 16, v{d}
            v_and_b32 v15, s37, v{d}
            v_mul_f32 v12, v12, v14
            v_mul_f32 v13, v13, v15
            v_cvt_pk_bf16_f32 v{16+i}, v12, v13
            """)
        k.e("s_waitcnt lgkmcnt(0)")
        for i in range(4):
            k.e(f"""
            v_lshlrev_b32 v12, 16, v{Y+i}
            v_and_b32 v13, s37, v{Y+i}
            v_lshlrev_b32 v14, 16, v{20+i}
            v_and_b32 v15, s37, v{20+i}
            v_add_f32 v12, v12, v14
            v_add_f32 v13, v13, v15
            v_cvt_pk_bf16_f32 v{Y+i}, v12, v13
            """)
        O_ = 24 + 4 * (oq & 1)
        for i in range(4):
            k.e(f"""
            v_lshlrev_b32 v12, 16, v{16+i}
            v_and_b32 v13, s37, v{16+i}
            v_lshlrev_b32 v14, 16, v{Y+i}
            v_and_b32 v15, s37, v{Y+i}
            v_add_f32 v12, v12, v14
            v_add_f32 v13, v13, v15
            v_cvt_pk_bf16_f32 v{O_+i}, v12, v13
            """)
        k.e(f"buffer_store_dwordx4 {vr(O_,4)}, v{t+7}, s[16:19], s36 offen offset:{64*oq}")


def gen_kgen_with_barriers(k, chan_sgpr, ldsbase_sgpr, nbar):
    tmp = K(k.name + "_kg")
    tmp.uid = k.uid + 1000
    gen_kgen(tmp, chan_sgpr, ldsbase_sgpr)
    k.uid = tmp.uid
    lines = tmp.lines
    idx = [i for i, l in enumerate(lines) if l.strip() and not l.strip().startswith(";") and not l.strip().endswith(":")]
    n = len(idx)
    first = next(i for i in idx if "s_waitcnt vmcnt(0)" in lines[i])
    rest = [i for i in idx if i > first]
    pos = [first] + [rest[int(len(rest) * 0.7 * j / (nbar - 1))] for j in range(1, nbar)]
    out = []
    ps = set(pos)
    assert len(ps) == nbar
    for i, l in enumerate(lines):
        out.append(l)
        if i in ps: out.append("    s_barrier")
    k.lines += out


UTW_LDS = 4096
def gen_utrans_wave(k, task_sgpr, lds_sgpr):
    T = task_sgpr; LB = lds_sgpr
    k.c("---- u transposition (per wave) ----")
    k.e(f"""
    s_load_dwordx2 s[4:5], s[0:1], 0
    s_load_dwordx2 s[6:7], s[0:1], 96
    s_mul_i32 s22, s{T}, 1821
    s_lshr_b32 s22, s22, 16
    s_mul_i32 s23, s22, 36
    s_sub_u32 s23, s{T}, s23
    s_mul_i32 s24, s22, {128*1152}
    s_lshl_b32 s25, s23, 5
    s_add_u32 s24, s24, s25
    v_lshrrev_b32 v3, 1, v2
    v_mul_u32_u24 v3, 1152, v3
    v_and_b32 v4, 1, v2
    v_lshl_add_u32 v3, v4, 4, v3
    s_waitcnt lgkmcnt(0)
    """)
    srd(k, 8, 4, UB)
    srd(k, 12, 6, WS_END)
    for i in range(4):
        k.e(f"""
        s_add_u32 m0, s{LB}, {i*1024}
        s_add_u32 s26, s24, {i*32*1152}
        buffer_load_dwordx4 v3, s[8:11], s26 offen lds
        """)
    k.e(f"""
    v_mov_b32 v8, 0
    v_mov_b32 v9, 0
    v_mov_b32 v10, 0
    v_mov_b32 v11, 0
    v_and_b32 v5, 15, v2
    v_mul_u32_u24 v5, {UPC}, v5
    v_lshrrev_b32 v6, 4, v2
    v_mul_u32_u24 v7, 1536, v6
    v_add_u32 v7, v7, v5
    s_mul_i32 s27, s23, {16*UPC}
    s_add_u32 s27, s27, {UP}
    s_lshl_b32 s28, s22, 5
    s_add_u32 s28, s28, s27
    buffer_store_dwordx4 v[8:11], v7, s[12:15], s28 offen
    buffer_store_dwordx4 v[8:11], v7, s[12:15], s28 offen offset:16
    v_lshl_add_u32 v5, v6, 4, v5
    s_lshl_b32 s28, s22, 6
    s_add_u32 s28, s28, s27
    s_add_u32 s28, s28, 512
    v_bfe_u32 v12, v2, 2, 2
    v_lshl_add_u32 v12, v6, 5, v12
    v_lshlrev_b32 v12, 5, v12
    v_and_b32 v13, 3, v2
    v_lshl_add_u32 v12, v13, 3, v12
    v_add_u32 v12, s{LB}, v12
    s_waitcnt vmcnt(2)
    """)
    for p in range(4):
        b = 16 + 4 * p
        k.e(f"ds_read_b64_tr_b16 {vr(b,2)}, v12 offset:{p*8*32}")
        k.e(f"ds_read_b64_tr_b16 {vr(b+2,2)}, v12 offset:{p*8*32 + 4*32}")
    for p in range(4):
        b = 16 + 4 * p
        k.e(f"s_waitcnt lgkmcnt({6 - 2*p})")
        k.e(f"buffer_store_dwordx4 {vr(b,4)}, v5, s[12:15], s28 offen offset:{p*1536 if p*1536 < 4096 else 0}" if p < 3 else f"s_add_u32 s28, s28, 4608\nbuffer_store_dwordx4 {vr(b,4)}, v5, s[12:15], s28 offen")


UTA_LDS = 64 * 288
def gen_utrans_aux(k, tb64_sgpr, db_sgpr, lds_sgpr, after_loads=None):
    TB = tb64_sgpr; DB = db_sgpr; LB = lds_sgpr
    k.c("---- u transposition (aux wave) ----")
    k.e(f"""
    s_load_dwordx2 s[4:5], s[0:1], 0
    s_load_dwordx2 s[6:7], s[0:1], 96
    s_mul_i32 s24, s{TB}, {64*1152}
    s_mul_i32 s25, s{DB}, 288
    s_add_u32 s24, s24, s25
    s_mov_b32 s30, 3641
    s_waitcnt lgkmcnt(0)
    """)
    srd(k, 8, 4, UB)
    srd(k, 12, 6, WS_END)
    for i in range(18):
        k.e(f"""
        v_add_u32 v4, {64*i}, v2
        v_mul_lo_u32 v5, v4, s30
        v_lshrrev_b32 v5, 16, v5
        v_mul_u32_u24 v6, 18, v5
        v_sub_u32 v6, v4, v6
        v_mul_u32_u24 v5, 1152, v5
        v_lshl_add_u32 v5, v6, 4, v5
        s_add_u32 m0, s{LB}, {i*1024}
        s_nop 0
        buffer_load_dwordx4 v5, s[8:11], s24 offen lds
        """)
    if after_loads: after_loads()
    k.e(f"""
    v_and_b32 v4, 15, v2
    v_mul_u32_u24 v4, {UPC}, v4
    v_lshrrev_b32 v5, 4, v2
    s_mul_i32 s27, s{DB}, {144*UPC}
    s_add_u32 s27, s27, {UP}
    """)
    k.e(f"""
    v_and_b32 v7, 1, v5
    v_lshrrev_b32 v12, 1, v5
    v_lshlrev_b32 v13, 5, v7
    v_lshl_add_u32 v13, v12, 3, v13
    v_bfe_u32 v14, v2, 2, 2
    v_add_u32 v13, v13, v14
    v_mul_u32_u24 v13, 288, v13
    v_and_b32 v14, 3, v2
    v_lshl_add_u32 v13, v14, 3, v13
    v_add_u32 v13, s{LB}, v13
    v_mul_u32_u24 v12, 1536, v12
    v_lshl_add_u32 v12, v7, 4, v12
    v_add_u32 v12, v12, v4
    s_lshl_b32 s28, s{TB}, 5
    s_add_u32 s28, s28, s27
    s_add_u32 s28, s28, 512
    s_waitcnt vmcnt(0)
    """)
    for dg in range(9):
        for pp in range(2):
            b = 16 + 4 * ((2 * dg + pp) & 3)
            k.e(f"ds_read_b64_tr_b16 {vr(b,2)}, v13 offset:{32*dg + pp*16*288}")
            k.e(f"ds_read_b64_tr_b16 {vr(b+2,2)}, v13 offset:{32*dg + pp*16*288 + 4*288}")
            k.e("s_waitcnt lgkmcnt(0)")
            k.e(f"buffer_store_dwordx4 {vr(b,4)}, v12, s[12:15], s28 offen offset:{pp*3072}")
        k.e(f"s_add_u32 s28, s28, {16*UPC}")
```

```python
import sys
from g import *
from build import assemble
import k_qkv, k_attn, k_oproj
STAMPS = "stamps" in sys.argv
PROFON = "prof" in sys.argv
var = [a[2:] for a in sys.argv if a.startswith('v=')]
kernels = []; launches = []
def make(name, idx, nwg, block, lds, nv, body):
    k = K(name)
    if STAMPS: stamp_id(k, 8); stamp_begin(k)
    k.e(f"s_cmp_ge_u32 s2, {nwg}")
    k.e(f"s_cbranch_scc1 L_{name}_exit")
    PR = Prof(k, PROFON, idx)
    if PR.on:
        stamp_id(k, 8)
        k.e("s_memtime s[56:57]\ns_waitcnt lgkmcnt(0)\ns_mov_b32 s83, s56\ns_memrealtime s[56:57]\ns_waitcnt lgkmcnt(0)\ns_mov_b32 s55, s56")
    body(k, PR if PR.on else None)
    if PR.on:
        PR.mark(); k.e("s_mov_b32 s82, s83"); PR.n = 23; PR.dump()
    if STAMPS: stamp_end(k, idx)
    k.label(f"L_{name}_exit")
    k.e("s_endpgm")
    kernels.append((k, nv, 96)); launches.append((name, nwg, block, lds))

import k_ssm
K1_LDS = max(k_qkv.GEMM_LDS, 9 * k_ssm.KG_LDS_WAVE + 2 * k_ssm.UTA_LDS)
def k1_body(k, p):
    lut = k.newlabel("ut"); lkg = k.newlabel("kg"); lend = k.newlabel("k1end")
    k.e("""
    v_lshrrev_b32 v1, 6, v0
    v_and_b32 v2, 63, v0
    s_nop 0
    v_readfirstlane_b32 s49, v1
    s_cmp_ge_u32 s2, 192
    """)
    k.e(f"s_cbranch_scc1 {lkg}")
    lpf = k.newlabel("pf")
    k.e("s_cmp_ge_u32 s49, 8")
    k.e(f"s_cbranch_scc1 {lpf}")
    k_qkv.gen_qkv(k, p)
    k.e(f"s_branch {lend}")
    k.label(lpf)
    if "nopf" in var:
        for _ in range(10): k.e("s_barrier") if False else None
    else:
        k_qkv.gen_prefetch(k, 49, k_qkv.GEMM_LDS, first_after=(0 if "pf0" in var else 1))
    k.e(f"s_branch L_{k.name}_exit")
    k.label(lkg)
    k.e("s_cmp_ge_u32 s49, 9")
    k.e(f"s_cbranch_scc1 {lut}")
    k.e(f"""
    s_sub_u32 s20, s2, 192
    s_mul_i32 s20, s20, 9
    s_add_u32 s20, s20, s49
    s_mul_i32 s21, s49, {k_ssm.KG_LDS_WAVE}
    """)
    if p: p.n = 0
    k_ssm.gen_kgen(k, 20, 21, p)
    k.e(f"s_branch {lend}")
    k.label(lut)
    k.e(f"""
    s_sub_u32 s40, s2, 192
    s_and_b32 s41, s40, 3
    s_lshr_b32 s40, s40, 2
    s_lshl_b32 s40, s40, 1
    s_sub_u32 s42, s49, 9
    s_add_u32 s40, s40, s42
    s_mul_i32 s42, s42, {k_ssm.UTA_LDS}
    s_add_u32 s42, s42, {9 * k_ssm.KG_LDS_WAVE}
    """)
    k_ssm.gen_utrans_aux(k, 40, 41, 42)
    k.label(lend)
def k3_body(k, p):
    lf = k.newlabel("fin"); lend = k.newlabel("k3end")
    k.e("s_cmp_ge_u32 s2, 144")
    k.e(f"s_cbranch_scc1 {lf}")
    k_oproj.gen_oproj(k, p)
    k.e(f"s_branch {lend}")
    k.label(lf)
    k.e("""
    v_lshrrev_b32 v1, 6, v0
    s_nop 0
    v_readfirstlane_b32 s49, v1
    s_nop 3
    s_cmp_ge_u32 s49, 4
    """)
    k.e(f"s_cbranch_scc1 L_{k.name}_exit")
    k.e("s_sub_u32 s50, s2, 144")
    k_ssm.gen_fin(k, wg="s50")
    k.label(lend)
make("k1_kernel", 0, 256, 704, K1_LDS, 128, k1_body)
make("k2_kernel", 1, 256, 768, k_attn.ATT_LDS, k_attn.NV_K2, lambda k, p: k_attn.gen_k2(k, p, var=var))
make("k3_kernel", 2, 240, 512, k_oproj.OP_LDS, 100, k3_body)
txt, nerr = assemble(kernels, launches)
open(sys.argv[1] if len(sys.argv) > 1 else "out.s", "w").write(txt)
print("lint errors:", nerr)
```

```python
from g import *
from sb import SB
from layout import *
from k_qkv import srd, f2u

QF, Q2A, Q2B = 4, 8, 10
KF, KX = 12, 16
V0, V1 = 20, 24
P = 28
SA, SBUF = 36, 52
O = 68
vK, vK2, vV = 84, 85, 86
T0 = 88
CA = 100
CR = 116
vA, vU, vY = 156, 157, 158
NV_K2 = 160
ATT_LDS = 163840

def koff(tt): return (tt >> 3) * CH + (tt & 7) * 1024
def kxoff(q): return (q >> 1) * CH + (q & 1) * 512
def voff(ks): return (ks >> 4) * CH + (ks & 15) * VKS

def gen_attn(k, prof=None, var=()):
    t = T0
    lane = 2
    conv = "noconv" not in var
    k.c("---- attention ----")
    k.e(f"""
    s_load_dwordx2 s[4:5], s[0:1], 96
    s_and_b32 s20, s2, 7
    s_lshr_b32 s21, s2, 3
    s_and_b32 s22, s21, 3
    s_lshl_b32 s20, s20, 2
    s_add_u32 s20, s20, s22
    s_lshr_b32 s21, s21, 2
    s_lshl_b32 s21, s21, 3
    s_add_u32 s21, s21, s19
    s_lshl_b32 s26, s20, 16
    s_lshl_b32 s27, s21, 10
    s_add_u32 s26, s26, s27
    s_add_u32 s26, s26, {QM}
    s_lshl_b32 s28, s20, 13
    s_lshl_b32 s27, s21, 7
    s_add_u32 s28, s28, s27
    s_add_u32 s28, s28, {Q2}
    v_lshlrev_b32 v{vK}, 4, v{lane}
    v_and_b32 v{t}, 31, v{lane}
    v_lshlrev_b32 v{t+1}, 2, v{t}
    v_mov_b32 v{t+2}, -1
    v_cmp_gt_u32 vcc, 32, v{lane}
    v_mov_b32 v{Q2A+1}, 0
    v_mov_b32 v{Q2B}, 0
    v_cndmask_b32 v{t+2}, v{t+2}, v{t+1}, vcc
    """)
    k.e("s_waitcnt lgkmcnt(0)")
    if prof: prof.mark()
    srd(k, 8, 4, WS_END)
    k.e(f"buffer_load_dwordx4 {vr(QF,4)}, v{vK}, s[8:11], s26 offen")
    k.e(f"buffer_load_dword v{Q2A}, v{t+2}, s[8:11], s28 offen")
    if "b12" in var:
        k.e(f"""
        s_mul_i32 s24, s20, {HB}
        s_lshl_b32 s25, s19, 11
        s_add_u32 s25, s25, 16384
        s_add_u32 s24, s24, s25
        s_mov_b32 m0, s25
        s_add_u32 s27, s24, 1024
        buffer_load_dwordx4 v{vK}, s[8:11], s24 offen lds
        s_add_u32 m0, s25, 1024
        s_nop 0
        buffer_load_dwordx4 v{vK}, s[8:11], s27 offen lds
        """)
    if conv:
        l6 = k.newlabel("u6"); lu = k.newlabel("ud"); l7 = k.newlabel("u7"); l8 = k.newlabel("u8")
        k.e(f"""
        s_cmp_ge_u32 s19, 6
        s_cbranch_scc1 {l6}
        s_mul_i32 s34, s19, 86
        s_lshr_b32 s34, s34, 8
        s_mul_i32 s35, s34, 3
        s_sub_u32 s35, s19, s35
        s_lshl_b32 s30, s2, 1
        s_add_u32 s30, s30, s34
        s_branch {lu}
        """)
        k.label(l6)
        k.e(f"""
        s_sub_u32 s34, s19, 6
        s_cmp_ge_u32 s2, 64
        s_cbranch_scc1 {l7}
        s_add_u32 s30, s2, 512
        s_add_u32 s35, s34, 1
        s_branch {lu}
        """)
        k.label(l7)
        k.e(f"""
        s_sub_u32 s30, s2, 64
        s_lshl_b32 s30, s30, 1
        s_add_u32 s30, s30, s34
        s_add_u32 s30, s30, 512
        s_mov_b32 s35, 0
        s_cmp_lt_u32 s2, 96
        s_cbranch_scc1 {lu}
        s_mov_b32 s30, 0
        s_mov_b32 s35, 3
        """)
        k.label(lu)
        k.e(f"""
        s_cmp_ge_u32 s35, 1
        s_cselect_b32 s31, 1, 0
        s_cmp_eq_u32 s35, 2
        s_cselect_b32 s32, 32, 0
        s_mul_i32 s36, s30, 4096
        s_lshl_b32 s37, s31, 11
        s_add_u32 s36, s36, s37
        s_add_u32 s36, s36, {YT}
        s_mul_i32 s37, s30, 2048
        s_add_u32 s37, s37, {YT2}
        s_cmp_eq_u32 s35, 2
        s_cselect_b32 s33, s37, s36
        s_cmp_eq_u32 s35, 3
        s_cselect_b32 s31, 0, s31
        v_and_b32 v{t+5}, 3, v{t}
        v_lshlrev_b32 v{t+5}, 1, v{t+5}
        v_bfe_u32 v{t+6}, v{t}, 2, 1
        v_or_b32 v{t+5}, v{t+5}, v{t+6}
        v_lshrrev_b32 v{t+6}, 3, v{t}
        v_lshl_or_b32 v{t+5}, v{t+6}, 3, v{t+5}
        v_and_b32 v{t+6}, 1, v{t+5}
        v_xor_b32 v{t+6}, 1, v{t+6}
        v_sub_u32 v{t+7}, 2047, v{t+5}
        v_sub_u32 v{t+7}, v{t+7}, v{t+6}
        v_lshrrev_b32 v{t+4}, 5, v{lane}
        v_lshl_add_u32 v{t+7}, v{t+4}, 3, v{t+7}
        v_lshlrev_b32 v{t+7}, 1, v{t+7}
        v_mul_u32_u24 v{t+6}, {KRH}, v{t+6}
        v_add_u32 v{t+7}, v{t+7}, v{t+6}
        s_mul_i32 s36, s30, {KRC}
        s_add_u32 s36, s36, {KR}
        s_sub_u32 s36, s36, 4288
        v_add_u32 v{vA}, s36, v{t+7}
        v_mul_u32_u24 v{t+6}, 1536, v{t+4}
        v_lshl_add_u32 v{t+6}, v{t}, 4, v{t+6}
        s_mul_i32 s36, s30, {UPC}
        s_lshl_b32 s37, s31, 9
        s_add_u32 s36, s36, s37
        s_add_u32 s36, s36, {UP + 512}
        s_sub_u32 s36, s36, 1072
        v_add_u32 v{vU}, s36, v{t+6}
        v_lshlrev_b32 v{t+6}, 6, v{t}
        v_lshl_add_u32 v{vY}, v{t+4}, 4, v{t+6}
        s_lshl_b32 s38, s32, 6
        s_sub_u32 s38, 4032, s38
        s_lshl_b32 s39, s32, 4
        s_sub_u32 s39, 1008, s39
        """)
    if conv:
        for i in range(56): k.e(f"v_mov_b32 v{CA+i}, 0")
    k.e(f"""
    v_lshrrev_b32 v{t+3}, 5, v{lane}
    v_mul_u32_u24 v{t+3}, {VH}, v{t+3}
    v_min_u32 v{t+5}, 19, v{t}
    v_lshl_add_u32 v{t+5}, v{t+5}, 4, v{t+3}
    v_add_u32 v{vV}, 9216, v{t+5}
    v_lshlrev_b32 v{vK2}, 4, v{t}
    v_add_u32 v{vK2}, 8192, v{vK2}
    """)
    for i in range(16): k.e(f"v_mov_b32 v{O+i}, 0")
    for i in range(4): k.e(f"v_mov_b32 v{P+4+i}, 0")
    for i in range(4): k.e(f"v_mov_b32 v{V1+i}, 0")
    k.e("s_waitcnt vmcnt(0)")
    k.e(f"v_mov_b32 v{Q2B+1}, v{Q2A}")
    if prof: prof.mark()
    k.e("s_barrier")
    if prof: prof.mark()
    if "kxm" in var:
        for i in range(4): k.e(f"v_mov_b32 v{KX+i}, 0")
        k.e("s_mov_b32 exec_hi, 0")
        k.e(f"ds_read_b128 {vr(KX,4)}, v{vK2}")
        k.e("s_mov_b32 exec_hi, -1")
    else:
        k.e(f"ds_read_b128 {vr(KX,4)}, v{vK2}")
    k.e(f"""
    ds_read_b128 {vr(KF,4)}, v{vK}
    s_waitcnt lgkmcnt(0)
    v_mfma_f32_32x32x16_bf16 {vr(SA,16)}, {vr(KF,4)}, {vr(QF,4)}, 0
    v_mfma_f32_32x32x8_bf16 {vr(SA,16)}, {vr(KX,2)}, {vr(Q2A,2)}, {vr(SA,16)}
    ds_read_b128 {vr(KF,4)}, v{vK} offset:1024
    ds_read_b128 {vr(V0,4)}, v{vV}
    s_mov_b32 s41, 0
    s_waitcnt lgkmcnt(0)
    s_nop 7
    """)
    if "noprio" not in var: k.e("s_setprio 3")
    PLAINS = {"0": "1 eeeecc p eeeecc 2 eeeecc P eeeecc",
              "1": "1 eeee k cc p eeee v cc 2 eeeecc P eeee w cc",
              "2": "1 eeeecc k p eeeecc v 2 eeeecc P eeeecc w",
              "3": "1 eeeec p ceeee 2 cceeee P cceecc".replace("cceecc", "eccecc")[:0] + "1 eeeec p ceeeec 2 ceeeec P ceeeecc",
              "4": "1 ee k eecc p ee v eecc 2 eeeecc P ee w eecc",
              "5": "1 eeeeeeee p cccc 2 eeee P eeee cccc".replace("p cccc 2 eeee P eeee cccc", "cc p cc 2 eeeeee P ee cccc")}
    PAT_PLAIN = PLAINS[[x[2:] for x in var if x.startswith("pl")][0]] if any(x.startswith("pl") for x in var) else PLAINS["0"]
    pats = {"a": "1 eeeec p ceeee X ccee 2 eeccee P eecc",
            "b": "1 eeeec p ceee X eccee 2 eecce P eeecc" ,
            "c": "1 eeeecc p eee X ecc 2 eeeecc P eeeecc",
            "d": "1 eeeec p ceeee 2 ccee X eeccee P eecc",
            "e": "1 eeeecc X eeeecc p ee 2 eecc P eeeecc"}
    PAT_CONV = pats[[x[3:] for x in var if x.startswith("pat")][0]] if any(x.startswith("pat") for x in var) else pats["a"]
    PRIOS = {"0": [(6, 0, 2), (7, 0, 1), (7, 4, 0)],
             "1": [(7, 0, 2), (7, 4, 1), (7, 6, 0)],
             "2": [(6, 4, 2), (7, 2, 1), (7, 6, 0)],
             "3": [(4, 0, 2), (6, 4, 1), (7, 5, 0)],
             "4": [(7, 2, 2), (7, 5, 1), (7, 7, 0)]}
    PRIO = PRIOS[[x[2:] for x in var if x.startswith("pr")][0]] if any(x.startswith("pr") for x in var) else PRIOS["2"]
    def cl(kk, r, j):
        dr = j >> 1; s_ = j & 1
        kk.e(f"buffer_load_dwordx4 {vr(r,4)}, v{vA}, s[8:11], s38 offen offset:{256 - 64*dr + 32*s_}")
        kk.e(f"buffer_load_dwordx4 {vr(r+4,4)}, v{vU}, s[8:11], s39 offen offset:{64 - 16*dr + 3072*s_}")
    PAT_CONV2 = "1 eeee p ccee X eecc 2 eeee X ccee P eecc"
    DBL = (2, 6)
    def body(kk, lg, cv_on, loopbody=False):
        for tin in range(8):
            cur = SA if tin % 2 == 0 else SBUF
            nxt = SBUF if tin % 2 == 0 else SA
            e = c = 0
            if tin == 0: xs = [0]
            if loopbody and "noprio" not in var:
                for (pc, pt, pr) in PRIO:
                    if pt == tin:
                        lp = k.newlabel("pl")
                        kk.e(f"s_cmp_eq_u32 s41, {pc}")
                        kk.e(f"s_cbranch_scc0 {lp}")
                        kk.e(f"s_setprio {pr}")
                        kk.lines.append(lp + ":")
            pat = PAT_PLAIN if not cv_on else (PAT_CONV2 if tin in DBL else PAT_CONV)
            for tok in pat.replace(" ", ""):
                if tok == "e":
                    kk.e(f"v_exp_f32 v{cur+e}, v{cur+e}"); e += 1
                elif tok == "c":
                    assert e >= min(16, 2*c + 2)
                    kk.e(f"v_cvt_pk_bf16_f32 v{P+c}, v{cur+2*c}, v{cur+2*c+1}"); c += 1
                elif tok == "1":
                    lg.wait_for(["K"])
                    kk.e(f"v_mfma_f32_32x32x16_bf16 {vr(nxt,16)}, {vr(KF,4)}, {vr(QF,4)}, 0")
                    if "k" not in pat: kk.e(f"ds_read_b128 {vr(KF,4)}, v{vK} offset:{koff(tin+2)}"); lg.issue("K")
                elif tok == "k":
                    kk.e(f"ds_read_b128 {vr(KF,4)}, v{vK} offset:{koff(tin+2)}"); lg.issue("K")
                elif tok == "p":
                    assert c <= 4
                    lg.wait_for(["V1"])
                    kk.e(f"v_mfma_f32_32x32x16_bf16 {vr(O,16)}, {vr(V1,4)}, {vr(P+4,4)}, {vr(O,16)}")
                    if "v" not in pat: kk.e(f"ds_read_b128 {vr(V1,4)}, v{vV} offset:{voff(2*tin+1)}"); lg.issue("V1")
                elif tok == "v":
                    kk.e(f"ds_read_b128 {vr(V1,4)}, v{vV} offset:{voff(2*tin+1)}"); lg.issue("V1")
                elif tok == "2":
                    t1 = tin + 1
                    lg.wait_for(["X"])
                    kx = KX + 2 * ((t1 & 3) >> 1)
                    q2 = Q2A if (t1 & 1) == 0 else Q2B
                    kk.e(f"v_mfma_f32_32x32x8_bf16 {vr(nxt,16)}, {vr(kx,2)}, {vr(q2,2)}, {vr(nxt,16)}")
                    if (t1 & 3) == 3:
                        if "kxm" in var: kk.e("s_mov_b32 exec_hi, 0")
                        kk.e(f"ds_read_b128 {vr(KX,4)}, v{vK2} offset:{kxoff((t1+1) >> 2)}"); lg.issue("X")
                        if "kxm" in var: kk.e("s_mov_b32 exec_hi, -1")
                elif tok == "P":
                    assert c >= 4
                    lg.wait_for(["V0"])
                    kk.e(f"v_mfma_f32_32x32x16_bf16 {vr(O,16)}, {vr(V0,4)}, {vr(P,4)}, {vr(O,16)}")
                    if "w" not in pat: kk.e(f"ds_read_b128 {vr(V0,4)}, v{vV} offset:{voff(2*tin+2)}"); lg.issue("V0")
                elif tok == "w":
                    kk.e(f"ds_read_b128 {vr(V0,4)}, v{vV} offset:{voff(2*tin+2)}"); lg.issue("V0")
                elif tok == "X":
                    j = xs[0]; xs[0] += 1
                    r = CR + 8 * (j % 5)
                    if "cnowait" not in var and "cnoload" not in var: kk.e("s_waitcnt vmcnt(8)")
                    if "cnox" in var:
                        pass
                    elif j == 9:
                        lx = k.newlabel("skipx")
                        kk.e("s_cmp_eq_u32 s41, 7")
                        kk.e(f"s_cbranch_scc1 {lx}")
                        kk.e(f"v_mfma_f32_32x32x16_bf16 {vr(CA,16)}, {vr(r,4)}, {vr(r+4,4)}, {vr(CA,16)}")
                        kk.lines.append(lx + ":")
                    else:
                        kk.e(f"v_mfma_f32_32x32x16_bf16 {vr(CA,16)}, {vr(r,4)}, {vr(r+4,4)}, {vr(CA,16)}")
                    if "cnoload" not in var: cl(kk, r, j)
            assert e == 16 and c == 8
    def advance():
        k.e(f"""
        v_add_u32 v{vK}, {CH}, v{vK}
        v_add_u32 v{vK2}, {CH}, v{vK2}
        v_add_u32 v{vV}, {CH}, v{vV}
        """)
    tmp = K("tmp"); lg = SB(tmp, "lgkmcnt", 15)
    body(tmp, lg, False); state = list(lg.q)
    lg.k = k
    body(k, lg, False)
    assert lg.q == state
    advance()
    k.e("s_barrier")
    if prof: prof.mark()
    k.e("s_mov_b32 s41, 1")
    lloop = k.newlabel("loop")
    k.label(lloop)
    body(k, lg, conv, True)
    assert lg.q == state
    advance()
    lskip = k.newlabel("nobar")
    if conv:
        k.e("s_sub_u32 s38, s38, 320")
        k.e("s_sub_u32 s39, s39, 80")
    k.e(f"""
    s_add_u32 s41, s41, 1
    s_cmp_eq_u32 s41, 2
    s_cbranch_scc0 {lskip}
    s_barrier
    """)
    k.label(lskip)
    if prof:
        for cnt in range(2, 9):
            l2 = k.newlabel("pm")
            k.e(f"s_cmp_eq_u32 s41, {cnt}")
            k.e(f"s_cbranch_scc0 {l2}")
            prof.mark()
            k.label(l2)
    k.e("s_cmp_lt_u32 s41, 8")
    k.e(f"s_cbranch_scc1 {lloop}")
    k.e(f"""
    s_waitcnt lgkmcnt(0)
    v_mfma_f32_32x32x16_bf16 {vr(O,16)}, {vr(V1,4)}, {vr(P+4,4)}, {vr(O,16)}
    """)
    if prof: prof.mark()
    k.nop(12)
    lfin = k.newlabel("fin"); lfb = k.newlabel("fb")
    k.e(f"""
    v_mov_b32 v{t}, v{O+10}
    v_mov_b32 v{t+1}, v{O+10}
    s_mov_b32 s42, {f2u(2.0**-64)}
    s_mov_b32 s43, {f2u(2.0**40)}
    v_permlane32_swap_b32 v{t}, v{t+1}
    s_nop 1
    v_cmp_le_f32 vcc, s42, v{t}
    v_cmp_ge_f32 s[44:45], s43, v{t}
    s_and_b64 s[44:45], s[44:45], vcc
    s_cmp_eq_u64 s[44:45], exec
    s_cselect_b32 s46, 0, 1
    """)
    k.e("s_cmp_eq_u32 s46, 1")
    k.e(f"s_cbranch_scc1 {lfb}")
    k.label(lfin)
    k.e(f"""
    v_rcp_f32 v{t}, v{t}
    v_and_b32 v{t+2}, 31, v{lane}
    v_lshrrev_b32 v{t+3}, 5, v{lane}
    s_lshl_b32 s26, s21, 5
    v_add_u32 v{t+2}, s26, v{t+2}
    v_mul_u32_u24 v{t+2}, 1152, v{t+2}
    v_lshl_add_u32 v{t+2}, v{t+3}, 3, v{t+2}
    s_mul_i32 s27, s20, 36
    s_add_u32 s27, s27, {OA}
    """)
    for r in range(10): k.e(f"v_mul_f32 v{O+r}, v{O+r}, v{t}")
    for j in range(5): k.e(f"v_cvt_pk_bf16_f32 v{P+j}, v{O+2*j}, v{O+2*j+1}")
    k.e(f"""
    buffer_store_dwordx2 {vr(P,2)}, v{t+2}, s[8:11], s27 offen
    buffer_store_dwordx2 {vr(P+2,2)}, v{t+2}, s[8:11], s27 offen offset:16
    s_mov_b32 exec_hi, 0
    buffer_store_dword v{P+4}, v{t+2}, s[8:11], s27 offen offset:32
    s_mov_b64 exec, -1
    """)
    lend = k.newlabel("end")
    if conv:
        k.e("s_waitcnt vmcnt(3)")
        for g in range(2):
            for e in range(4):
                k.e(f"v_permlane32_swap_b32 v{CA+8*g+e}, v{CA+8*g+4+e}")
        k.e("s_nop 1")
        for g in range(2):
            for e in range(4):
                k.e(f"v_cvt_pk_bf16_f32 v{CR+4*g+e}, v{CA+8*g+e}, v{CA+8*g+4+e}")
        k.e("s_cmp_eq_u32 s35, 3")
        k.e(f"s_cbranch_scc1 {lend}")
        for g in range(2):
            k.e(f"buffer_store_dwordx4 {vr(CR+4*g,4)}, v{vY}, s[8:11], s33 offen offset:{32*g}")
    k.e(f"s_branch {lend}")
    k.label(lfb)
    k.c("fallback: pass 1 = true row max, pass 2 = exp(s - max)")
    mx = t + 6
    k.e(f"""
    v_mov_b32 v{mx}, 0xff800000
    s_mov_b32 s46, 0
    s_nop 7
    """)
    lpass = k.newlabel("pass")
    k.label(lpass)
    for i in range(16): k.e(f"v_mov_b32 v{O+i}, 0")
    k.e(f"s_mov_b32 s41, 0")
    lm = k.newlabel("sl")
    k.label(lm)
    k.e(f"""
    s_lshr_b32 s47, s41, 3
    s_mul_i32 s47, s47, {CH}
    s_and_b32 s48, s41, 7
    s_lshl_b32 s49, s48, 10
    s_add_u32 s49, s49, s47
    v_lshlrev_b32 v{t+7}, 4, v{lane}
    v_add_u32 v{t+7}, s49, v{t+7}
    s_lshr_b32 s49, s48, 2
    s_lshl_b32 s49, s49, 9
    s_and_b32 s50, s48, 3
    s_lshl_b32 s50, s50, 2
    s_add_u32 s49, s49, s50
    s_add_u32 s49, s49, s47
    s_add_u32 s49, s49, 8192
    v_and_b32 v{t+8}, 31, v{lane}
    v_lshlrev_b32 v{t+8}, 4, v{t+8}
    v_add_u32 v{t+8}, s49, v{t+8}
    s_mul_i32 s49, s48, {2*VKS}
    s_add_u32 s49, s49, s47
    s_add_u32 s49, s49, 9216
    v_add_u32 v{t+9}, s49, v{t+5}
    ds_read_b128 {vr(KF,4)}, v{t+7}
    ds_read_b32 v{KX}, v{t+8}
    v_mov_b32 v{KX+1}, 0
    ds_read_b128 {vr(V0,4)}, v{t+9}
    ds_read_b128 {vr(V1,4)}, v{t+9} offset:{VKS}
    s_waitcnt lgkmcnt(0)
    v_mfma_f32_32x32x16_bf16 {vr(SA,16)}, {vr(KF,4)}, {vr(QF,4)}, 0
    v_mfma_f32_32x32x8_bf16 {vr(SA,16)}, {vr(KX,2)}, {vr(Q2A,2)}, {vr(SA,16)}
    """)
    k.nop(12)
    lp2 = k.newlabel("p2"); lnx = k.newlabel("nx")
    k.e("s_cmp_eq_u32 s46, 1")
    k.e(f"s_cbranch_scc1 {lp2}")
    for i in range(8):
        k.e(f"v_max3_f32 v{mx}, v{SA+2*i}, v{SA+2*i+1}, v{mx}")
    k.e(f"s_branch {lnx}")
    k.label(lp2)
    for i in range(16):
        k.e(f"v_sub_f32 v{SA+i}, v{SA+i}, v{mx}")
    for i in range(16):
        k.e(f"v_exp_f32 v{SA+i}, v{SA+i}")
    k.e("s_nop 0")
    for j in range(8):
        k.e(f"v_cvt_pk_bf16_f32 v{P+j}, v{SA+2*j}, v{SA+2*j+1}")
    k.e(f"""
    s_nop 1
    v_mfma_f32_32x32x16_bf16 {vr(O,16)}, {vr(V0,4)}, {vr(P,4)}, {vr(O,16)}
    v_mfma_f32_32x32x16_bf16 {vr(O,16)}, {vr(V1,4)}, {vr(P+4,4)}, {vr(O,16)}
    """)
    k.label(lnx)
    ldone = k.newlabel("fbdone")
    k.e(f"""
    s_add_u32 s41, s41, 1
    s_cmp_lt_u32 s41, 64
    s_cbranch_scc1 {lm}
    s_cmp_eq_u32 s46, 1
    s_cbranch_scc1 {ldone}
    v_mov_b32 v{t+7}, v{mx}
    s_nop 1
    v_permlane32_swap_b32 v{mx}, v{t+7}
    s_nop 1
    v_max_f32 v{mx}, v{mx}, v{t+7}
    s_mov_b32 s46, 1
    s_branch {lpass}
    """)
    k.label(ldone)
    k.nop(12)
    k.e(f"""
    v_mov_b32 v{t}, v{O+10}
    v_mov_b32 v{t+1}, v{O+10}
    s_nop 1
    v_permlane32_swap_b32 v{t}, v{t+1}
    s_nop 1
    s_branch {lfin}
    """)
    k.label(lend)

def gen_loader(k, var=()):
    k.c("---- K/V loader ----")
    k.e(f"""
    s_load_dwordx2 s[4:5], s[0:1], 96
    s_and_b32 s20, s2, 7
    s_lshr_b32 s21, s2, 3
    s_and_b32 s22, s21, 3
    s_lshl_b32 s20, s20, 2
    s_add_u32 s20, s20, s22
    s_sub_u32 s23, s19, 8
    s_mul_i32 s24, s20, {HB}
    s_lshl_b32 s25, s23, 10
    s_add_u32 s24, s24, s25
    v_lshlrev_b32 v4, 4, v2
    s_setprio 3
    s_waitcnt lgkmcnt(0)
    """)
    srd(k, 8, 4, WS_END)
    def piece(j):
        k.e(f"s_add_u32 m0, s25, {j*4096}")
        k.e(f"s_add_u32 s27, s24, {j*4096}")
        k.e(f"buffer_load_dwordx4 v4, s[8:11], s27 offen lds")
    for j in range(4 if "b12" in var else 8): piece(j)
    k.e("s_waitcnt vmcnt(0)")
    k.e("s_barrier")
    for j in range(8, 38): piece(j)
    k.e("s_waitcnt vmcnt(25)")
    k.e("s_barrier")
    k.e("s_waitcnt vmcnt(0)")
    k.e("s_barrier")
    k.e(f"""
    s_load_dwordx2 s[6:7], s[0:1], 72
    s_lshr_b32 s30, s2, 3
    s_lshl_b32 s30, s30, 2
    s_add_u32 s30, s30, s23
    s_mul_i32 s30, s30, {41*128}
    v_lshlrev_b32 v5, 7, v2
    v_cmp_gt_u32 vcc, 41, v2
    s_and_saveexec_b64 s[32:33], vcc
    s_waitcnt lgkmcnt(0)
    """)
    srd(k, 12, 6, WOB)
    k.e("buffer_load_dword v6, v5, s[12:15], s30 offen")
    if "upf" in var:
        k.e(f"""
        s_mov_b64 exec, s[32:33]
        s_load_dwordx2 s[6:7], s[0:1], 0
        s_lshr_b32 s30, s2, 3
        s_lshl_b32 s30, s30, 2
        s_add_u32 s30, s30, s23
        s_cmp_ge_u32 s30, 36
        s_cbranch_scc1 {{LSKIP}}
        s_mul_i32 s31, s30, 21846
        s_lshr_b32 s31, s31, 16
        s_mul_i32 s34, s31, 3
        s_sub_u32 s34, s30, s34
        s_and_b32 s35, s2, 7
        s_lshl_b32 s31, s31, 3
        s_add_u32 s31, s31, s35
        s_mul_i32 s35, s31, 21846
        s_lshr_b32 s35, s35, 16
        s_mul_i32 s36, s35, 3
        s_sub_u32 s36, s31, s36
        s_mul_i32 s35, s35, {64*1152}
        s_mul_i32 s36, s36, 384
        s_add_u32 s35, s35, s36
        s_lshl_b32 s34, s34, 7
        s_add_u32 s35, s35, s34
        v_mul_u32_u24 v5, 1152, v2
        s_waitcnt lgkmcnt(0)
        """.replace("{LSKIP}", (lsk := k.newlabel("upfskip"))))
        srd(k, 12, 6, XB)
        k.e("buffer_load_dword v7, v5, s[12:15], s35 offen")
        k.label(lsk)
    k.e("s_waitcnt vmcnt(0)")

def gen_k2(k, prof=None, var=()):
    lconv = k.newlabel("loader"); lend = k.newlabel("k2end")
    k.e("""
    v_lshrrev_b32 v1, 6, v0
    v_and_b32 v2, 63, v0
    s_nop 0
    v_readfirstlane_b32 s19, v1
    s_nop 3
    s_cmp_ge_u32 s19, 8
    """)
    k.e(f"s_cbranch_scc1 {lconv}")
    gen_attn(k, prof, var)
    k.e(f"s_branch {lend}")
    k.label(lconv)
    gen_loader(k, var)
    k.label(lend)
```

```python
from g import *
from sb import SB
from layout import *
from k_qkv import srd, f2u
import math

LOG2E = 1.4426950408889634
UB = 2048 * 576 * 2

UT_LDS = 36864
def gen_utrans(k, wg="s2", nw=4):
    lane = 2; t = 20
    k.c("---- u transposition ----")
    k.e(f"""
    s_load_dwordx2 s[4:5], s[0:1], 0
    s_load_dwordx2 s[6:7], s[0:1], 96
    v_lshrrev_b32 v1, 6, v0
    v_and_b32 v2, 63, v0
    s_lshr_b32 s21, {wg}, 2
    v_readfirstlane_b32 s19, v1
    s_and_b32 s22, {wg}, 3
    s_mul_i32 s24, s21, {128*1152}
    s_mul_i32 s25, s22, 288
    s_add_u32 s24, s24, s25
    s_mul_i32 s26, s19, {9*1024}
    """)
    k.e(f"""
    s_mul_i32 s27, s19, 576
    v_add_u32 v{t}, s27, v{lane}
    s_waitcnt lgkmcnt(0)
    """)
    srd(k, 8, 4, UB)
    srd(k, 12, 6, WS_END)
    k.e("s_mov_b32 s30, 3641")
    for i in range(9):
        k.e(f"""
        v_add_u32 v{t+1}, {64*i}, v{t}
        v_mul_lo_u32 v{t+2}, v{t+1}, s30
        v_lshrrev_b32 v{t+2}, 16, v{t+2}
        v_mul_u32_u24 v{t+3}, 18, v{t+2}
        v_sub_u32 v{t+3}, v{t+1}, v{t+3}
        v_mul_u32_u24 v{t+2}, 1152, v{t+2}
        v_lshl_add_u32 v{t+2}, v{t+3}, 4, v{t+2}
        s_add_u32 m0, s26, {i*1024}
        s_nop 0
        buffer_load_dwordx4 v{t+2}, s[8:11], s24 offen lds
        """)
    k.e(f"""
    v_mov_b32 v8, 0
    v_mov_b32 v9, 0
    v_mov_b32 v10, 0
    v_mov_b32 v11, 0
    s_mul_i32 s31, s22, {144*UPC}
    s_lshl_b32 s32, s21, 5
    s_add_u32 s31, s31, s32
    s_add_u32 s31, s31, {UP}
    v_and_b32 v{t+6}, 255, v0
    """)
    for i in range(5):
        k.e(f"""
        v_add_u32 v{t+1}, {256*i}, v{t+6}
        v_lshrrev_b32 v{t+2}, 3, v{t+1}
        v_mul_u32_u24 v{t+2}, {UPC}, v{t+2}
        v_bfe_u32 v{t+3}, v{t+1}, 1, 2
        v_mul_u32_u24 v{t+3}, 1536, v{t+3}
        v_add_u32 v{t+2}, v{t+2}, v{t+3}
        v_and_b32 v{t+3}, 1, v{t+1}
        v_lshl_add_u32 v{t+2}, v{t+3}, 4, v{t+2}
        """)
        if i == 4:
            k.e(f"""
            v_cmp_gt_u32 vcc, 1152, v{t+1}
            v_mov_b32 v{t+3}, -1
            s_nop 0
            v_cndmask_b32 v{t+2}, v{t+3}, v{t+2}, vcc
            s_mov_b32 s33, 0
            v_cmp_gt_u32 vcc, 1152, v{t+1}
            s_and_saveexec_b64 s[34:35], vcc
            buffer_store_dwordx4 v[8:11], v{t+2}, s[12:15], s31 offen
            s_mov_b64 exec, s[34:35]
            """)
        else:
            k.e(f"buffer_store_dwordx4 v[8:11], v{t+2}, s[12:15], s31 offen")
    k.e(f"""
    v_lshrrev_b32 v{t+1}, 4, v{lane}
    v_bfe_u32 v{t+2}, v{lane}, 2, 2
    v_lshl_add_u32 v{t+2}, v{t+1}, 5, v{t+2}
    v_mul_u32_u24 v{t+2}, 288, v{t+2}
    v_and_b32 v{t+3}, 3, v{lane}
    v_lshl_add_u32 v{t+2}, v{t+3}, 3, v{t+2}
    v_and_b32 v{t+3}, 15, v{lane}
    v_mul_u32_u24 v{t+3}, {UPC}, v{t+3}
    v_lshl_add_u32 v{t+3}, v{t+1}, 4, v{t+3}
    s_mul_i32 s31, s22, {144*UPC}
    s_lshl_b32 s32, s21, 6
    s_add_u32 s31, s31, s32
    s_add_u32 s31, s31, {UP + 512}
    s_mul_i32 s32, s19, 1536
    s_add_u32 s31, s31, s32
    s_mul_i32 s33, s19, {8*288}
    v_add_u32 v{t+2}, s33, v{t+2}
    s_waitcnt vmcnt(5)
    s_barrier
    """)
    for dg in range(9):
        b = 12 + 4 * (dg & 1)
        k.e(f"""
        ds_read_b64_tr_b16 {vr(b,2)}, v{t+2} offset:{32*dg}
        ds_read_b64_tr_b16 {vr(b+2,2)}, v{t+2} offset:{32*dg + 4*288}
        s_waitcnt lgkmcnt(0)
        buffer_store_dwordx4 {vr(b,4)}, v{t+3}, s[12:15], s31 offen
        s_add_u32 s31, s31, {16*UPC}
        """)

KG_LDS_WAVE = 53 * 256
def gen_kgen(k, chan_sgpr, ldsbase_sgpr, prof=None, after_loads=None):
    lane = 2
    k.c("---- SSM kernel generation ----")
    ch = chan_sgpr; lb = ldsbase_sgpr
    k.e(f"""
    s_load_dwordx8 s[44:51], s[0:1], 8
    s_load_dwordx4 s[52:55], s[0:1], 40
    s_load_dwordx2 s[56:57], s[0:1], 96
    v_lshlrev_b32 v3, 1, v{lane}
    s_lshl_b32 s22, s{ch}, 8
    s_lshl_b32 s23, s{ch}, 1
    v_mov_b32 v4, s23
    s_waitcnt lgkmcnt(0)
    """)
    S = 24
    for i in range(4): srd(k, S + 4*i, 44 + 2*i, PB)
    srd(k, S + 16, 52, 1152)
    srd(k, 16, 54, 1152)
    k.e("s_mov_b32 s54, s56")
    k.e("s_mov_b32 s55, s57")
    k.e("buffer_load_ushort v33, v4, s[16:19], 0 offen")
    k.e(f"buffer_load_ushort v5, v4, s[{S+16}:{S+19}], 0 offen")
    for i in range(4):
        for ps in range(2):
            k.e(f"buffer_load_ushort v{8+2*i+ps}, v3, s[{S+4*i}:{S+4*i+3}], s22 offen offset:{128*ps}")
    if after_loads: after_loads()
    AW = 16
    k.e("v_lshlrev_b32 v6, 2, v2")
    k.e(f"v_add_u32 v6, s{lb}, v6")
    for j in range(16):
        k.e(f"v_xor_b32 v{AW+j}, {16*j}, v6")
    k.e(f"""
    v_and_b32 v6, 31, v2
    v_lshrrev_b32 v7, 5, v2
    v_bfe_u32 v32, v6, 1, 4
    v_xor_b32 v32, v32, v7
    v_lshlrev_b32 v32, 4, v32
    v_lshl_add_u32 v32, v6, 8, v32
    v_add_u32 v32, s{lb}, v32
    """)
    RB = 32
    D = 112
    k.e("s_waitcnt vmcnt(0)")
    if prof: prof.mark()
    c_l2e = f2u(LOG2E); c_i2pi = f2u(1.0 / (2 * math.pi))
    k.e(f"""
    v_lshlrev_b32 v5, 16, v5
    v_mul_f32 v5, {c_l2e}, v5
    v_exp_f32 v5, v5
    s_nop 0
    v_cvt_pk_bf16_f32 v5, v5, v5
    v_lshlrev_b32 v5, 16, v5
    """)
    DT = 5
    def cmul(d, a, b):
        k.e(f"v_mul_f32 v36, v{a+1}, v{b+1}")
        k.e(f"v_mul_f32 v37, v{a+1}, v{b}")
        k.e(f"v_fma_f32 v38, v{a}, v{b+1}, v37")
        k.e(f"v_fma_f32 v{d}, v{a}, v{b}, -v36")
        k.e(f"v_mov_b32 v{d+1}, v38")
    def cmul2(d, a, b, t0, t1):
        k.e(f"v_mul_f32 v{t0}, v{a+1}, v{b+1}")
        k.e(f"v_mul_f32 v{t1}, v{a+1}, v{b}")
        k.e(f"v_fma_f32 v{d}, v{a}, v{b}, -v{t0}")
        k.e(f"v_fma_f32 v{d+1}, v{a}, v{b+1}, v{t1}")
    ZR, ZI = 40, 41
    def cexp(d, tt):
        k.e(f"""
        v_mul_f32 v36, {f2u(float(tt))}, v{ZR}
        v_mul_f32 v37, {f2u(float(tt))}, v{ZI}
        v_exp_f32 v36, v36
        v_fract_f32 v37, v37
        v_cos_f32 v38, v37
        v_sin_f32 v39, v37
        s_nop 0
        v_mul_f32 v{d}, v36, v38
        v_mul_f32 v{d+1}, v36, v39
        """)
    W1, W2, W4, W8, W256, W512, W768, W1024 = 42, 44, 46, 48, 50, 52, 54, 56
    CC, XA, XB_, EA, EB, TT = 58, 60, 62, 64, 66, 68
    PK = 72
    nbar = [0]
    pend = {True: None, False: None}
    def store_row(row, re, im, isA):
        r = row if isA else row - 21
        pk = (PK if isA else PK + 2) + (r & 1)
        k.e(f"v_cvt_pk_bf16_f32 v{pk}, v{re}, {'-' if isA else ''}v{im}")
        last = (r == 20) if isA else False
        if r & 1:
            k.e(f"ds_write2st64_b32 v{AW + ((r >> 1) & 15)}, v{pk-1}, v{pk} offset0:{row-1} offset1:{row}")
        elif last:
            k.e(f"ds_write_b32 v{AW + ((r >> 1) & 15)}, v{pk} offset:{row*256}")
    k.e("s_setprio 3")
    for ps in range(2):
        if ps == 1: k.e("s_setprio 2")
        k.e(f"""
        v_lshlrev_b32 v36, 16, v{8+ps}
        v_mul_f32 v36, {c_l2e}, v36
        v_exp_f32 v36, v36
        v_lshlrev_b32 v37, 16, v{10+ps}
        v_lshlrev_b32 v{CC}, 16, v{12+ps}
        v_cvt_pk_bf16_f32 v36, v36, v36
        v_lshlrev_b32 v36, 16, v36
        v_mul_f32 v36, v36, v{DT}
        v_mul_f32 v37, v37, v{DT}
        v_mul_f32 v{ZR}, {f2u(-LOG2E)}, v36
        v_mul_f32 v{ZI}, {c_i2pi}, v37
        v_lshlrev_b32 v{CC+1}, 16, v{14+ps}
        v_mul_f32 v{CC}, v{CC}, v{DT}
        v_mul_f32 v{CC+1}, v{CC+1}, v{DT}
        v_add_f32 v{CC}, v{CC}, v{CC}
        v_add_f32 v{CC+1}, v{CC+1}, v{CC+1}
        """)
        cexp(W1, 1); cexp(W8, 8); cexp(W256, 256)
        cmul2(W2, W1, W1, 36, 37)
        cmul2(W4, W2, W2, 36, 37)
        cmul2(W512, W256, W256, 36, 37)
        cmul2(W768, W512, W256, 36, 37)
        cmul2(W1024, W512, W512, 36, 37)
        k.e(f"v_mov_b32 v{EA}, 1.0")
        k.e(f"v_mov_b32 v{EA+1}, 0")
        Bops = []
        cur, nx = EA, EB
        Bops.append(lambda cur=cur: store_row(21, cur, cur + 1, False))
        for b in range(1, 32):
            if b == 1:
                Bops.append(lambda: (k.e(f"v_mov_b32 v{EB}, v{W8}"), k.e(f"v_mov_b32 v{EB+1}, v{W8+1}"), store_row(22, EB, EB + 1, False)))
                cur, nx = EB, EA
            else:
                Bops.append(lambda cur=cur, nx=nx, b=b: (cmul2(nx, cur, W8, 76, 77), store_row(21 + b, nx, nx + 1, False)))
                cur, nx = nx, cur
        Aops = []
        Aops.append(lambda: store_row(0, CC, CC + 1, True))
        pa, pb = CC, XA
        seq = [XA, XB_]
        prev = CC
        for j in range(1, 8):
            dst = seq[j & 1]
            Aops.append(lambda dst=dst, prev=prev, j=j: (cmul2(dst, prev, W1, 78, 79), store_row(j, dst, dst + 1, True)))
            prev = dst
        Aops.append(lambda: (cmul2(XA, CC, W256, 78, 79), store_row(8, XA, XA + 1, True)))
        prev = XA
        for j in range(1, 4):
            dst = XB_ if prev == XA else XA
            Aops.append(lambda dst=dst, prev=prev, j=j: (cmul2(dst, prev, W2, 78, 79), store_row(8 + j, dst, dst + 1, True)))
            prev = dst
        Aops.append(lambda: (cmul2(XA, CC, W512, 78, 79), store_row(12, XA, XA + 1, True)))
        Aops.append(lambda: (cmul2(XB_, XA, W4, 78, 79), store_row(13, XB_, XB_ + 1, True)))
        Aops.append(lambda: (cmul2(XA, CC, W768, 78, 79), store_row(14, XA, XA + 1, True)))
        Aops.append(lambda: (cmul2(XB_, XA, W4, 78, 79), store_row(15, XB_, XB_ + 1, True)))
        Aops.append(lambda: (cmul2(XA, CC, W1024, 78, 79), store_row(16, XA, XA + 1, True)))
        Aops.append(lambda: (cmul2(XB_, XA, W256, 78, 79), store_row(17, XB_, XB_ + 1, True)))
        Aops.append(lambda: (cmul2(TT, XA, W512, 78, 79), store_row(18, TT, TT + 1, True)))
        Aops.append(lambda: (cmul2(XB_, XA, W768, 78, 79), store_row(19, XB_, XB_ + 1, True)))
        Aops.append(lambda: (cmul2(TT, XA, W1024, 78, 79), store_row(20, TT, TT + 1, True)))
        ia = 0
        for ib, bo in enumerate(Bops):
            bo()
            if ia < len(Aops) and (ib * len(Aops)) // len(Bops) >= ia:
                Aops[ia](); ia += 1
        while ia < len(Aops):
            Aops[ia](); ia += 1
        k.e("s_waitcnt lgkmcnt(0)")
        if prof: prof.mark()
        FA, FB = 80, 96
        for ks in range(8):
            fa = FA + 4 * (ks & 3); fb = FB + 4 * (ks & 3)
            k.e(f"v_xor_b32 v36, {32*ks}, v{RB}")
            k.e(f"ds_read_b128 {vr(fa,4)}, v36")
            k.e(f"ds_read_b128 {vr(fb,4)}, v36 offset:{21*256}")
            if ks % 4 == 3:
                k.e("s_waitcnt lgkmcnt(0)")
                for q in range(ks - 3, ks + 1):
                    c = "0" if (ps == 0 and q == 0) else vr(D, 16)
                    k.e(f"v_mfma_f32_32x32x16_bf16 {vr(D,16)}, {vr(FA+4*(q&3),4)}, {vr(FB+4*(q&3),4)}, {c}")
    k.e("s_setprio 1")
    if prof: prof.mark()
    k.e(f"""
    v_and_b32 v6, 31, v2
    v_lshrrev_b32 v7, 5, v2
    v_lshlrev_b32 v40, 4, v6
    v_lshl_add_u32 v40, v7, 3, v40
    v_add_u32 v40, s{lb}, v40
    v_lshlrev_b32 v41, 3, v6
    v_add_u32 v41, 512, v41
    v_lshlrev_b32 v42, 2, v6
    v_add_u32 v42, 768, v42
    v_cmp_eq_u32 vcc, 1, v7
    v_mov_b32 v44, 4
    v_mov_b32 v45, 128
    v_cndmask_b32 v41, v41, v42, vcc
    v_cndmask_b32 v44, v44, v45, vcc
    v_add_u32 v41, s{lb}, v41
    v_add_u32 v42, v41, v44
    v_lshlrev_b32 v43, 1, v6
    v_add_u32 v43, 1024, v43
    v_mov_b32 v45, 1400
    v_mov_b32 v46, 1280
    v_cmp_eq_u32 s[56:57], 0, v6
    s_nop 1
    v_cndmask_b32 v45, v45, v46, s[56:57]
    v_cndmask_b32 v43, v43, v45, vcc
    v_add_u32 v43, s{lb}, v43
    """)
    k.nop(8)
    k.e(f"""
    v_lshlrev_b32 v33, 16, v33
    v_cmp_eq_u32 s[56:57], 0, v2
    v_mov_b32 v34, 0
    s_nop 0
    v_cndmask_b32 v33, v34, v33, s[56:57]
    v_add_f32 v{D}, v{D}, v33
    """)
    for j in range(6):
        k.e(f"v_cvt_pk_bf16_f32 v{48+j}, v{D+2*j}, v{D+2*j+1}")
    k.e("""
    ds_write_b16 v40, v48
    ds_write_b16_d16_hi v40, v48 offset:2
    ds_write_b16 v40, v49 offset:4
    ds_write_b16_d16_hi v40, v49 offset:6
    ds_write_b16 v41, v50
    ds_write_b16_d16_hi v41, v50 offset:2
    ds_write_b16 v42, v51
    ds_write_b16_d16_hi v42, v51 offset:2
    ds_write_b16 v43, v52
    ds_write_b16_d16_hi v43, v52 offset:64
    ds_write_b16 v43, v53 offset:128
    ds_write_b16_d16_hi v43, v53 offset:192
    """)
    E = 60
    k.e(f"""
    v_lshlrev_b32 v6, 3, v2
    v_sub_u32 v6, 2047, v6
    v_add_u32 v40, -1, v6
    v_lshl_or_b32 v40, v40, 16, v6
    s_lshr_b32 s58, s{lb}, 1
    v_cmp_gt_u32 s[56:57], 32, v2
    v_mov_b32 v41, 0
    v_mov_b32 v42, 0x00010001
    v_mov_b32 v43, s58
    v_add_u32 v44, 128, v43
    v_cndmask_b32 v41, v41, v42, s[56:57]
    v_cndmask_b32 v43, v43, v44, s[56:57]
    v_lshl_or_b32 v43, v43, 16, v43
    s_add_u32 s59, s58, 384
    s_lshl_b32 s57, s59, 16
    s_or_b32 s59, s59, s57
    s_add_u32 s58, s58, 256
    s_lshl_b32 s57, s58, 16
    s_or_b32 s58, s58, s57
    v_mov_b32 v45, s59
    v_mov_b32 v46, s58
    v_mov_b32 v47, 0x00030003
    v_mov_b32 v48, 0x00020002
    s_waitcnt lgkmcnt(0)
    """)
    k.e("s_setprio 0")
    if prof: prof.mark()
    n = 0
    for i in range(4):
        for d in range(4):
            a_ = 80 + 4 * (n & 3); n += 1
            off = (-(512 * i + 2 * d) * 0x10001) & 0xffffffff
            k.e(f"v_add_u32 v{a_}, {off}, v40")
            if i < 3:
                sh = 3 if i < 2 else 2
                c = (1 << sh >> 1) - 1
                k.e(f"""
                v_lshrrev_b32 v{a_+1}, {sh}, v{a_}
                v_and_b32 v{a_+1}, 0x00010001, v{a_+1}
                v_add_u32 v{a_}, {c * 0x10001}, v{a_}
                v_add_u32 v{a_}, v{a_}, v{a_+1}
                v_pk_lshrrev_b16 v{a_}, v{47 if sh == 3 else 48}, v{a_}
                v_add_u32 v{a_}, v{a_}, v{45 if i < 2 else 46}
                """)
            else:
                k.e(f"""
                v_lshrrev_b32 v{a_+1}, 1, v{a_}
                v_and_b32 v{a_+1}, v41, v{a_+1}
                v_add_u32 v{a_}, v{a_}, v{a_+1}
                v_pk_lshrrev_b16 v{a_}, v41, v{a_}
                v_add_u32 v{a_}, v{a_}, v43
                """)
            k.e(f"""
            v_add_u32 v{a_+1}, v{a_}, v{a_}
            v_and_b32 v{a_+1}, 0x1fffe, v{a_+1}
            v_lshrrev_b32 v{a_}, 15, v{a_}
            v_and_b32 v{a_}, 0x1fffe, v{a_}
            ds_read_u16 v{E+4*i+d}, v{a_+1}
            ds_read_u16_d16_hi v{96+4*i+d}, v{a_}
            """)
            if n % 4 == 0: k.e("s_waitcnt lgkmcnt(4)")
    k.e("s_waitcnt lgkmcnt(0)")
    for jj in range(16):
        k.e(f"v_and_b32 v{96+jj}, 0xffff0000, v{96+jj}")
        k.e(f"v_or_b32 v{E+jj}, v{E+jj}, v{96+jj}")
    k.e("s_nop 1")
    for i in range(4):
        k.e(f"v_mov_b32_dpp v{76+i}, v{E+4*i} wave_shl:1 row_mask:0xf bank_mask:0xf bound_ctrl:0")
    for i in range(3):
        k.e(f"v_readlane_b32 s56, v{E+4*(i+1)}, 0")
        k.e("s_nop 3")
        k.e(f"v_writelane_b32 v{76+i}, s56, 63")
    if prof: prof.mark()
    OO = 96
    for i in range(4):
        for d in range(4):
            nx = E + 4*i + d + 1 if d < 3 else 76 + i
            k.e(f"v_alignbit_b32 v{OO+4*i+d}, v{nx}, v{E+4*i+d}, 16")
    srd(k, S, 54, WS_END)
    k.e(f"""
    s_mul_i32 s40, s{ch}, {KRC}
    s_add_u32 s40, s40, {KR}
    s_add_u32 s41, s40, {KRH}
    v_lshlrev_b32 v7, 4, v2
    v_mov_b32 v8, 0
    v_mov_b32 v9, 0
    v_mov_b32 v10, 0
    v_mov_b32 v11, 0
    """)
    for i in range(4):
        k.e(f"buffer_store_dwordx4 {vr(E+4*i,4)}, v7, s[{S}:{S+3}], s40 offen offset:{1024*i}")
        k.e(f"buffer_store_dwordx4 {vr(OO+4*i,4)}, v7, s[{S}:{S+3}], s41 offen offset:{1024*i}")
    k.e(f"""
    s_add_u32 s40, s40, 4096
    s_add_u32 s41, s41, 4096
    s_mul_i32 s42, s{ch}, {UPC}
    s_add_u32 s42, s42, {UP}
    v_lshrrev_b32 v6, 5, v2
    v_mul_u32_u24 v6, 1536, v6
    v_and_b32 v12, 31, v2
    v_lshl_add_u32 v6, v12, 4, v6
    buffer_store_dwordx4 v[8:11], v6, s[{S}:{S+3}], s42 offen
    buffer_store_dwordx4 v[8:11], v6, s[{S}:{S+3}], s42 offen offset:3072
    s_mov_b64 exec, 0xff
    buffer_store_dwordx4 v[8:11], v7, s[{S}:{S+3}], s40 offen
    buffer_store_dwordx4 v[8:11], v7, s[{S}:{S+3}], s41 offen
    s_mov_b64 exec, -1
    """)

PD = 4
def gen_conv(k, ch_sgpr, prof=None, var=()):
    lane = 2
    k.c("---- SSM convolution ----")
    k.e(f"""
    s_load_dwordx2 s[54:55], s[0:1], 96
    v_and_b32 v3, 31, v{lane}
    v_lshrrev_b32 v4, 5, v{lane}
    v_and_b32 v5, 19, v3
    v_bfe_u32 v6, v3, 2, 1
    v_lshl_or_b32 v5, v6, 3, v5
    v_bfe_u32 v6, v3, 3, 1
    v_lshl_or_b32 v5, v6, 2, v5
    v_and_b32 v6, 1, v5
    v_xor_b32 v6, 1, v6
    v_sub_u32 v7, 2047, v5
    v_sub_u32 v7, v7, v6
    v_lshl_add_u32 v7, v4, 3, v7
    v_lshlrev_b32 v7, 1, v7
    v_mul_u32_u24 v6, {KRH}, v6
    v_add_u32 v7, v7, v6
    v_add_u32 v8, {KR - 4032}, v7
    v_mul_u32_u24 v6, 1536, v4
    v_lshl_add_u32 v6, v3, 4, v6
    v_add_u32 v9, {UP + 512 - 1008}, v6
    v_lshlrev_b32 v6, 6, v3
    v_lshl_add_u32 v10, v4, 4, v6
    s_mul_i32 s44, s{ch_sgpr}, {KRC}
    s_mul_i32 s45, s{ch_sgpr}, {UPC}
    v_add_u32 v11, s44, v8
    v_add_u32 v12, s45, v9
    v_add_u32 v13, 512, v12
    s_mov_b32 s47, 4032
    s_mov_b32 s48, 1008
    s_waitcnt lgkmcnt(0)
    """)
    srd(k, 60, 54, WS_END)
    ACC = 16; FR = 48
    def loads(slot, both):
        b = FR + 24 * slot
        k.e(f"buffer_load_dwordx4 {vr(b,4)}, v11, s[60:63], s47 offen")
        k.e(f"buffer_load_dwordx4 {vr(b+8,4)}, v13, s[60:63], s48 offen")
        if both: k.e(f"buffer_load_dwordx4 {vr(b+16,4)}, v12, s[60:63], s48 offen")
        k.e(f"buffer_load_dwordx4 {vr(b+4,4)}, v11, s[60:63], s47 offen offset:32")
        k.e(f"buffer_load_dwordx4 {vr(b+12,4)}, v13, s[60:63], s48 offen offset:3072")
        if both: k.e(f"buffer_load_dwordx4 {vr(b+20,4)}, v12, s[60:63], s48 offen offset:3072")
        k.e("s_sub_u32 s47, s47, 64")
        k.e("s_max_i32 s47, s47, 0")
        k.e("s_sub_u32 s48, s48, 16")
        k.e("s_max_i32 s48, s48, 0")
    for i in range(32): k.e(f"v_mov_b32 v{ACC+i}, 0")
    for slot in range(PD): loads(slot, True)
    A0, A1 = vr(ACC, 16), vr(ACC + 16, 16)
    k.e("s_mov_b32 s49, 0")
    l1 = k.newlabel("c1")
    k.label(l1)
    for slot in range(PD):
        b = FR + 24 * slot
        n = 6 * (PD - 1)
        k.e(f"s_waitcnt vmcnt({n + 3})")
        k.e(f"v_mfma_f32_32x32x16_bf16 {A1}, {vr(b,4)}, {vr(b+8,4)}, {A1}")
        if "csleep" in var: k.e("s_sleep 1")
        k.e(f"v_mfma_f32_32x32x16_bf16 {A0}, {vr(b,4)}, {vr(b+16,4)}, {A0}")
        if "csleep" in var: k.e("s_sleep 1")
        k.e(f"s_waitcnt vmcnt({n})")
        k.e(f"v_mfma_f32_32x32x16_bf16 {A1}, {vr(b+4,4)}, {vr(b+12,4)}, {A1}")
        if "csleep" in var: k.e("s_sleep 1")
        k.e(f"v_mfma_f32_32x32x16_bf16 {A0}, {vr(b+4,4)}, {vr(b+20,4)}, {A0}")
        if "csleep" in var: k.e("s_sleep 1")
        loads(slot, True)
    k.e(f"""
    s_add_u32 s49, s49, {PD}
    s_cmp_lt_u32 s49, 32
    s_cbranch_scc1 {l1}
    s_waitcnt vmcnt(0)
    """)
    l2 = k.newlabel("c2")
    k.label(l2)
    for slot in range(PD):
        b = FR + 24 * slot
        n = 4 * (PD - 1)
        k.e(f"s_waitcnt vmcnt({n + 2})")
        k.e(f"v_mfma_f32_32x32x16_bf16 {A1}, {vr(b,4)}, {vr(b+8,4)}, {A1}")
        k.e(f"s_waitcnt vmcnt({n})")
        k.e(f"v_mfma_f32_32x32x16_bf16 {A1}, {vr(b+4,4)}, {vr(b+12,4)}, {A1}")
        loads(slot, False)
    k.e(f"""
    s_add_u32 s49, s49, {PD}
    s_cmp_lt_u32 s49, 64
    s_cbranch_scc1 {l2}
    s_mul_i32 s44, s{ch_sgpr}, 4096
    s_add_u32 s44, s44, {YT}
    s_add_u32 s45, s44, 2048
    s_waitcnt vmcnt(0)
    """)
    k.nop(8)
    for nt in range(2):
        for g in range(2):
            r = FR + 8 * nt + 4 * g
            for i in range(4):
                k.e(f"v_cvt_pk_bf16_f32 v{r+i}, v{ACC+16*nt+8*g+2*i}, v{ACC+16*nt+8*g+2*i+1}")
            k.e(f"buffer_store_dwordx4 {vr(r,4)}, v10, s[60:63], s{44+nt} offen offset:{32*g}")

FIN_LDS = 2 * 192 * 128
def gen_fin(k, wg="s2"):
    lane = 2; t = 32
    k.c("---- SSM finalisation ----")
    k.e(f"""
    s_load_dwordx2 s[26:27], s[0:1], 80
    s_load_dwordx2 s[28:29], s[0:1], 96
    v_lshrrev_b32 v1, 6, v0
    v_and_b32 v2, 63, v0
    s_mul_i32 s21, {wg}, 21846
    v_readfirstlane_b32 s38, v1
    s_lshr_b32 s21, s21, 16
    s_mul_i32 s22, s21, 3
    s_sub_u32 s22, {wg}, s22
    """)
    k.e(f"""
    s_mul_i32 s24, s22, {192*4096}
    s_lshl_b32 s25, s21, 7
    s_add_u32 s24, s24, s25
    s_mul_i32 s25, s38, {48*4096}
    s_add_u32 s24, s24, s25
    s_add_u32 s24, s24, {YT}
    s_mul_i32 s30, s38, 6144
    v_lshrrev_b32 v{t}, 3, v{lane}
    v_bfe_u32 v{t+1}, v{lane}, 4, 1
    v_lshlrev_b32 v{t+1}, 1, v{t+1}
    v_and_b32 v{t+2}, 7, v{lane}
    v_xor_b32 v{t+2}, v{t+2}, v{t+1}
    v_lshlrev_b32 v{t}, 12, v{t}
    v_lshl_add_u32 v{t+3}, v{t+2}, 4, v{t}
    v_xor_b32 v{t+2}, 4, v{t+2}
    v_lshl_add_u32 v{t+4}, v{t+2}, 4, v{t}
    s_waitcnt lgkmcnt(0)
    """)
    srd(k, 8, 28, WS_END)
    srd(k, 16, 26, OUTB)
    for i in range(6):
        k.e(f"""
        s_add_u32 m0, s30, {i*1024}
        s_add_u32 s31, s24, {i*8*4096}
        buffer_load_dwordx4 v{t+3 if i % 2 == 0 else t+4}, s[8:11], s31 offen lds
        """)
    k.e(f"""
    s_mul_i32 s39, s22, {192*2048}
    s_lshl_b32 s25, s21, 7
    s_add_u32 s39, s39, s25
    s_mul_i32 s25, s38, {48*2048}
    s_add_u32 s39, s39, s25
    s_add_u32 s39, s39, {YT2 - 2048}
    s_cmp_ge_u32 s21, 16
    s_cselect_b32 s39, s39, 0x40000000
    v_lshrrev_b32 v{t+9}, 3, v{lane}
    v_lshlrev_b32 v{t+9}, 11, v{t+9}
    v_sub_u32 v{t+10}, v{t+4}, v{t}
    v_sub_u32 v{t+11}, v{t+3}, v{t}
    v_add_u32 v{t+10}, v{t+10}, v{t+9}
    v_add_u32 v{t+11}, v{t+11}, v{t+9}
    """)
    for i in range(6):
        k.e(f"""
        s_add_u32 m0, s30, {24576 + i*1024}
        s_add_u32 s31, s39, {i*8*2048}
        buffer_load_dwordx4 v{t+11 if i % 2 == 0 else t+10}, s[8:11], s31 offen lds
        """)
    k.e(f"""
    v_lshrrev_b32 v{t}, 4, v{lane}
    v_bfe_u32 v{t+1}, v{lane}, 2, 2
    v_lshl_add_u32 v{t+2}, v{t}, 3, v{t+1}
    v_lshlrev_b32 v{t+2}, 7, v{t+2}
    v_bfe_u32 v{t+5}, v{lane}, 1, 1
    s_lshl_b32 s31, s38, 1
    v_add_u32 v{t+5}, s31, v{t+5}
    v_bfe_u32 v{t+6}, v{lane}, 3, 1
    v_lshlrev_b32 v{t+6}, 1, v{t+6}
    v_and_b32 v{t+7}, 1, v{t}
    v_lshl_or_b32 v{t+6}, v{t+7}, 2, v{t+6}
    v_xor_b32 v{t+5}, v{t+5}, v{t+6}
    v_lshl_add_u32 v{t+2}, v{t+5}, 4, v{t+2}
    v_and_b32 v{t+5}, 1, v{lane}
    v_lshl_add_u32 v{t+2}, v{t+5}, 3, v{t+2}
    v_and_b32 v{t+5}, 15, v{lane}
    s_lshl_b32 s31, s21, 6
    s_lshl_b32 s36, s38, 4
    s_add_u32 s31, s31, s36
    v_add_u32 v{t+5}, s31, v{t+5}
    v_mul_u32_u24 v{t+7}, 2304, v{t+5}
    v_lshl_add_u32 v{t+7}, v{t}, 4, v{t+7}
    s_mul_i32 s36, s22, 384
    """)
    k.e("s_waitcnt vmcnt(0)")
    k.e("s_barrier")
    k.e("s_mov_b32 s37, 0xffff0000")
    for oq in range(6):
        Y = 8 + 8 * (oq & 1)
        k.e(f"""
        ds_read_b64_tr_b16 {vr(Y,2)}, v{t+2} offset:{oq*4096}
        ds_read_b64_tr_b16 {vr(Y+2,2)}, v{t+2} offset:{oq*4096 + 512}
        ds_read_b64_tr_b16 {vr(Y+4,2)}, v{t+2} offset:{24576 + oq*4096}
        ds_read_b64_tr_b16 {vr(Y+6,2)}, v{t+2} offset:{24576 + oq*4096 + 512}
        s_waitcnt lgkmcnt(0)
        """)
        O_ = 24 + 4 * (oq & 1)
        for i in range(4):
            k.e(f"""
            v_lshlrev_b32 v48, 16, v{Y+i}
            v_and_b32 v49, s37, v{Y+i}
            v_lshlrev_b32 v50, 16, v{Y+4+i}
            v_and_b32 v51, s37, v{Y+4+i}
            v_add_f32 v48, v48, v50
            v_add_f32 v49, v49, v51
            v_cvt_pk_bf16_f32 v{O_+i}, v48, v49
            """)
        k.e(f"buffer_store_dwordx4 {vr(O_,4)}, v{t+7}, s[16:19], s36 offen offset:{64*oq}")


def gen_kgen_with_barriers(k, chan_sgpr, ldsbase_sgpr, nbar):
    tmp = K(k.name + "_kg")
    tmp.uid = k.uid + 1000
    gen_kgen(tmp, chan_sgpr, ldsbase_sgpr)
    k.uid = tmp.uid
    lines = tmp.lines
    idx = [i for i, l in enumerate(lines) if l.strip() and not l.strip().startswith(";") and not l.strip().endswith(":")]
    n = len(idx)
    first = next(i for i in idx if "s_waitcnt vmcnt(0)" in lines[i])
    rest = [i for i in idx if i > first]
    pos = [first] + [rest[int(len(rest) * 0.7 * j / (nbar - 1))] for j in range(1, nbar)]
    out = []
    ps = set(pos)
    assert len(ps) == nbar
    for i, l in enumerate(lines):
        out.append(l)
        if i in ps: out.append("    s_barrier")
    k.lines += out


UTW_LDS = 4096
def gen_utrans_wave(k, task_sgpr, lds_sgpr):
    T = task_sgpr; LB = lds_sgpr
    k.c("---- u transposition (per wave) ----")
    k.e(f"""
    s_load_dwordx2 s[4:5], s[0:1], 0
    s_load_dwordx2 s[6:7], s[0:1], 96
    s_mul_i32 s22, s{T}, 1821
    s_lshr_b32 s22, s22, 16
    s_mul_i32 s23, s22, 36
    s_sub_u32 s23, s{T}, s23
    s_mul_i32 s24, s22, {128*1152}
    s_lshl_b32 s25, s23, 5
    s_add_u32 s24, s24, s25
    v_lshrrev_b32 v3, 1, v2
    v_mul_u32_u24 v3, 1152, v3
    v_and_b32 v4, 1, v2
    v_lshl_add_u32 v3, v4, 4, v3
    s_waitcnt lgkmcnt(0)
    """)
    srd(k, 8, 4, UB)
    srd(k, 12, 6, WS_END)
    for i in range(4):
        k.e(f"""
        s_add_u32 m0, s{LB}, {i*1024}
        s_add_u32 s26, s24, {i*32*1152}
        buffer_load_dwordx4 v3, s[8:11], s26 offen lds
        """)
    k.e(f"""
    v_mov_b32 v8, 0
    v_mov_b32 v9, 0
    v_mov_b32 v10, 0
    v_mov_b32 v11, 0
    v_and_b32 v5, 15, v2
    v_mul_u32_u24 v5, {UPC}, v5
    v_lshrrev_b32 v6, 4, v2
    v_mul_u32_u24 v7, 1536, v6
    v_add_u32 v7, v7, v5
    s_mul_i32 s27, s23, {16*UPC}
    s_add_u32 s27, s27, {UP}
    s_lshl_b32 s28, s22, 5
    s_add_u32 s28, s28, s27
    buffer_store_dwordx4 v[8:11], v7, s[12:15], s28 offen
    buffer_store_dwordx4 v[8:11], v7, s[12:15], s28 offen offset:16
    v_lshl_add_u32 v5, v6, 4, v5
    s_lshl_b32 s28, s22, 6
    s_add_u32 s28, s28, s27
    s_add_u32 s28, s28, 512
    v_bfe_u32 v12, v2, 2, 2
    v_lshl_add_u32 v12, v6, 5, v12
    v_lshlrev_b32 v12, 5, v12
    v_and_b32 v13, 3, v2
    v_lshl_add_u32 v12, v13, 3, v12
    v_add_u32 v12, s{LB}, v12
    s_waitcnt vmcnt(2)
    """)
    for p in range(4):
        b = 16 + 4 * p
        k.e(f"ds_read_b64_tr_b16 {vr(b,2)}, v12 offset:{p*8*32}")
        k.e(f"ds_read_b64_tr_b16 {vr(b+2,2)}, v12 offset:{p*8*32 + 4*32}")
    for p in range(4):
        b = 16 + 4 * p
        k.e(f"s_waitcnt lgkmcnt({6 - 2*p})")
        k.e(f"buffer_store_dwordx4 {vr(b,4)}, v5, s[12:15], s28 offen offset:{p*1536 if p*1536 < 4096 else 0}" if p < 3 else f"s_add_u32 s28, s28, 4608\nbuffer_store_dwordx4 {vr(b,4)}, v5, s[12:15], s28 offen")


UTA_LDS = 64 * 288
def gen_utrans_aux(k, tb64_sgpr, db_sgpr, lds_sgpr, after_loads=None):
    TB = tb64_sgpr; DB = db_sgpr; LB = lds_sgpr
    k.c("---- u transposition (aux wave) ----")
    k.e(f"""
    s_load_dwordx2 s[4:5], s[0:1], 0
    s_load_dwordx2 s[6:7], s[0:1], 96
    s_mul_i32 s24, s{TB}, {64*1152}
    s_mul_i32 s25, s{DB}, 288
    s_add_u32 s24, s24, s25
    s_mov_b32 s30, 3641
    s_waitcnt lgkmcnt(0)
    """)
    srd(k, 8, 4, UB)
    srd(k, 12, 6, WS_END)
    for i in range(18):
        k.e(f"""
        v_add_u32 v4, {64*i}, v2
        v_mul_lo_u32 v5, v4, s30
        v_lshrrev_b32 v5, 16, v5
        v_mul_u32_u24 v6, 18, v5
        v_sub_u32 v6, v4, v6
        v_mul_u32_u24 v5, 1152, v5
        v_lshl_add_u32 v5, v6, 4, v5
        s_add_u32 m0, s{LB}, {i*1024}
        s_nop 0
        buffer_load_dwordx4 v5, s[8:11], s24 offen lds
        """)
    if after_loads: after_loads()
    k.e(f"""
    v_and_b32 v4, 15, v2
    v_mul_u32_u24 v4, {UPC}, v4
    v_lshrrev_b32 v5, 4, v2
    s_mul_i32 s27, s{DB}, {144*UPC}
    s_add_u32 s27, s27, {UP}
    """)
    k.e(f"""
    v_and_b32 v7, 1, v5
    v_lshrrev_b32 v12, 1, v5
    v_lshlrev_b32 v13, 5, v7
    v_lshl_add_u32 v13, v12, 3, v13
    v_bfe_u32 v14, v2, 2, 2
    v_add_u32 v13, v13, v14
    v_mul_u32_u24 v13, 288, v13
    v_and_b32 v14, 3, v2
    v_lshl_add_u32 v13, v14, 3, v13
    v_add_u32 v13, s{LB}, v13
    v_mul_u32_u24 v12, 1536, v12
    v_lshl_add_u32 v12, v7, 4, v12
    v_add_u32 v12, v12, v4
    s_lshl_b32 s28, s{TB}, 5
    s_add_u32 s28, s28, s27
    s_add_u32 s28, s28, 512
    s_waitcnt vmcnt(0)
    """)
    for dg in range(9):
        for pp in range(2):
            b = 16 + 4 * ((2 * dg + pp) & 3)
            k.e(f"ds_read_b64_tr_b16 {vr(b,2)}, v13 offset:{32*dg + pp*16*288}")
            k.e(f"ds_read_b64_tr_b16 {vr(b+2,2)}, v13 offset:{32*dg + pp*16*288 + 4*288}")
            k.e("s_waitcnt lgkmcnt(0)")
            k.e(f"buffer_store_dwordx4 {vr(b,4)}, v12, s[12:15], s28 offen offset:{pp*3072}")
        k.e(f"s_add_u32 s28, s28, {16*UPC}")
```

```python
import sys
from g import *
from build import assemble
import k_qkv, k_attn, k_oproj
STAMPS = "stamps" in sys.argv
PROFON = "prof" in sys.argv
var = [a[2:] for a in sys.argv if a.startswith('v=')]
kernels = []; launches = []
def make(name, idx, nwg, block, lds, nv, body):
    k = K(name)
    if STAMPS: stamp_id(k, 8); stamp_begin(k)
    k.e(f"s_cmp_ge_u32 s2, {nwg}")
    k.e(f"s_cbranch_scc1 L_{name}_exit")
    PR = Prof(k, PROFON, idx)
    if PR.on:
        stamp_id(k, 8)
        k.e("s_memtime s[56:57]\ns_waitcnt lgkmcnt(0)\ns_mov_b32 s83, s56\ns_memrealtime s[56:57]\ns_waitcnt lgkmcnt(0)\ns_mov_b32 s55, s56")
    body(k, PR if PR.on else None)
    if PR.on:
        PR.mark(); k.e("s_mov_b32 s82, s83"); PR.n = 23; PR.dump()
    if STAMPS: stamp_end(k, idx)
    k.label(f"L_{name}_exit")
    k.e("s_endpgm")
    kernels.append((k, nv, 96)); launches.append((name, nwg, block, lds))

import k_ssm
K1_LDS = max(k_qkv.GEMM_LDS, 9 * k_ssm.KG_LDS_WAVE + 2 * k_ssm.UTA_LDS)
def k1_body(k, p):
    lut = k.newlabel("ut"); lkg = k.newlabel("kg"); lend = k.newlabel("k1end")
    k.e("""
    v_lshrrev_b32 v1, 6, v0
    v_and_b32 v2, 63, v0
    s_nop 0
    v_readfirstlane_b32 s49, v1
    s_cmp_ge_u32 s2, 192
    """)
    k.e(f"s_cbranch_scc1 {lkg}")
    lpf = k.newlabel("pf")
    k.e("s_cmp_ge_u32 s49, 8")
    k.e(f"s_cbranch_scc1 {lpf}")
    k_qkv.gen_qkv(k, p)
    k.e(f"s_branch {lend}")
    k.label(lpf)
    if "pf" in var:
        k_qkv.gen_prefetch(k, 49, k_qkv.GEMM_LDS, first_after=1)
    k.e(f"s_branch L_{k.name}_exit")
    k.label(lkg)
    k.e("s_cmp_ge_u32 s49, 9")
    k.e(f"s_cbranch_scc1 {lut}")
    k.e(f"""
    s_sub_u32 s20, s2, 192
    s_mul_i32 s20, s20, 9
    s_add_u32 s20, s20, s49
    s_mul_i32 s21, s49, {k_ssm.KG_LDS_WAVE}
    """)
    if p: p.n = 0
    k_ssm.gen_kgen(k, 20, 21, p)
    k.e(f"s_branch {lend}")
    k.label(lut)
    k.e(f"""
    s_sub_u32 s40, s2, 192
    s_and_b32 s41, s40, 3
    s_lshr_b32 s40, s40, 2
    s_lshl_b32 s40, s40, 1
    s_sub_u32 s42, s49, 9
    s_add_u32 s40, s40, s42
    s_mul_i32 s42, s42, {k_ssm.UTA_LDS}
    s_add_u32 s42, s42, {9 * k_ssm.KG_LDS_WAVE}
    """)
    k_ssm.gen_utrans_aux(k, 40, 41, 42)
    k.label(lend)
def k3_body(k, p):
    lf = k.newlabel("fin"); lend = k.newlabel("k3end")
    k.e("s_cmp_ge_u32 s2, 144")
    k.e(f"s_cbranch_scc1 {lf}")
    k_oproj.gen_oproj(k, p)
    k.e(f"s_branch {lend}")
    k.label(lf)
    k.e("""
    v_lshrrev_b32 v1, 6, v0
    s_nop 0
    v_readfirstlane_b32 s49, v1
    s_nop 3
    s_cmp_ge_u32 s49, 4
    """)
    k.e(f"s_cbranch_scc1 L_{k.name}_exit")
    k.e("s_sub_u32 s50, s2, 144")
    k_ssm.gen_fin(k, wg="s50")
    k.label(lend)
make("k1_kernel", 0, 256, 704, K1_LDS, 128, k1_body)
make("k2_kernel", 1, 256, 768, k_attn.ATT_LDS, k_attn.NV_K2, lambda k, p: k_attn.gen_k2(k, p, var=var))
make("k3_kernel", 2, 240, 512, k_oproj.OP_LDS, 100, k3_body)
import re
def add_flag(kern, flag, pred=lambda l: True):
    out = []
    for l in kern.lines:
        if "buffer_store" in l and pred(l): l = l.rstrip() + " " + flag
        out.append(l)
    kern.lines = out
def add_flag_after(kern, marker, flag):
    out = []; on = False
    for l in kern.lines:
        if marker in l: on = True
        if on and "buffer_store" in l: l = l.rstrip() + " " + flag
        out.append(l)
    kern.lines = out
for x in var:
    if x.startswith("ssm"): add_flag_after(kernels[0][0], "SSM kernel generation", x[3:].replace("_", " "))
    if x.startswith("st1"): add_flag(kernels[0][0], x[3:].replace("_", " "))
    if x.startswith("st2"): add_flag(kernels[1][0], x[3:].replace("_", " "))
    if x.startswith("st3"): add_flag(kernels[2][0], x[3:].replace("_", " "))
txt, nerr = assemble(kernels, launches)
open(sys.argv[1] if len(sys.argv) > 1 else "out.s", "w").write(txt)
print("lint errors:", nerr)
```

```python
from g import *
from sb import SB
from layout import *
from k_qkv import srd, f2u

QF, Q2A, Q2B = 4, 8, 10
KF, KX = 12, 16
V0, V1 = 20, 24
P = 28
SA, SBUF = 36, 52
O = 68
vK, vK2, vV = 84, 85, 86
T0 = 88
CA = 100
CR = 116
vA, vU, vY = 156, 157, 158
NV_K2 = 168
ATT_LDS = 163840

def koff(tt): return (tt >> 3) * CH + (tt & 7) * 1024
def kxoff(q): return (q >> 1) * CH + (q & 1) * 512
def voff(ks): return (ks >> 4) * CH + (ks & 15) * VKS

def gen_attn(k, prof=None, var=()):
    t = T0
    lane = 2
    conv = "noconv" not in var and "sepconv" not in var
    k.c("---- attention ----")
    k.e(f"""
    s_load_dwordx2 s[4:5], s[0:1], 96
    s_and_b32 s20, s2, 7
    s_lshr_b32 s21, s2, 3
    s_and_b32 s22, s21, 3
    s_lshl_b32 s20, s20, 2
    s_add_u32 s20, s20, s22
    s_lshr_b32 s21, s21, 2
    s_lshl_b32 s21, s21, 3
    s_add_u32 s21, s21, s19
    s_lshl_b32 s26, s20, 16
    s_lshl_b32 s27, s21, 10
    s_add_u32 s26, s26, s27
    s_add_u32 s26, s26, {QM}
    s_lshl_b32 s28, s20, 13
    s_lshl_b32 s27, s21, 7
    s_add_u32 s28, s28, s27
    s_add_u32 s28, s28, {Q2}
    v_lshlrev_b32 v{vK}, 4, v{lane}
    v_and_b32 v{t}, 31, v{lane}
    v_lshlrev_b32 v{t+1}, 2, v{t}
    v_mov_b32 v{t+2}, -1
    v_cmp_gt_u32 vcc, 32, v{lane}
    v_mov_b32 v{Q2A+1}, 0
    v_mov_b32 v{Q2B}, 0
    v_cndmask_b32 v{t+2}, v{t+2}, v{t+1}, vcc
    """)
    k.e("s_waitcnt lgkmcnt(0)")
    if prof: prof.mark()
    srd(k, 8, 4, WS_END)
    k.e(f"buffer_load_dwordx4 {vr(QF,4)}, v{vK}, s[8:11], s26 offen")
    k.e(f"buffer_load_dword v{Q2A}, v{t+2}, s[8:11], s28 offen")
    if "b12" in var:
        k.e(f"""
        s_mul_i32 s24, s20, {HB}
        s_lshl_b32 s25, s19, 11
        s_add_u32 s25, s25, 16384
        s_add_u32 s24, s24, s25
        s_mov_b32 m0, s25
        s_add_u32 s27, s24, 1024
        buffer_load_dwordx4 v{vK}, s[8:11], s24 offen lds
        s_add_u32 m0, s25, 1024
        s_nop 0
        buffer_load_dwordx4 v{vK}, s[8:11], s27 offen lds
        """)
    if conv:
        l6 = k.newlabel("u6"); lu = k.newlabel("ud"); l7 = k.newlabel("u7"); l8 = k.newlabel("u8")
        k.e(f"""
        s_cmp_ge_u32 s19, 6
        s_cbranch_scc1 {l6}
        s_mul_i32 s34, s19, 86
        s_lshr_b32 s34, s34, 8
        s_mul_i32 s35, s34, 3
        s_sub_u32 s35, s19, s35
        s_lshl_b32 s30, s2, 1
        s_add_u32 s30, s30, s34
        s_branch {lu}
        """)
        k.label(l6)
        if "rebal" in var:
            k.e(f"""
            s_mov_b32 s30, 0
            s_mov_b32 s35, 3
            s_cmp_eq_u32 s19, 7
            s_cbranch_scc1 {lu}
            s_cmp_ge_u32 s2, 192
            s_cbranch_scc1 {lu}
            s_mul_i32 s34, s2, 21846
            s_lshr_b32 s34, s34, 16
            s_mul_i32 s35, s34, 3
            s_sub_u32 s35, s2, s35
            s_add_u32 s30, s34, 512
            """)
        else:
            k.e(f"""
            s_sub_u32 s34, s19, 6
            s_cmp_ge_u32 s2, 64
            s_cbranch_scc1 {l7}
            s_add_u32 s30, s2, 512
            s_add_u32 s35, s34, 1
            s_branch {lu}
            """)
            k.label(l7)
            k.e(f"""
            s_sub_u32 s30, s2, 64
            s_lshl_b32 s30, s30, 1
            s_add_u32 s30, s30, s34
            s_add_u32 s30, s30, 512
            s_mov_b32 s35, 0
            s_cmp_lt_u32 s2, 96
            s_cbranch_scc1 {lu}
            s_mov_b32 s30, 0
            s_mov_b32 s35, 3
            """)
        k.label(lu)
        if "asym" in var:
            k.e("s_cmp_ge_u32 s19, 4")
            k.e("s_cselect_b32 s35, 3, 1")
        k.e(f"""
        s_cmp_ge_u32 s35, 1
        s_cselect_b32 s31, 1, 0
        s_cmp_eq_u32 s35, 2
        s_cselect_b32 s32, 32, 0
        s_mul_i32 s36, s30, 4096
        s_lshl_b32 s37, s31, 11
        s_add_u32 s36, s36, s37
        s_add_u32 s36, s36, {YT}
        s_mul_i32 s37, s30, 2048
        s_add_u32 s37, s37, {YT2}
        s_cmp_eq_u32 s35, 2
        s_cselect_b32 s33, s37, s36
        s_cmp_eq_u32 s35, 3
        s_cselect_b32 s31, 0, s31
        v_and_b32 v{t+5}, 3, v{t}
        v_lshlrev_b32 v{t+5}, 1, v{t+5}
        v_bfe_u32 v{t+6}, v{t}, 2, 1
        v_or_b32 v{t+5}, v{t+5}, v{t+6}
        v_lshrrev_b32 v{t+6}, 3, v{t}
        v_lshl_or_b32 v{t+5}, v{t+6}, 3, v{t+5}
        v_and_b32 v{t+6}, 1, v{t+5}
        v_xor_b32 v{t+6}, 1, v{t+6}
        v_sub_u32 v{t+7}, 2047, v{t+5}
        v_sub_u32 v{t+7}, v{t+7}, v{t+6}
        v_lshrrev_b32 v{t+4}, 5, v{lane}
        v_lshl_add_u32 v{t+7}, v{t+4}, 3, v{t+7}
        v_lshlrev_b32 v{t+7}, 1, v{t+7}
        v_mul_u32_u24 v{t+6}, {KRH}, v{t+6}
        v_add_u32 v{t+7}, v{t+7}, v{t+6}
        s_mul_i32 s36, s30, {KRC}
        s_add_u32 s36, s36, {KR}
        s_sub_u32 s36, s36, 4288
        v_add_u32 v{vA}, s36, v{t+7}
        v_mul_u32_u24 v{t+6}, 1536, v{t+4}
        v_lshl_add_u32 v{t+6}, v{t}, 4, v{t+6}
        s_mul_i32 s36, s30, {UPC}
        s_lshl_b32 s37, s31, 9
        s_add_u32 s36, s36, s37
        s_add_u32 s36, s36, {UP + 512}
        s_sub_u32 s36, s36, 1072
        v_add_u32 v{vU}, s36, v{t+6}
        v_lshlrev_b32 v{t+6}, 6, v{t}
        v_lshl_add_u32 v{vY}, v{t+4}, 4, v{t+6}
        s_lshl_b32 s38, s32, 6
        s_sub_u32 s38, 4032, s38
        s_lshl_b32 s39, s32, 4
        s_sub_u32 s39, 1008, s39
        """)
    if conv:
        for i in range(56): k.e(f"v_mov_b32 v{CA+i}, 0")
    k.e(f"""
    v_lshrrev_b32 v{t+3}, 5, v{lane}
    v_mul_u32_u24 v{t+3}, {VH}, v{t+3}
    v_min_u32 v{t+5}, 19, v{t}
    v_lshl_add_u32 v{t+5}, v{t+5}, 4, v{t+3}
    v_add_u32 v{vV}, 9216, v{t+5}
    v_lshlrev_b32 v{vK2}, 4, v{t}
    v_add_u32 v{vK2}, 8192, v{vK2}
    """)
    for i in range(16): k.e(f"v_mov_b32 v{O+i}, 0")
    for i in range(4): k.e(f"v_mov_b32 v{P+4+i}, 0")
    for i in range(4): k.e(f"v_mov_b32 v{V1+i}, 0")
    k.e("s_waitcnt vmcnt(0)")
    k.e(f"v_mov_b32 v{Q2B+1}, v{Q2A}")
    if prof: prof.mark()
    k.e("s_barrier")
    if prof: prof.mark()
    if "kxm" in var:
        for i in range(4): k.e(f"v_mov_b32 v{KX+i}, 0")
        k.e("s_mov_b32 exec_hi, 0")
        k.e(f"ds_read_b128 {vr(KX,4)}, v{vK2}")
        k.e("s_mov_b32 exec_hi, -1")
    else:
        k.e(f"ds_read_b128 {vr(KX,4)}, v{vK2}")
    k.e(f"""
    ds_read_b128 {vr(KF,4)}, v{vK}
    s_waitcnt lgkmcnt(0)
    v_mfma_f32_32x32x16_bf16 {vr(SA,16)}, {vr(KF,4)}, {vr(QF,4)}, 0
    v_mfma_f32_32x32x8_bf16 {vr(SA,16)}, {vr(KX,2)}, {vr(Q2A,2)}, {vr(SA,16)}
    ds_read_b128 {vr(KF,4)}, v{vK} offset:1024
    ds_read_b128 {vr(V0,4)}, v{vV}
    s_mov_b32 s41, 0
    s_waitcnt lgkmcnt(0)
    s_nop 7
    """)
    if "noprio" not in var: k.e("s_setprio 3")
    PLAINS = {"0": "1 eeeecc p eeeecc 2 eeeecc P eeeecc",
              "1": "1 eeee k cc p eeee v cc 2 eeeecc P eeee w cc",
              "2": "1 eeeecc k p eeeecc v 2 eeeecc P eeeecc w",
              "3": "1 eeeec p ceeee 2 cceeee P cceecc".replace("cceecc", "eccecc")[:0] + "1 eeeec p ceeeec 2 ceeeec P ceeeecc",
              "4": "1 ee k eecc p ee v eecc 2 eeeecc P ee w eecc",
              "5": "1 eeeeeeee p cccc 2 eeee P eeee cccc".replace("p cccc 2 eeee P eeee cccc", "cc p cc 2 eeeeee P ee cccc")}
    PAT_PLAIN = PLAINS[[x[2:] for x in var if x.startswith("pl")][0]] if any(x.startswith("pl") for x in var) else PLAINS["0"]
    pats = {"a": "1 eeeec p ceeee X ccee 2 eeccee P eecc",
            "b": "1 eeeec p ceee X eccee 2 eecce P eeecc" ,
            "c": "1 eeeecc p eee X ecc 2 eeeecc P eeeecc",
            "d": "1 eeeec p ceeee 2 ccee X eeccee P eecc",
            "e": "1 eeeecc X eeeecc p ee 2 eecc P eeeecc"}
    PAT_CONV = pats[[x[3:] for x in var if x.startswith("pat")][0]] if any(x.startswith("pat") for x in var) else pats["a"]
    PRIOS = {"0": [(6, 0, 2), (7, 0, 1), (7, 4, 0)],
             "1": [(7, 0, 2), (7, 4, 1), (7, 6, 0)],
             "2": [(6, 4, 2), (7, 2, 1), (7, 6, 0)],
             "3": [(4, 0, 2), (6, 4, 1), (7, 5, 0)],
             "4": [(7, 2, 2), (7, 5, 1), (7, 7, 0)]}
    PRIO = PRIOS[[x[2:] for x in var if x.startswith("pr")][0]] if any(x.startswith("pr") for x in var) else PRIOS["2"]
    def cl(kk, r, j):
        dr = j >> 1; s_ = j & 1
        if "sorder" in var: dr, s_ = [(0,0),(1,0),(0,1),(1,1),(2,0),(3,0),(4,0),(2,1),(3,1),(4,1)][j]
        kk.e(f"buffer_load_dwordx4 {vr(r,4)}, v{vA}, s[8:11], s38 offen offset:{256 - 64*dr + 32*s_}")
        kk.e(f"buffer_load_dwordx4 {vr(r+4,4)}, v{vU}, s[8:11], s39 offen offset:{64 - 16*dr + 3072*s_}")
    PAT_CONV2 = "1 eeee p ccee X eecc 2 eeee X ccee P eecc"
    DBL = (2, 6) if "asym" not in var else tuple(range(8))
    def body(kk, lg, cv_on, loopbody=False, first=False):
        for tin in range(8):
            cur = SA if tin % 2 == 0 else SBUF
            nxt = SBUF if tin % 2 == 0 else SA
            e = c = 0
            if tin == 0: xs = [0]
            if tin == 2 and first and "b2s" in var: kk.e("s_barrier")
            if loopbody and "noprio" not in var:
                for (pc, pt, pr) in PRIO:
                    if pt == tin:
                        lp = k.newlabel("pl")
                        kk.e(f"s_cmp_eq_u32 s41, {pc}")
                        kk.e(f"s_cbranch_scc0 {lp}")
                        kk.e(f"s_setprio {pr}")
                        kk.lines.append(lp + ":")
            pat = PAT_PLAIN if not cv_on else (PAT_CONV2 if tin in DBL else PAT_CONV)
            for tok in pat.replace(" ", ""):
                if tok == "e":
                    kk.e(f"v_exp_f32 v{cur+e}, v{cur+e}"); e += 1
                elif tok == "c":
                    assert e >= min(16, 2*c + 2)
                    kk.e(f"v_cvt_pk_bf16_f32 v{P+c}, v{cur+2*c}, v{cur+2*c+1}"); c += 1
                elif tok == "1":
                    lg.wait_for(["K"])
                    kk.e(f"v_mfma_f32_32x32x16_bf16 {vr(nxt,16)}, {vr(KF,4)}, {vr(QF,4)}, 0")
                    if "k" not in pat: kk.e(f"ds_read_b128 {vr(KF,4)}, v{vK} offset:{koff(tin+2)}"); lg.issue("K")
                elif tok == "k":
                    kk.e(f"ds_read_b128 {vr(KF,4)}, v{vK} offset:{koff(tin+2)}"); lg.issue("K")
                elif tok == "p":
                    assert c <= 4
                    lg.wait_for(["V1"])
                    kk.e(f"v_mfma_f32_32x32x16_bf16 {vr(O,16)}, {vr(V1,4)}, {vr(P+4,4)}, {vr(O,16)}")
                    if "v" not in pat: kk.e(f"ds_read_b128 {vr(V1,4)}, v{vV} offset:{voff(2*tin+1)}"); lg.issue("V1")
                elif tok == "v":
                    kk.e(f"ds_read_b128 {vr(V1,4)}, v{vV} offset:{voff(2*tin+1)}"); lg.issue("V1")
                elif tok == "2":
                    t1 = tin + 1
                    lg.wait_for(["X"])
                    kx = KX + 2 * ((t1 & 3) >> 1)
                    q2 = Q2A if (t1 & 1) == 0 else Q2B
                    kk.e(f"v_mfma_f32_32x32x8_bf16 {vr(nxt,16)}, {vr(kx,2)}, {vr(q2,2)}, {vr(nxt,16)}")
                    if (t1 & 3) == 3:
                        if "kxm" in var: kk.e("s_mov_b32 exec_hi, 0")
                        kk.e(f"ds_read_b128 {vr(KX,4)}, v{vK2} offset:{kxoff((t1+1) >> 2)}"); lg.issue("X")
                        if "kxm" in var: kk.e("s_mov_b32 exec_hi, -1")
                elif tok == "P":
                    assert c >= 4
                    lg.wait_for(["V0"])
                    kk.e(f"v_mfma_f32_32x32x16_bf16 {vr(O,16)}, {vr(V0,4)}, {vr(P,4)}, {vr(O,16)}")
                    if "w" not in pat: kk.e(f"ds_read_b128 {vr(V0,4)}, v{vV} offset:{voff(2*tin+2)}"); lg.issue("V0")
                elif tok == "w":
                    kk.e(f"ds_read_b128 {vr(V0,4)}, v{vV} offset:{voff(2*tin+2)}"); lg.issue("V0")
                elif tok == "X":
                    j = xs[0]; xs[0] += 1
                    if "asym" in var: j = j % 10 if j % 10 != 9 else 8
                    r = CR + 8 * (j % 5)
                    if "cnowait" not in var and "cnoload" not in var: kk.e("s_waitcnt vmcnt(8)")
                    if "cnox" in var:
                        pass
                    elif j == 9:
                        lx = k.newlabel("skipx")
                        kk.e("s_cmp_eq_u32 s41, 7")
                        kk.e(f"s_cbranch_scc1 {lx}")
                        kk.e(f"v_mfma_f32_32x32x16_bf16 {vr(CA,16)}, {vr(r,4)}, {vr(r+4,4)}, {vr(CA,16)}")
                        kk.lines.append(lx + ":")
                    else:
                        kk.e(f"v_mfma_f32_32x32x16_bf16 {vr(CA,16)}, {vr(r,4)}, {vr(r+4,4)}, {vr(CA,16)}")
                    if "cnoload" not in var: cl(kk, r, j)
            assert e == 16 and c == 8
    def advance():
        k.e(f"""
        v_add_u32 v{vK}, {CH}, v{vK}
        v_add_u32 v{vK2}, {CH}, v{vK2}
        v_add_u32 v{vV}, {CH}, v{vV}
        """)
    tmp = K("tmp"); lg = SB(tmp, "lgkmcnt", 15)
    body(tmp, lg, False); state = list(lg.q)
    lg.k = k
    body(k, lg, False, first=True)
    assert lg.q == state
    advance()
    k.e("s_barrier")
    if prof: prof.mark()
    k.e("s_mov_b32 s41, 1")
    def mainloop(cv_on):
        lloop = k.newlabel("loop")
        k.label(lloop)
        body(k, lg, cv_on, True)
        assert lg.q == state
        advance()
        lskip = k.newlabel("nobar")
        if cv_on:
            k.e("s_sub_u32 s38, s38, 320")
            k.e("s_sub_u32 s39, s39, 80")
        k.e(f"""
        s_add_u32 s41, s41, 1
        s_cmp_eq_u32 s41, 2
        s_cbranch_scc0 {lskip}
        s_barrier
        """)
        k.label(lskip)
        if prof:
            n0 = prof.n
            for cnt in range(2, 9):
                l2 = k.newlabel("pm")
                k.e(f"s_cmp_eq_u32 s41, {cnt}")
                k.e(f"s_cbranch_scc0 {l2}")
                prof.mark()
                k.label(l2)
        k.e("s_cmp_lt_u32 s41, 8")
        k.e(f"s_cbranch_scc1 {lloop}")
    if conv and "rebal" in var:
        lplain = k.newlabel("plain"); lj = k.newlabel("join")
        k.e("s_cmp_eq_u32 s35, 3")
        k.e(f"s_cbranch_scc1 {lplain}")
        n0 = prof.n if prof else 0
        mainloop(True)
        k.e(f"s_branch {lj}")
        k.label(lplain)
        if prof: prof.n = n0
        mainloop(False)
        k.label(lj)
    else:
        mainloop(conv)
    k.e(f"""
    s_waitcnt lgkmcnt(0)
    v_mfma_f32_32x32x16_bf16 {vr(O,16)}, {vr(V1,4)}, {vr(P+4,4)}, {vr(O,16)}
    """)
    if prof: prof.mark()
    k.nop(12)
    lfin = k.newlabel("fin"); lfb = k.newlabel("fb")
    k.e(f"""
    v_mov_b32 v{t}, v{O+10}
    v_mov_b32 v{t+1}, v{O+10}
    s_mov_b32 s42, {f2u(2.0**-64)}
    s_mov_b32 s43, {f2u(2.0**40)}
    v_permlane32_swap_b32 v{t}, v{t+1}
    s_nop 1
    v_cmp_le_f32 vcc, s42, v{t}
    v_cmp_ge_f32 s[44:45], s43, v{t}
    s_and_b64 s[44:45], s[44:45], vcc
    s_cmp_eq_u64 s[44:45], exec
    s_cselect_b32 s46, 0, 1
    """)
    k.e("s_cmp_eq_u32 s46, 1")
    k.e(f"s_cbranch_scc1 {lfb}")
    k.label(lfin)
    k.e(f"""
    v_rcp_f32 v{t}, v{t}
    v_and_b32 v{t+2}, 31, v{lane}
    v_lshrrev_b32 v{t+3}, 5, v{lane}
    s_lshl_b32 s26, s21, 5
    v_add_u32 v{t+2}, s26, v{t+2}
    v_mul_u32_u24 v{t+2}, 1152, v{t+2}
    v_lshl_add_u32 v{t+2}, v{t+3}, 3, v{t+2}
    s_mul_i32 s27, s20, 36
    s_add_u32 s27, s27, {OA}
    """)
    for r in range(10): k.e(f"v_mul_f32 v{O+r}, v{O+r}, v{t}")
    for j in range(5): k.e(f"v_cvt_pk_bf16_f32 v{P+j}, v{O+2*j}, v{O+2*j+1}")
    k.e(f"""
    buffer_store_dwordx2 {vr(P,2)}, v{t+2}, s[8:11], s27 offen
    buffer_store_dwordx2 {vr(P+2,2)}, v{t+2}, s[8:11], s27 offen offset:16
    s_mov_b32 exec_hi, 0
    buffer_store_dword v{P+4}, v{t+2}, s[8:11], s27 offen offset:32
    s_mov_b64 exec, -1
    """)
    lend = k.newlabel("end")
    if conv:
        k.e("s_waitcnt vmcnt(3)")
        for g in range(2):
            for e in range(4):
                k.e(f"v_permlane32_swap_b32 v{CA+8*g+e}, v{CA+8*g+4+e}")
        k.e("s_nop 1")
        for g in range(2):
            for e in range(4):
                k.e(f"v_cvt_pk_bf16_f32 v{CR+4*g+e}, v{CA+8*g+e}, v{CA+8*g+4+e}")
        k.e("s_cmp_eq_u32 s35, 3")
        k.e(f"s_cbranch_scc1 {lend}")
        for g in range(2):
            k.e(f"buffer_store_dwordx4 {vr(CR+4*g,4)}, v{vY}, s[8:11], s33 offen offset:{32*g}")
    k.e(f"s_branch {lend}")
    k.label(lfb)
    k.c("fallback: pass 1 = true row max, pass 2 = exp(s - max)")
    mx = t + 6
    k.e(f"""
    v_mov_b32 v{mx}, 0xff800000
    s_mov_b32 s46, 0
    s_nop 7
    """)
    lpass = k.newlabel("pass")
    k.label(lpass)
    for i in range(16): k.e(f"v_mov_b32 v{O+i}, 0")
    k.e(f"s_mov_b32 s41, 0")
    lm = k.newlabel("sl")
    k.label(lm)
    k.e(f"""
    s_lshr_b32 s47, s41, 3
    s_mul_i32 s47, s47, {CH}
    s_and_b32 s48, s41, 7
    s_lshl_b32 s49, s48, 10
    s_add_u32 s49, s49, s47
    v_lshlrev_b32 v{t+7}, 4, v{lane}
    v_add_u32 v{t+7}, s49, v{t+7}
    s_lshr_b32 s49, s48, 2
    s_lshl_b32 s49, s49, 9
    s_and_b32 s50, s48, 3
    s_lshl_b32 s50, s50, 2
    s_add_u32 s49, s49, s50
    s_add_u32 s49, s49, s47
    s_add_u32 s49, s49, 8192
    v_and_b32 v{t+8}, 31, v{lane}
    v_lshlrev_b32 v{t+8}, 4, v{t+8}
    v_add_u32 v{t+8}, s49, v{t+8}
    s_mul_i32 s49, s48, {2*VKS}
    s_add_u32 s49, s49, s47
    s_add_u32 s49, s49, 9216
    v_add_u32 v{t+9}, s49, v{t+5}
    ds_read_b128 {vr(KF,4)}, v{t+7}
    ds_read_b32 v{KX}, v{t+8}
    v_mov_b32 v{KX+1}, 0
    ds_read_b128 {vr(V0,4)}, v{t+9}
    ds_read_b128 {vr(V1,4)}, v{t+9} offset:{VKS}
    s_waitcnt lgkmcnt(0)
    v_mfma_f32_32x32x16_bf16 {vr(SA,16)}, {vr(KF,4)}, {vr(QF,4)}, 0
    v_mfma_f32_32x32x8_bf16 {vr(SA,16)}, {vr(KX,2)}, {vr(Q2A,2)}, {vr(SA,16)}
    """)
    k.nop(12)
    lp2 = k.newlabel("p2"); lnx = k.newlabel("nx")
    k.e("s_cmp_eq_u32 s46, 1")
    k.e(f"s_cbranch_scc1 {lp2}")
    for i in range(8):
        k.e(f"v_max3_f32 v{mx}, v{SA+2*i}, v{SA+2*i+1}, v{mx}")
    k.e(f"s_branch {lnx}")
    k.label(lp2)
    for i in range(16):
        k.e(f"v_sub_f32 v{SA+i}, v{SA+i}, v{mx}")
    for i in range(16):
        k.e(f"v_exp_f32 v{SA+i}, v{SA+i}")
    k.e("s_nop 0")
    for j in range(8):
        k.e(f"v_cvt_pk_bf16_f32 v{P+j}, v{SA+2*j}, v{SA+2*j+1}")
    k.e(f"""
    s_nop 1
    v_mfma_f32_32x32x16_bf16 {vr(O,16)}, {vr(V0,4)}, {vr(P,4)}, {vr(O,16)}
    v_mfma_f32_32x32x16_bf16 {vr(O,16)}, {vr(V1,4)}, {vr(P+4,4)}, {vr(O,16)}
    """)
    k.label(lnx)
    ldone = k.newlabel("fbdone")
    k.e(f"""
    s_add_u32 s41, s41, 1
    s_cmp_lt_u32 s41, 64
    s_cbranch_scc1 {lm}
    s_cmp_eq_u32 s46, 1
    s_cbranch_scc1 {ldone}
    v_mov_b32 v{t+7}, v{mx}
    s_nop 1
    v_permlane32_swap_b32 v{mx}, v{t+7}
    s_nop 1
    v_max_f32 v{mx}, v{mx}, v{t+7}
    s_mov_b32 s46, 1
    s_branch {lpass}
    """)
    k.label(ldone)
    k.nop(12)
    k.e(f"""
    v_mov_b32 v{t}, v{O+10}
    v_mov_b32 v{t+1}, v{O+10}
    s_nop 1
    v_permlane32_swap_b32 v{t}, v{t+1}
    s_nop 1
    s_branch {lfin}
    """)
    k.label(lend)

def gen_loader(k, var=()):
    k.c("---- K/V loader ----")
    k.e(f"""
    s_load_dwordx2 s[4:5], s[0:1], 96
    s_and_b32 s20, s2, 7
    s_lshr_b32 s21, s2, 3
    s_and_b32 s22, s21, 3
    s_lshl_b32 s20, s20, 2
    s_add_u32 s20, s20, s22
    s_sub_u32 s23, s19, 8
    s_mul_i32 s24, s20, {HB}
    s_lshl_b32 s25, s23, 10
    s_add_u32 s24, s24, s25
    v_lshlrev_b32 v4, 4, v2
    s_setprio 3
    s_waitcnt lgkmcnt(0)
    """)
    srd(k, 8, 4, WS_END)
    def piece(j):
        k.e(f"s_add_u32 m0, s25, {j*4096}")
        k.e(f"s_add_u32 s27, s24, {j*4096}")
        k.e(f"buffer_load_dwordx4 v4, s[8:11], s27 offen lds")
    if "b2s" in var:
        for j in (0, 2, 3): piece(j)
        for j in (1, 4, 5, 6, 7): piece(j)
        k.e("s_waitcnt vmcnt(5)")
        k.e("s_barrier")
        k.e("s_waitcnt vmcnt(0)")
        k.e("s_barrier")
    else:
        for j in range(4 if "b12" in var else 8): piece(j)
        k.e("s_waitcnt vmcnt(0)")
        k.e("s_barrier")
    for j in range(8, 38): piece(j)
    k.e("s_waitcnt vmcnt(25)")
    k.e("s_barrier")
    k.e("s_waitcnt vmcnt(0)")
    k.e("s_barrier")
    k.e(f"""
    s_load_dwordx2 s[6:7], s[0:1], 72
    s_lshr_b32 s30, s2, 3
    s_lshl_b32 s30, s30, 2
    s_add_u32 s30, s30, s23
    s_mul_i32 s30, s30, {41*128}
    v_lshlrev_b32 v5, 7, v2
    v_cmp_gt_u32 vcc, 41, v2
    s_and_saveexec_b64 s[32:33], vcc
    s_waitcnt lgkmcnt(0)
    """)
    srd(k, 12, 6, WOB)
    k.e("buffer_load_dword v160, v5, s[12:15], s30 offen")
    if "upf" in var:
        k.e(f"""
        s_mov_b64 exec, s[32:33]
        s_load_dwordx2 s[6:7], s[0:1], 0
        s_lshr_b32 s30, s2, 3
        s_lshl_b32 s30, s30, 2
        s_add_u32 s30, s30, s23
        s_cmp_ge_u32 s30, 36
        s_cbranch_scc1 {{LSKIP}}
        s_mul_i32 s31, s30, 21846
        s_lshr_b32 s31, s31, 16
        s_mul_i32 s34, s31, 3
        s_sub_u32 s34, s30, s34
        s_and_b32 s35, s2, 7
        s_lshl_b32 s31, s31, 3
        s_add_u32 s31, s31, s35
        s_mul_i32 s35, s31, 21846
        s_lshr_b32 s35, s35, 16
        s_mul_i32 s36, s35, 3
        s_sub_u32 s36, s31, s36
        s_mul_i32 s35, s35, {64*1152}
        s_mul_i32 s36, s36, 384
        s_add_u32 s35, s35, s36
        s_lshl_b32 s34, s34, 7
        s_add_u32 s35, s35, s34
        v_mul_u32_u24 v5, 1152, v2
        s_waitcnt lgkmcnt(0)
        """.replace("{LSKIP}", (lsk := k.newlabel("upfskip"))))
        srd(k, 12, 6, XB)
        k.e("buffer_load_dword v161, v5, s[12:15], s35 offen")
        k.label(lsk)
    k.e("s_mov_b64 exec, -1")

def gen_k2(k, prof=None, var=()):
    lconv = k.newlabel("loader"); lend = k.newlabel("k2end")
    k.e("""
    v_lshrrev_b32 v1, 6, v0
    v_and_b32 v2, 63, v0
    s_nop 0
    v_readfirstlane_b32 s19, v1
    s_nop 3
    s_cmp_ge_u32 s19, 8
    """)
    k.e(f"s_cbranch_scc1 {lconv}")
    gen_attn(k, prof, var)
    k.e(f"s_branch {lend}")
    k.label(lconv)
    gen_loader(k, var)
    if "sepconv" in var:
        import k_ssm
        pr = [x[5:] for x in var if x.startswith("cprio")]
        k.e(f"s_setprio {pr[0] if pr else 3}")
        k.e("""
        s_lshl_b32 s20, s23, 8
        s_add_u32 s20, s20, s2
        """)
        pd = [int(x[2:]) for x in var if x.startswith("pd")]
        k_ssm.gen_conv(k, 20, PD=(pd[0] if pd else 4), var=var)
    k.label(lend)
```

```python
from g import *
from sb import SB
from layout import *
from k_qkv import srd, f2u

QF, Q2A, Q2B = 4, 8, 10
KF, KX = 12, 16
V0, V1 = 20, 24
P = 28
SA, SBUF = 36, 52
O = 68
vK, vK2, vV = 84, 85, 86
T0 = 88
CA0, CA1 = 100, 116
CR = 132
vAa, vUa, vAb, vUb, vY, vD, vJ = 212, 213, 214, 215, 216, 217, 218
NV_K2 = 220
ATT_LDS = 163840

def koff(tt): return (tt >> 3) * CH + (tt & 7) * 1024
def kxoff(q): return (q >> 1) * CH + (q & 1) * 512
def voff(ks): return (ks >> 4) * CH + (ks & 15) * VKS

def gen_k2(k, prof=None, var=()):
    t = T0
    lane = 2
    k.c("---- attention + convolution ----")
    k.e(f"""
    s_load_dwordx2 s[4:5], s[0:1], 96
    v_lshrrev_b32 v1, 6, v0
    v_and_b32 v2, 63, v0
    s_and_b32 s20, s2, 7
    v_readfirstlane_b32 s19, v1
    s_lshr_b32 s21, s2, 3
    s_and_b32 s22, s21, 3
    s_lshl_b32 s20, s20, 2
    s_add_u32 s20, s20, s22
    s_lshr_b32 s21, s21, 2
    s_lshl_b32 s21, s21, 3
    s_add_u32 s21, s21, s19
    s_lshl_b32 s26, s20, 16
    s_lshl_b32 s27, s21, 10
    s_add_u32 s26, s26, s27
    s_add_u32 s26, s26, {QM}
    s_lshl_b32 s28, s20, 13
    s_lshl_b32 s27, s21, 7
    s_add_u32 s28, s28, s27
    s_add_u32 s28, s28, {Q2}
    s_mul_i32 s24, s20, {HB}
    v_lshlrev_b32 v{vK}, 4, v{lane}
    v_lshlrev_b32 v{vD}, 4, v{lane}
    v_and_b32 v{t}, 31, v{lane}
    v_lshlrev_b32 v{t+1}, 2, v{t}
    v_mov_b32 v{t+2}, -1
    v_cmp_gt_u32 vcc, 32, v{lane}
    v_mov_b32 v{Q2A+1}, 0
    v_mov_b32 v{Q2B}, 0
    v_cndmask_b32 v{t+2}, v{t+2}, v{t+1}, vcc
    """)
    k.e(f"""
    s_add_u32 s44, s19, 4
    s_add_u32 s45, s19, 12
    s_cmp_lt_u32 s19, 4
    s_cselect_b32 s44, s19, s44
    s_cselect_b32 s45, s45, s19
    s_lshl_b32 s44, s44, 10
    s_lshl_b32 s45, s45, 10
    s_lshl_b32 s46, s19, 10
    s_add_u32 s46, s46, 16384
    s_add_u32 s47, s46, 8192
    s_waitcnt lgkmcnt(0)
    """)
    if prof: prof.mark()
    srd(k, 8, 4, WS_END)
    k.e(f"buffer_load_dwordx4 {vr(QF,4)}, v{vK}, s[8:11], s26 offen")
    k.e(f"buffer_load_dword v{Q2A}, v{t+2}, s[8:11], s28 offen")
    for sreg in (44, 45, 46, 47):
        k.e(f"""
        s_mov_b32 m0, s{sreg}
        s_add_u32 s27, s24, s{sreg}
        buffer_load_dwordx4 v{vD}, s[8:11], s27 offen lds
        """)
    lw3 = k.newlabel("w3"); lu = k.newlabel("ud"); lnn = k.newlabel("nn"); lx = k.newlabel("x96")
    k.e(f"""
    s_mov_b32 s35, 3
    s_mov_b32 s30, 0
    s_mov_b32 s31, 0
    s_cmp_ge_u32 s19, 4
    s_cbranch_scc1 {lu}
    s_cmp_eq_u32 s19, 3
    s_cbranch_scc1 {lw3}
    s_lshl_b32 s30, s2, 1
    s_add_u32 s31, s30, 1
    s_mov_b32 s35, 1
    s_cmp_eq_u32 s19, 2
    s_cbranch_scc1 {lu}
    s_add_u32 s30, s30, s19
    s_mov_b32 s31, s30
    s_mov_b32 s35, 0
    s_branch {lu}
    """)
    k.label(lw3)
    k.e(f"""
    s_cmp_ge_u32 s2, 96
    s_cbranch_scc1 {lu}
    s_cmp_ge_u32 s2, 64
    s_cbranch_scc1 {lx}
    s_add_u32 s30, s2, 512
    s_mov_b32 s31, s30
    s_mov_b32 s35, 0
    s_branch {lu}
    """)
    k.label(lx)
    k.e(f"""
    s_sub_u32 s30, s2, 64
    s_lshl_b32 s30, s30, 1
    s_add_u32 s30, s30, 512
    s_add_u32 s31, s30, 1
    s_mov_b32 s35, 1
    """)
    k.label(lu)
    k.e(f"""
    v_and_b32 v{t+5}, 3, v{t}
    v_lshlrev_b32 v{t+5}, 1, v{t+5}
    v_bfe_u32 v{t+6}, v{t}, 2, 1
    v_or_b32 v{t+5}, v{t+5}, v{t+6}
    v_lshrrev_b32 v{t+6}, 3, v{t}
    v_lshl_or_b32 v{t+5}, v{t+6}, 3, v{t+5}
    v_and_b32 v{t+6}, 1, v{t+5}
    v_xor_b32 v{t+6}, 1, v{t+6}
    v_sub_u32 v{t+7}, 2047, v{t+5}
    v_sub_u32 v{t+7}, v{t+7}, v{t+6}
    v_lshrrev_b32 v{t+4}, 5, v{lane}
    v_lshl_add_u32 v{t+7}, v{t+4}, 3, v{t+7}
    v_lshlrev_b32 v{t+7}, 1, v{t+7}
    v_mul_u32_u24 v{t+6}, {KRH}, v{t+6}
    v_add_u32 v{t+7}, v{t+7}, v{t+6}
    v_mul_u32_u24 v{t+6}, 1536, v{t+4}
    v_lshl_add_u32 v{t+6}, v{t}, 4, v{t+6}
    v_lshlrev_b32 v{t+8}, 6, v{t}
    v_lshl_add_u32 v{vY}, v{t+4}, 4, v{t+8}
    s_mul_i32 s36, s30, {KRC}
    s_add_u32 s36, s36, {KR - 4288}
    s_mul_i32 s37, s31, {KRC}
    s_add_u32 s37, s37, {KR - 4288}
    s_sub_u32 s40, s37, 2048
    s_cmp_eq_u32 s35, 0
    s_cselect_b32 s37, s40, s37
    v_add_u32 v{vAa}, s36, v{t+7}
    v_add_u32 v{vAb}, s37, v{t+7}
    s_mul_i32 s36, s30, {UPC}
    s_add_u32 s36, s36, {UP + 512 - 1072}
    s_mul_i32 s37, s31, {UPC}
    s_add_u32 s37, s37, {UP + 512 - 1072}
    s_cmp_eq_u32 s35, 0
    s_cselect_b32 s40, 0, 512
    s_add_u32 s36, s36, s40
    s_add_u32 s37, s37, s40
    v_add_u32 v{vUa}, s36, v{t+6}
    v_add_u32 v{vUb}, s37, v{t+6}
    s_mul_i32 s33, s30, 4096
    s_add_u32 s33, s33, {YT}
    s_mul_i32 s34, s31, 4096
    s_add_u32 s34, s34, {YT + 2048}
    s_mul_i32 s36, s30, 2048
    s_add_u32 s36, s36, {YT2}
    s_add_u32 s37, s33, 2048
    s_cmp_eq_u32 s35, 0
    s_cselect_b32 s34, s36, s34
    s_cselect_b32 s33, s33, s37
    s_mov_b32 s38, 4032
    s_mov_b32 s39, 1008
    """)
    for i in range(32 + 80): k.e(f"v_mov_b32 v{CA0+i}, 0")
    k.e(f"""
    v_lshrrev_b32 v{t+3}, 5, v{lane}
    v_mul_u32_u24 v{t+3}, {VH}, v{t+3}
    v_min_u32 v{t+5}, 19, v{t}
    v_lshl_add_u32 v{t+5}, v{t+5}, 4, v{t+3}
    v_add_u32 v{vV}, 9216, v{t+5}
    v_lshlrev_b32 v{vK2}, 4, v{t}
    v_add_u32 v{vK2}, 8192, v{vK2}
    s_and_b32 s25, s19, 3
    s_lshl_b32 s25, s25, 10
    s_add_u32 s25, s25, 32768
    s_add_u32 s24, s24, s25
    """)
    for i in range(16): k.e(f"v_mov_b32 v{O+i}, 0")
    for i in range(4): k.e(f"v_mov_b32 v{P+4+i}, 0")
    for i in range(4): k.e(f"v_mov_b32 v{V1+i}, 0")
    k.e("s_waitcnt vmcnt(2)")
    k.e(f"v_mov_b32 v{Q2B+1}, v{Q2A}")
    if prof: prof.mark()
    k.e("s_barrier")
    if prof: prof.mark()
    k.e(f"""
    ds_read_b128 {vr(KX,4)}, v{vK2}
    ds_read_b128 {vr(KF,4)}, v{vK}
    s_waitcnt lgkmcnt(0)
    v_mfma_f32_32x32x16_bf16 {vr(SA,16)}, {vr(KF,4)}, {vr(QF,4)}, 0
    v_mfma_f32_32x32x8_bf16 {vr(SA,16)}, {vr(KX,2)}, {vr(Q2A,2)}, {vr(SA,16)}
    ds_read_b128 {vr(KF,4)}, v{vK} offset:1024
    ds_read_b128 {vr(V0,4)}, v{vV}
    s_waitcnt lgkmcnt(0)
    s_nop 7
    """)
    PAT_PLAIN = "1 eeeecc p eeeecc 2 eeeecc P eeeecc"
    PAT_DMA = "1 eeeecc D p eeeecc 2 eeeecc D P eeeecc"
    PAT_DMA4 = "1 eeee D cc D p eeeecc 2 eeee D cc D P eeeecc"
    PAT_C1 = "1 eeee p ccee a eecc 2 eeee b ccee P eecc"
    PAT_C2 = "1 eee p ecc a eee b ecc 2 eee a ecc b eee P ecc"
    DBL = (2, 6)
    PRIOS = {"n": [], "1": [(7, 4, 0)], "2": [(6, 4, 2), (7, 2, 1), (7, 6, 0)]}
    PRIO = PRIOS[[x[2:] for x in var if x.startswith("pr")][0]] if any(x.startswith("pr") for x in var) else PRIOS["n"]
    def piece(kk, j):
        kk.e(f"s_add_u32 m0, s25, {j*4096}")
        kk.e(f"s_add_u32 s27, s24, {j*4096}")
        kk.e(f"buffer_load_dwordx4 v{vD}, s[8:11], s27 offen lds")
    def body(kk, lg, mode, pieces=None, first=False, loop=False, vm_at2=None):
        xs = 0
        for tin in range(8):
            cur = SA if tin % 2 == 0 else SBUF
            nxt = SBUF if tin % 2 == 0 else SA
            e = c = 0
            if tin == 2 and first:
                kk.e(f"s_waitcnt vmcnt({vm_at2})")
                kk.e("s_barrier")
            if loop:
                for (pc, pt, pr) in PRIO:
                    if pt == tin:
                        lp = k.newlabel("pl")
                        kk.e(f"s_cmp_eq_u32 s41, {pc}")
                        kk.e(f"s_cbranch_scc0 {lp}")
                        kk.e(f"s_setprio {pr}")
                        kk.lines.append(lp + ":")
            pat = {"plain": PAT_PLAIN, "dma": PAT_DMA, "dma4": PAT_DMA4}.get(mode) or (PAT_C2 if tin in DBL else PAT_C1)
            for tok in pat.replace(" ", ""):
                if tok == "e":
                    kk.e(f"v_exp_f32 v{cur+e}, v{cur+e}"); e += 1
                elif tok == "c":
                    assert e >= 2*c + 2
                    kk.e(f"v_cvt_pk_bf16_f32 v{P+c}, v{cur+2*c}, v{cur+2*c+1}"); c += 1
                elif tok == "D":
                    if pieces: piece(kk, pieces.pop(0))
                elif tok == "1":
                    lg.wait_for(["K"])
                    kk.e(f"v_mfma_f32_32x32x16_bf16 {vr(nxt,16)}, {vr(KF,4)}, {vr(QF,4)}, 0")
                    kk.e(f"ds_read_b128 {vr(KF,4)}, v{vK} offset:{koff(tin+2)}"); lg.issue("K")
                elif tok == "p":
                    assert c <= 4
                    lg.wait_for(["V1"])
                    kk.e(f"v_mfma_f32_32x32x16_bf16 {vr(O,16)}, {vr(V1,4)}, {vr(P+4,4)}, {vr(O,16)}")
                    kk.e(f"ds_read_b128 {vr(V1,4)}, v{vV} offset:{voff(2*tin+1)}"); lg.issue("V1")
                elif tok == "2":
                    t1 = tin + 1
                    lg.wait_for(["X"])
                    kx = KX + 2 * ((t1 & 3) >> 1)
                    q2 = Q2A if (t1 & 1) == 0 else Q2B
                    kk.e(f"v_mfma_f32_32x32x8_bf16 {vr(nxt,16)}, {vr(kx,2)}, {vr(q2,2)}, {vr(nxt,16)}")
                    if (t1 & 3) == 3:
                        kk.e(f"ds_read_b128 {vr(KX,4)}, v{vK2} offset:{kxoff((t1+1) >> 2)}"); lg.issue("X")
                elif tok == "P":
                    assert c >= 4
                    lg.wait_for(["V0"])
                    kk.e(f"v_mfma_f32_32x32x16_bf16 {vr(O,16)}, {vr(V0,4)}, {vr(P,4)}, {vr(O,16)}")
                    kk.e(f"ds_read_b128 {vr(V0,4)}, v{vV} offset:{voff(2*tin+2)}"); lg.issue("V0")
                elif tok in "ab":
                    j = xs
                    r = CR + 16 * (j % 5)
                    nl = 3 if mode == "S" else 4
                    if tok == "a":
                        kk.e(f"s_waitcnt vmcnt({4*nl})")
                        ins = f"v_mfma_f32_32x32x16_bf16 {vr(CA0,16)}, {vr(r,4)}, {vr(r+4,4)}, {vr(CA0,16)}"
                    else:
                        ub = r + 4 if mode == "S" else r + 12
                        ins = f"v_mfma_f32_32x32x16_bf16 {vr(CA1,16)}, {vr(r+8,4)}, {vr(ub,4)}, {vr(CA1,16)}"
                    if j == 9:
                        lx_ = k.newlabel("skipx")
                        kk.e("s_cmp_eq_u32 s41, 7")
                        kk.e(f"s_cbranch_scc1 {lx_}")
                        kk.e(ins)
                        kk.lines.append(lx_ + ":")
                    else:
                        kk.e(ins)
                    if tok == "b":
                        dr = j >> 1; s_ = j & 1
                        oa = 256 - 64*dr + 32*s_; ou = 64 - 16*dr + 3072*s_
                        kk.e(f"buffer_load_dwordx4 {vr(r,4)}, v{vAa}, s[8:11], s38 offen offset:{oa}")
                        kk.e(f"buffer_load_dwordx4 {vr(r+4,4)}, v{vUa}, s[8:11], s39 offen offset:{ou}")
                        kk.e(f"buffer_load_dwordx4 {vr(r+8,4)}, v{vAb}, s[8:11], s38 offen offset:{oa}")
                        if mode == "N": kk.e(f"buffer_load_dwordx4 {vr(r+12,4)}, v{vUb}, s[8:11], s39 offen offset:{ou}")
                        xs += 1
            assert e == 16 and c == 8
    def advance():
        k.e(f"""
        v_add_u32 v{vK}, {CH}, v{vK}
        v_add_u32 v{vK2}, {CH}, v{vK2}
        v_add_u32 v{vV}, {CH}, v{vV}
        """)
    tmp = K("tmp"); lg = SB(tmp, "lgkmcnt", 15)
    body(tmp, lg, "plain"); state = list(lg.q)
    lg.k = k
    yp = [x[2:] for x in var if x.startswith("yp")]
    def loop(mode, start, vmbar=False):
        k.e(f"s_mov_b32 s41, {start}")
        ll = k.newlabel("loop")
        k.label(ll)
        if start == 2 and yp:
            c1, c2 = int(yp[0][0]), int(yp[0][1])
            for (cc, pr) in ((c1, 1), (c2, 0)):
                l_ = k.newlabel("yp")
                k.e(f"s_cmp_eq_u32 s41, {cc}")
                k.e(f"s_cbranch_scc0 {l_}")
                k.e(f"s_setprio {pr}")
                k.label(l_)
        body(k, lg, mode, loop=True)
        assert lg.q == state
        advance()
        if mode in "SN":
            k.e("s_sub_u32 s38, s38, 320")
            k.e("s_sub_u32 s39, s39, 80")
        k.e("s_add_u32 s41, s41, 1")
        if start == 1:
            ls = k.newlabel("nobar")
            k.e("s_cmp_eq_u32 s41, 2")
            k.e(f"s_cbranch_scc0 {ls}")
            if vmbar: k.e("s_waitcnt vmcnt(0)")
            k.e("s_barrier")
            k.label(ls)
        k.e("s_cmp_lt_u32 s41, 8")
        k.e(f"s_cbranch_scc1 {ll}")
    ldma = k.newlabel("dma"); ljoin = k.newlabel("join"); lN = k.newlabel("N"); lP = k.newlabel("Pl")
    k.e("s_cmp_ge_u32 s19, 4")
    k.e(f"s_cbranch_scc1 {ldma}")
    if "odma" in var:
        pcs = list(range(30))
        body(k, lg, "dma4", pieces=pcs, first=True, vm_at2=8)
        assert lg.q == state and not pcs
        advance()
        k.e("s_waitcnt vmcnt(25)")
        k.e("s_barrier")
    else:
        body(k, lg, "plain", first=True, vm_at2=0)
        assert lg.q == state
        advance()
        k.e("s_barrier")
    k.e("s_cmp_eq_u32 s35, 3")
    k.e(f"s_cbranch_scc1 {lP}")
    cp = [x[2:] for x in var if x.startswith("cp")]
    if cp: k.e(f"s_setprio {cp[0]}")
    k.e("s_cmp_eq_u32 s35, 1")
    k.e(f"s_cbranch_scc1 {lN}")
    loop("S", 1)
    k.e(f"s_branch {ljoin}")
    k.label(lN)
    loop("N", 1)
    k.e(f"s_branch {ljoin}")
    k.label(lP)
    loop("plain", 1, vmbar=("odma" in var))
    k.e(f"s_branch {ljoin}")
    k.label(ldma)
    if "odma" in var:
        body(k, lg, "plain", first=True, vm_at2=0)
        advance()
        k.e("s_barrier")
        body(k, lg, "plain")
        advance()
        k.e("s_barrier")
    else:
        pcs = list(range(30))
        body(k, lg, "dma", pieces=pcs, first=True, vm_at2=4)
        assert lg.q == state
        advance()
        k.e("s_waitcnt vmcnt(11)")
        k.e("s_barrier")
        body(k, lg, "dma", pieces=pcs)
        assert lg.q == state and not pcs
        advance()
        k.e("s_waitcnt vmcnt(0)")
        k.e("s_barrier")
    k.e(f"""
    s_load_dwordx2 s[6:7], s[0:1], 72
    s_lshr_b32 s30, s2, 3
    s_lshl_b32 s30, s30, 2
    s_add_u32 s30, s30, s19
    s_sub_u32 s30, s30, 4
    s_mul_i32 s30, s30, {41*128}
    v_lshlrev_b32 v{t+8}, 7, v{lane}
    v_cmp_gt_u32 vcc, 41, v{lane}
    s_and_saveexec_b64 s[44:45], vcc
    s_waitcnt lgkmcnt(0)
    """)
    srd(k, 12, 6, WOB)
    k.e(f"buffer_load_dword v{vJ}, v{t+8}, s[12:15], s30 offen")
    k.e("s_mov_b64 exec, -1")
    lg.q = list(state)
    loop("plain", 2)
    k.label(ljoin)
    k.e(f"""
    s_waitcnt lgkmcnt(0)
    v_mfma_f32_32x32x16_bf16 {vr(O,16)}, {vr(V1,4)}, {vr(P+4,4)}, {vr(O,16)}
    """)
    if prof: prof.mark()
    k.nop(12)
    lfin = k.newlabel("fin"); lfb = k.newlabel("fb")
    k.e(f"""
    v_mov_b32 v{t}, v{O+10}
    v_mov_b32 v{t+1}, v{O+10}
    s_mov_b32 s42, {f2u(2.0**-64)}
    s_mov_b32 s43, {f2u(2.0**40)}
    v_permlane32_swap_b32 v{t}, v{t+1}
    s_nop 1
    v_cmp_le_f32 vcc, s42, v{t}
    v_cmp_ge_f32 s[44:45], s43, v{t}
    s_and_b64 s[44:45], s[44:45], vcc
    s_cmp_eq_u64 s[44:45], exec
    s_cbranch_scc0 {lfb}
    """)
    k.label(lfin)
    k.e(f"""
    v_rcp_f32 v{t}, v{t}
    v_and_b32 v{t+2}, 31, v{lane}
    v_lshrrev_b32 v{t+3}, 5, v{lane}
    s_lshl_b32 s26, s21, 5
    v_add_u32 v{t+2}, s26, v{t+2}
    v_mul_u32_u24 v{t+2}, 1152, v{t+2}
    v_lshl_add_u32 v{t+2}, v{t+3}, 3, v{t+2}
    s_mul_i32 s27, s20, 36
    s_add_u32 s27, s27, {OA}
    """)
    for r in range(10): k.e(f"v_mul_f32 v{O+r}, v{O+r}, v{t}")
    for j in range(5): k.e(f"v_cvt_pk_bf16_f32 v{P+j}, v{O+2*j}, v{O+2*j+1}")
    k.e(f"""
    buffer_store_dwordx2 {vr(P,2)}, v{t+2}, s[8:11], s27 offen
    buffer_store_dwordx2 {vr(P+2,2)}, v{t+2}, s[8:11], s27 offen offset:16
    s_mov_b32 exec_hi, 0
    buffer_store_dword v{P+4}, v{t+2}, s[8:11], s27 offen offset:32
    s_mov_b64 exec, -1
    """)
    lend = k.newlabel("end")
    k.e("s_cmp_eq_u32 s35, 3")
    k.e(f"s_cbranch_scc1 {lend}")
    k.e("s_waitcnt vmcnt(3)")
    for (ca, dst) in ((CA0, 33), (CA1, 34)):
        for g in range(2):
            for e in range(4):
                k.e(f"v_permlane32_swap_b32 v{ca+8*g+e}, v{ca+8*g+4+e}")
        k.e("s_nop 1")
        rr = CR + (0 if ca == CA0 else 8)
        for g in range(2):
            for e in range(4):
                k.e(f"v_cvt_pk_bf16_f32 v{rr+4*g+e}, v{ca+8*g+e}, v{ca+8*g+4+e}")
        for g in range(2):
            k.e(f"buffer_store_dwordx4 {vr(rr+4*g,4)}, v{vY}, s[8:11], s{dst} offen offset:{32*g}")
    k.e(f"s_branch {lend}")
    k.label(lfb)
    k.c("fallback: pass 1 = true row max, pass 2 = exp(s - max)")
    mx = t + 6
    k.e(f"""
    v_mov_b32 v{mx}, 0xff800000
    s_mov_b32 s46, 0
    s_nop 7
    """)
    lpass = k.newlabel("pass")
    k.label(lpass)
    for i in range(16): k.e(f"v_mov_b32 v{O+i}, 0")
    k.e(f"s_mov_b32 s41, 0")
    lm = k.newlabel("sl")
    k.label(lm)
    k.e(f"""
    s_lshr_b32 s47, s41, 3
    s_mul_i32 s47, s47, {CH}
    s_and_b32 s48, s41, 7
    s_lshl_b32 s49, s48, 10
    s_add_u32 s49, s49, s47
    v_lshlrev_b32 v{t+7}, 4, v{lane}
    v_add_u32 v{t+7}, s49, v{t+7}
    s_lshr_b32 s49, s48, 2
    s_lshl_b32 s49, s49, 9
    s_and_b32 s50, s48, 3
    s_lshl_b32 s50, s50, 2
    s_add_u32 s49, s49, s50
    s_add_u32 s49, s49, s47
    s_add_u32 s49, s49, 8192
    v_and_b32 v{t+8}, 31, v{lane}
    v_lshlrev_b32 v{t+8}, 4, v{t+8}
    v_add_u32 v{t+8}, s49, v{t+8}
    s_mul_i32 s49, s48, {2*VKS}
    s_add_u32 s49, s49, s47
    s_add_u32 s49, s49, 9216
    v_add_u32 v{t+9}, s49, v{t+5}
    ds_read_b128 {vr(KF,4)}, v{t+7}
    ds_read_b32 v{KX}, v{t+8}
    v_mov_b32 v{KX+1}, 0
    ds_read_b128 {vr(V0,4)}, v{t+9}
    ds_read_b128 {vr(V1,4)}, v{t+9} offset:{VKS}
    s_waitcnt lgkmcnt(0)
    v_mfma_f32_32x32x16_bf16 {vr(SA,16)}, {vr(KF,4)}, {vr(QF,4)}, 0
    v_mfma_f32_32x32x8_bf16 {vr(SA,16)}, {vr(KX,2)}, {vr(Q2A,2)}, {vr(SA,16)}
    """)
    k.nop(12)
    lp2 = k.newlabel("p2"); lnx = k.newlabel("nx")
    k.e("s_cmp_eq_u32 s46, 1")
    k.e(f"s_cbranch_scc1 {lp2}")
    for i in range(8):
        k.e(f"v_max3_f32 v{mx}, v{SA+2*i}, v{SA+2*i+1}, v{mx}")
    k.e(f"s_branch {lnx}")
    k.label(lp2)
    for i in range(16):
        k.e(f"v_sub_f32 v{SA+i}, v{SA+i}, v{mx}")
    for i in range(16):
        k.e(f"v_exp_f32 v{SA+i}, v{SA+i}")
    k.e("s_nop 0")
    for j in range(8):
        k.e(f"v_cvt_pk_bf16_f32 v{P+j}, v{SA+2*j}, v{SA+2*j+1}")
    k.e(f"""
    s_nop 1
    v_mfma_f32_32x32x16_bf16 {vr(O,16)}, {vr(V0,4)}, {vr(P,4)}, {vr(O,16)}
    v_mfma_f32_32x32x16_bf16 {vr(O,16)}, {vr(V1,4)}, {vr(P+4,4)}, {vr(O,16)}
    """)
    k.label(lnx)
    ldone = k.newlabel("fbdone")
    k.e(f"""
    s_add_u32 s41, s41, 1
    s_cmp_lt_u32 s41, 64
    s_cbranch_scc1 {lm}
    s_cmp_eq_u32 s46, 1
    s_cbranch_scc1 {ldone}
    v_mov_b32 v{t+7}, v{mx}
    s_nop 1
    v_permlane32_swap_b32 v{mx}, v{t+7}
    s_nop 1
    v_max_f32 v{mx}, v{mx}, v{t+7}
    s_mov_b32 s46, 1
    s_branch {lpass}
    """)
    k.label(ldone)
    k.nop(12)
    k.e(f"""
    v_mov_b32 v{t}, v{O+10}
    v_mov_b32 v{t+1}, v{O+10}
    s_nop 1
    v_permlane32_swap_b32 v{t}, v{t+1}
    s_nop 1
    s_branch {lfin}
    """)
    k.label(lend)
```

```python
from g import *
from sb import SB
from layout import *
from k_qkv import srd, f2u
import math

LOG2E = 1.4426950408889634
UB = 2048 * 576 * 2

UT_LDS = 36864
def gen_utrans(k, wg="s2", nw=4):
    lane = 2; t = 20
    k.c("---- u transposition ----")
    k.e(f"""
    s_load_dwordx2 s[4:5], s[0:1], 0
    s_load_dwordx2 s[6:7], s[0:1], 96
    v_lshrrev_b32 v1, 6, v0
    v_and_b32 v2, 63, v0
    s_lshr_b32 s21, {wg}, 2
    v_readfirstlane_b32 s19, v1
    s_and_b32 s22, {wg}, 3
    s_mul_i32 s24, s21, {128*1152}
    s_mul_i32 s25, s22, 288
    s_add_u32 s24, s24, s25
    s_mul_i32 s26, s19, {9*1024}
    """)
    k.e(f"""
    s_mul_i32 s27, s19, 576
    v_add_u32 v{t}, s27, v{lane}
    s_waitcnt lgkmcnt(0)
    """)
    srd(k, 8, 4, UB)
    srd(k, 12, 6, WS_END)
    k.e("s_mov_b32 s30, 3641")
    for i in range(9):
        k.e(f"""
        v_add_u32 v{t+1}, {64*i}, v{t}
        v_mul_lo_u32 v{t+2}, v{t+1}, s30
        v_lshrrev_b32 v{t+2}, 16, v{t+2}
        v_mul_u32_u24 v{t+3}, 18, v{t+2}
        v_sub_u32 v{t+3}, v{t+1}, v{t+3}
        v_mul_u32_u24 v{t+2}, 1152, v{t+2}
        v_lshl_add_u32 v{t+2}, v{t+3}, 4, v{t+2}
        s_add_u32 m0, s26, {i*1024}
        s_nop 0
        buffer_load_dwordx4 v{t+2}, s[8:11], s24 offen lds
        """)
    k.e(f"""
    v_mov_b32 v8, 0
    v_mov_b32 v9, 0
    v_mov_b32 v10, 0
    v_mov_b32 v11, 0
    s_mul_i32 s31, s22, {144*UPC}
    s_lshl_b32 s32, s21, 5
    s_add_u32 s31, s31, s32
    s_add_u32 s31, s31, {UP}
    v_and_b32 v{t+6}, 255, v0
    """)
    for i in range(5):
        k.e(f"""
        v_add_u32 v{t+1}, {256*i}, v{t+6}
        v_lshrrev_b32 v{t+2}, 3, v{t+1}
        v_mul_u32_u24 v{t+2}, {UPC}, v{t+2}
        v_bfe_u32 v{t+3}, v{t+1}, 1, 2
        v_mul_u32_u24 v{t+3}, 1536, v{t+3}
        v_add_u32 v{t+2}, v{t+2}, v{t+3}
        v_and_b32 v{t+3}, 1, v{t+1}
        v_lshl_add_u32 v{t+2}, v{t+3}, 4, v{t+2}
        """)
        if i == 4:
            k.e(f"""
            v_cmp_gt_u32 vcc, 1152, v{t+1}
            v_mov_b32 v{t+3}, -1
            s_nop 0
            v_cndmask_b32 v{t+2}, v{t+3}, v{t+2}, vcc
            s_mov_b32 s33, 0
            v_cmp_gt_u32 vcc, 1152, v{t+1}
            s_and_saveexec_b64 s[34:35], vcc
            buffer_store_dwordx4 v[8:11], v{t+2}, s[12:15], s31 offen
            s_mov_b64 exec, s[34:35]
            """)
        else:
            k.e(f"buffer_store_dwordx4 v[8:11], v{t+2}, s[12:15], s31 offen")
    k.e(f"""
    v_lshrrev_b32 v{t+1}, 4, v{lane}
    v_bfe_u32 v{t+2}, v{lane}, 2, 2
    v_lshl_add_u32 v{t+2}, v{t+1}, 5, v{t+2}
    v_mul_u32_u24 v{t+2}, 288, v{t+2}
    v_and_b32 v{t+3}, 3, v{lane}
    v_lshl_add_u32 v{t+2}, v{t+3}, 3, v{t+2}
    v_and_b32 v{t+3}, 15, v{lane}
    v_mul_u32_u24 v{t+3}, {UPC}, v{t+3}
    v_lshl_add_u32 v{t+3}, v{t+1}, 4, v{t+3}
    s_mul_i32 s31, s22, {144*UPC}
    s_lshl_b32 s32, s21, 6
    s_add_u32 s31, s31, s32
    s_add_u32 s31, s31, {UP + 512}
    s_mul_i32 s32, s19, 1536
    s_add_u32 s31, s31, s32
    s_mul_i32 s33, s19, {8*288}
    v_add_u32 v{t+2}, s33, v{t+2}
    s_waitcnt vmcnt(5)
    s_barrier
    """)
    for dg in range(9):
        b = 12 + 4 * (dg & 1)
        k.e(f"""
        ds_read_b64_tr_b16 {vr(b,2)}, v{t+2} offset:{32*dg}
        ds_read_b64_tr_b16 {vr(b+2,2)}, v{t+2} offset:{32*dg + 4*288}
        s_waitcnt lgkmcnt(0)
        buffer_store_dwordx4 {vr(b,4)}, v{t+3}, s[12:15], s31 offen
        s_add_u32 s31, s31, {16*UPC}
        """)

KG_LDS_WAVE = 53 * 256
def gen_kgen(k, chan_sgpr, ldsbase_sgpr, prof=None, after_loads=None):
    lane = 2
    k.c("---- SSM kernel generation ----")
    ch = chan_sgpr; lb = ldsbase_sgpr
    k.e(f"""
    s_load_dwordx8 s[44:51], s[0:1], 8
    s_load_dwordx4 s[52:55], s[0:1], 40
    s_load_dwordx2 s[56:57], s[0:1], 96
    v_lshlrev_b32 v3, 1, v{lane}
    s_lshl_b32 s22, s{ch}, 8
    s_lshl_b32 s23, s{ch}, 1
    v_mov_b32 v4, s23
    s_waitcnt lgkmcnt(0)
    """)
    S = 24
    for i in range(4): srd(k, S + 4*i, 44 + 2*i, PB)
    srd(k, S + 16, 52, 1152)
    srd(k, 16, 54, 1152)
    k.e("s_mov_b32 s54, s56")
    k.e("s_mov_b32 s55, s57")
    k.e("buffer_load_ushort v33, v4, s[16:19], 0 offen")
    k.e(f"buffer_load_ushort v5, v4, s[{S+16}:{S+19}], 0 offen")
    for i in range(4):
        for ps in range(2):
            k.e(f"buffer_load_ushort v{8+2*i+ps}, v3, s[{S+4*i}:{S+4*i+3}], s22 offen offset:{128*ps}")
    if after_loads: after_loads()
    AW = 16
    k.e("v_lshlrev_b32 v6, 2, v2")
    k.e(f"v_add_u32 v6, s{lb}, v6")
    for j in range(16):
        k.e(f"v_xor_b32 v{AW+j}, {16*j}, v6")
    k.e(f"""
    v_and_b32 v6, 31, v2
    v_lshrrev_b32 v7, 5, v2
    v_bfe_u32 v32, v6, 1, 4
    v_xor_b32 v32, v32, v7
    v_lshlrev_b32 v32, 4, v32
    v_lshl_add_u32 v32, v6, 8, v32
    v_add_u32 v32, s{lb}, v32
    """)
    RB = 32
    D = 112
    k.e("s_waitcnt vmcnt(0)")
    if prof: prof.mark()
    c_l2e = f2u(LOG2E); c_i2pi = f2u(1.0 / (2 * math.pi))
    k.e(f"""
    v_lshlrev_b32 v5, 16, v5
    v_mul_f32 v5, {c_l2e}, v5
    v_exp_f32 v5, v5
    s_nop 0
    v_cvt_pk_bf16_f32 v5, v5, v5
    v_lshlrev_b32 v5, 16, v5
    """)
    DT = 5
    def cmul(d, a, b):
        k.e(f"v_mul_f32 v36, v{a+1}, v{b+1}")
        k.e(f"v_mul_f32 v37, v{a+1}, v{b}")
        k.e(f"v_fma_f32 v38, v{a}, v{b+1}, v37")
        k.e(f"v_fma_f32 v{d}, v{a}, v{b}, -v36")
        k.e(f"v_mov_b32 v{d+1}, v38")
    def cmul2(d, a, b, t0, t1):
        k.e(f"v_mul_f32 v{t0}, v{a+1}, v{b+1}")
        k.e(f"v_mul_f32 v{t1}, v{a+1}, v{b}")
        k.e(f"v_fma_f32 v{d}, v{a}, v{b}, -v{t0}")
        k.e(f"v_fma_f32 v{d+1}, v{a}, v{b+1}, v{t1}")
    ZR, ZI = 40, 41
    def cexp(d, tt):
        k.e(f"""
        v_mul_f32 v36, {f2u(float(tt))}, v{ZR}
        v_mul_f32 v37, {f2u(float(tt))}, v{ZI}
        v_exp_f32 v36, v36
        v_fract_f32 v37, v37
        v_cos_f32 v38, v37
        v_sin_f32 v39, v37
        s_nop 0
        v_mul_f32 v{d}, v36, v38
        v_mul_f32 v{d+1}, v36, v39
        """)
    W1, W2, W4, W8, W256, W512, W768, W1024 = 42, 44, 46, 48, 50, 52, 54, 56
    CC, XA, XB_, EA, EB, TT = 58, 60, 62, 64, 66, 68
    PK = 72
    nbar = [0]
    pend = {True: None, False: None}
    def store_row(row, re, im, isA):
        r = row if isA else row - 21
        pk = (PK if isA else PK + 2) + (r & 1)
        k.e(f"v_cvt_pk_bf16_f32 v{pk}, v{re}, {'-' if isA else ''}v{im}")
        last = (r == 20) if isA else False
        if r & 1:
            k.e(f"ds_write2st64_b32 v{AW + ((r >> 1) & 15)}, v{pk-1}, v{pk} offset0:{row-1} offset1:{row}")
        elif last:
            k.e(f"ds_write_b32 v{AW + ((r >> 1) & 15)}, v{pk} offset:{row*256}")
    k.e("s_setprio 3")
    for ps in range(2):
        if ps == 1: k.e("s_setprio 2")
        k.e(f"""
        v_lshlrev_b32 v36, 16, v{8+ps}
        v_mul_f32 v36, {c_l2e}, v36
        v_exp_f32 v36, v36
        v_lshlrev_b32 v37, 16, v{10+ps}
        v_lshlrev_b32 v{CC}, 16, v{12+ps}
        v_cvt_pk_bf16_f32 v36, v36, v36
        v_lshlrev_b32 v36, 16, v36
        v_mul_f32 v36, v36, v{DT}
        v_mul_f32 v37, v37, v{DT}
        v_mul_f32 v{ZR}, {f2u(-LOG2E)}, v36
        v_mul_f32 v{ZI}, {c_i2pi}, v37
        v_lshlrev_b32 v{CC+1}, 16, v{14+ps}
        v_mul_f32 v{CC}, v{CC}, v{DT}
        v_mul_f32 v{CC+1}, v{CC+1}, v{DT}
        v_add_f32 v{CC}, v{CC}, v{CC}
        v_add_f32 v{CC+1}, v{CC+1}, v{CC+1}
        """)
        cexp(W1, 1); cexp(W8, 8); cexp(W256, 256)
        cmul2(W2, W1, W1, 36, 37)
        cmul2(W4, W2, W2, 36, 37)
        cmul2(W512, W256, W256, 36, 37)
        cmul2(W768, W512, W256, 36, 37)
        cmul2(W1024, W512, W512, 36, 37)
        k.e(f"v_mov_b32 v{EA}, 1.0")
        k.e(f"v_mov_b32 v{EA+1}, 0")
        Bops = []
        cur, nx = EA, EB
        Bops.append(lambda cur=cur: store_row(21, cur, cur + 1, False))
        for b in range(1, 32):
            if b == 1:
                Bops.append(lambda: (k.e(f"v_mov_b32 v{EB}, v{W8}"), k.e(f"v_mov_b32 v{EB+1}, v{W8+1}"), store_row(22, EB, EB + 1, False)))
                cur, nx = EB, EA
            else:
                Bops.append(lambda cur=cur, nx=nx, b=b: (cmul2(nx, cur, W8, 76, 77), store_row(21 + b, nx, nx + 1, False)))
                cur, nx = nx, cur
        Aops = []
        Aops.append(lambda: store_row(0, CC, CC + 1, True))
        pa, pb = CC, XA
        seq = [XA, XB_]
        prev = CC
        for j in range(1, 8):
            dst = seq[j & 1]
            Aops.append(lambda dst=dst, prev=prev, j=j: (cmul2(dst, prev, W1, 78, 79), store_row(j, dst, dst + 1, True)))
            prev = dst
        Aops.append(lambda: (cmul2(XA, CC, W256, 78, 79), store_row(8, XA, XA + 1, True)))
        prev = XA
        for j in range(1, 4):
            dst = XB_ if prev == XA else XA
            Aops.append(lambda dst=dst, prev=prev, j=j: (cmul2(dst, prev, W2, 78, 79), store_row(8 + j, dst, dst + 1, True)))
            prev = dst
        Aops.append(lambda: (cmul2(XA, CC, W512, 78, 79), store_row(12, XA, XA + 1, True)))
        Aops.append(lambda: (cmul2(XB_, XA, W4, 78, 79), store_row(13, XB_, XB_ + 1, True)))
        Aops.append(lambda: (cmul2(XA, CC, W768, 78, 79), store_row(14, XA, XA + 1, True)))
        Aops.append(lambda: (cmul2(XB_, XA, W4, 78, 79), store_row(15, XB_, XB_ + 1, True)))
        Aops.append(lambda: (cmul2(XA, CC, W1024, 78, 79), store_row(16, XA, XA + 1, True)))
        Aops.append(lambda: (cmul2(XB_, XA, W256, 78, 79), store_row(17, XB_, XB_ + 1, True)))
        Aops.append(lambda: (cmul2(TT, XA, W512, 78, 79), store_row(18, TT, TT + 1, True)))
        Aops.append(lambda: (cmul2(XB_, XA, W768, 78, 79), store_row(19, XB_, XB_ + 1, True)))
        Aops.append(lambda: (cmul2(TT, XA, W1024, 78, 79), store_row(20, TT, TT + 1, True)))
        ia = 0
        for ib, bo in enumerate(Bops):
            bo()
            if ia < len(Aops) and (ib * len(Aops)) // len(Bops) >= ia:
                Aops[ia](); ia += 1
        while ia < len(Aops):
            Aops[ia](); ia += 1
        k.e("s_waitcnt lgkmcnt(0)")
        if prof: prof.mark()
        FA, FB = 80, 96
        for ks in range(8):
            fa = FA + 4 * (ks & 3); fb = FB + 4 * (ks & 3)
            k.e(f"v_xor_b32 v36, {32*ks}, v{RB}")
            k.e(f"ds_read_b128 {vr(fa,4)}, v36")
            k.e(f"ds_read_b128 {vr(fb,4)}, v36 offset:{21*256}")
            if ks % 4 == 3:
                k.e("s_waitcnt lgkmcnt(0)")
                for q in range(ks - 3, ks + 1):
                    c = "0" if (ps == 0 and q == 0) else vr(D, 16)
                    k.e(f"v_mfma_f32_32x32x16_bf16 {vr(D,16)}, {vr(FA+4*(q&3),4)}, {vr(FB+4*(q&3),4)}, {c}")
    k.e("s_setprio 1")
    if prof: prof.mark()
    k.e(f"""
    v_and_b32 v6, 31, v2
    v_lshrrev_b32 v7, 5, v2
    v_lshlrev_b32 v40, 4, v6
    v_lshl_add_u32 v40, v7, 3, v40
    v_add_u32 v40, s{lb}, v40
    v_lshlrev_b32 v41, 3, v6
    v_add_u32 v41, 512, v41
    v_lshlrev_b32 v42, 2, v6
    v_add_u32 v42, 768, v42
    v_cmp_eq_u32 vcc, 1, v7
    v_mov_b32 v44, 4
    v_mov_b32 v45, 128
    v_cndmask_b32 v41, v41, v42, vcc
    v_cndmask_b32 v44, v44, v45, vcc
    v_add_u32 v41, s{lb}, v41
    v_add_u32 v42, v41, v44
    v_lshlrev_b32 v43, 1, v6
    v_add_u32 v43, 1024, v43
    v_mov_b32 v45, 1400
    v_mov_b32 v46, 1280
    v_cmp_eq_u32 s[56:57], 0, v6
    s_nop 1
    v_cndmask_b32 v45, v45, v46, s[56:57]
    v_cndmask_b32 v43, v43, v45, vcc
    v_add_u32 v43, s{lb}, v43
    """)
    k.nop(8)
    k.e(f"""
    v_lshlrev_b32 v33, 16, v33
    v_cmp_eq_u32 s[56:57], 0, v2
    v_mov_b32 v34, 0
    s_nop 0
    v_cndmask_b32 v33, v34, v33, s[56:57]
    v_add_f32 v{D}, v{D}, v33
    """)
    for j in range(6):
        k.e(f"v_cvt_pk_bf16_f32 v{48+j}, v{D+2*j}, v{D+2*j+1}")
    k.e("""
    ds_write_b16 v40, v48
    ds_write_b16_d16_hi v40, v48 offset:2
    ds_write_b16 v40, v49 offset:4
    ds_write_b16_d16_hi v40, v49 offset:6
    ds_write_b16 v41, v50
    ds_write_b16_d16_hi v41, v50 offset:2
    ds_write_b16 v42, v51
    ds_write_b16_d16_hi v42, v51 offset:2
    ds_write_b16 v43, v52
    ds_write_b16_d16_hi v43, v52 offset:64
    ds_write_b16 v43, v53 offset:128
    ds_write_b16_d16_hi v43, v53 offset:192
    """)
    E = 60
    k.e(f"""
    v_lshlrev_b32 v6, 3, v2
    v_sub_u32 v6, 2047, v6
    v_add_u32 v40, -1, v6
    v_lshl_or_b32 v40, v40, 16, v6
    s_lshr_b32 s58, s{lb}, 1
    v_cmp_gt_u32 s[56:57], 32, v2
    v_mov_b32 v41, 0
    v_mov_b32 v42, 0x00010001
    v_mov_b32 v43, s58
    v_add_u32 v44, 128, v43
    v_cndmask_b32 v41, v41, v42, s[56:57]
    v_cndmask_b32 v43, v43, v44, s[56:57]
    v_lshl_or_b32 v43, v43, 16, v43
    s_add_u32 s59, s58, 384
    s_lshl_b32 s57, s59, 16
    s_or_b32 s59, s59, s57
    s_add_u32 s58, s58, 256
    s_lshl_b32 s57, s58, 16
    s_or_b32 s58, s58, s57
    v_mov_b32 v45, s59
    v_mov_b32 v46, s58
    v_mov_b32 v47, 0x00030003
    v_mov_b32 v48, 0x00020002
    s_waitcnt lgkmcnt(0)
    """)
    k.e("s_setprio 0")
    if prof: prof.mark()
    n = 0
    for i in range(4):
        for d in range(4):
            a_ = 80 + 4 * (n & 3); n += 1
            off = (-(512 * i + 2 * d) * 0x10001) & 0xffffffff
            k.e(f"v_add_u32 v{a_}, {off}, v40")
            if i < 3:
                sh = 3 if i < 2 else 2
                c = (1 << sh >> 1) - 1
                k.e(f"""
                v_lshrrev_b32 v{a_+1}, {sh}, v{a_}
                v_and_b32 v{a_+1}, 0x00010001, v{a_+1}
                v_add_u32 v{a_}, {c * 0x10001}, v{a_}
                v_add_u32 v{a_}, v{a_}, v{a_+1}
                v_pk_lshrrev_b16 v{a_}, v{47 if sh == 3 else 48}, v{a_}
                v_add_u32 v{a_}, v{a_}, v{45 if i < 2 else 46}
                """)
            else:
                k.e(f"""
                v_lshrrev_b32 v{a_+1}, 1, v{a_}
                v_and_b32 v{a_+1}, v41, v{a_+1}
                v_add_u32 v{a_}, v{a_}, v{a_+1}
                v_pk_lshrrev_b16 v{a_}, v41, v{a_}
                v_add_u32 v{a_}, v{a_}, v43
                """)
            k.e(f"""
            v_add_u32 v{a_+1}, v{a_}, v{a_}
            v_and_b32 v{a_+1}, 0x1fffe, v{a_+1}
            v_lshrrev_b32 v{a_}, 15, v{a_}
            v_and_b32 v{a_}, 0x1fffe, v{a_}
            ds_read_u16 v{E+4*i+d}, v{a_+1}
            ds_read_u16_d16_hi v{96+4*i+d}, v{a_}
            """)
            if n % 4 == 0: k.e("s_waitcnt lgkmcnt(4)")
    k.e("s_waitcnt lgkmcnt(0)")
    for jj in range(16):
        k.e(f"v_and_b32 v{96+jj}, 0xffff0000, v{96+jj}")
        k.e(f"v_or_b32 v{E+jj}, v{E+jj}, v{96+jj}")
    k.e("s_nop 1")
    for i in range(4):
        k.e(f"v_mov_b32_dpp v{76+i}, v{E+4*i} wave_shl:1 row_mask:0xf bank_mask:0xf bound_ctrl:0")
    for i in range(3):
        k.e(f"v_readlane_b32 s56, v{E+4*(i+1)}, 0")
        k.e("s_nop 3")
        k.e(f"v_writelane_b32 v{76+i}, s56, 63")
    if prof: prof.mark()
    OO = 96
    for i in range(4):
        for d in range(4):
            nx = E + 4*i + d + 1 if d < 3 else 76 + i
            k.e(f"v_alignbit_b32 v{OO+4*i+d}, v{nx}, v{E+4*i+d}, 16")
    srd(k, S, 54, WS_END)
    k.e(f"""
    s_mul_i32 s40, s{ch}, {KRC}
    s_add_u32 s40, s40, {KR}
    s_add_u32 s41, s40, {KRH}
    v_lshlrev_b32 v7, 4, v2
    v_mov_b32 v8, 0
    v_mov_b32 v9, 0
    v_mov_b32 v10, 0
    v_mov_b32 v11, 0
    """)
    for i in range(4):
        k.e(f"buffer_store_dwordx4 {vr(E+4*i,4)}, v7, s[{S}:{S+3}], s40 offen offset:{1024*i}")
        k.e(f"buffer_store_dwordx4 {vr(OO+4*i,4)}, v7, s[{S}:{S+3}], s41 offen offset:{1024*i}")
    k.e(f"""
    s_add_u32 s40, s40, 4096
    s_add_u32 s41, s41, 4096
    s_mul_i32 s42, s{ch}, {UPC}
    s_add_u32 s42, s42, {UP}
    v_lshrrev_b32 v6, 5, v2
    v_mul_u32_u24 v6, 1536, v6
    v_and_b32 v12, 31, v2
    v_lshl_add_u32 v6, v12, 4, v6
    buffer_store_dwordx4 v[8:11], v6, s[{S}:{S+3}], s42 offen
    buffer_store_dwordx4 v[8:11], v6, s[{S}:{S+3}], s42 offen offset:3072
    s_mov_b64 exec, 0xff
    buffer_store_dwordx4 v[8:11], v7, s[{S}:{S+3}], s40 offen
    buffer_store_dwordx4 v[8:11], v7, s[{S}:{S+3}], s41 offen
    s_mov_b64 exec, -1
    """)

def gen_conv(k, widx_sgpr, PD=4, var=()):
    lane = 2
    W = widx_sgpr
    k.c("---- SSM convolution ----")
    lend = k.newlabel("cend"); l1 = k.newlabel("nt1"); ljob = k.newlabel("job")
    k.e(f"""
    s_load_dwordx2 s[54:55], s[0:1], 96
    s_cmp_ge_u32 s{W}, 864
    s_cbranch_scc1 {lend}
    s_mov_b32 s40, s{W}
    s_mov_b32 s41, 1
    s_mov_b32 s42, 64
    s_mov_b32 s43, 1
    s_cmp_lt_u32 s{W}, 576
    s_cbranch_scc1 {l1}
    s_sub_u32 s40, s{W}, 576
    s_lshl_b32 s40, s40, 1
    s_mov_b32 s41, 0
    s_mov_b32 s42, 32
    s_mov_b32 s43, 2
    """)
    k.label(l1)
    k.e(f"""
    v_and_b32 v3, 31, v{lane}
    v_lshrrev_b32 v4, 5, v{lane}
    v_and_b32 v5, 3, v3
    v_lshlrev_b32 v5, 1, v5
    v_bfe_u32 v6, v3, 2, 1
    v_or_b32 v5, v5, v6
    v_lshrrev_b32 v6, 3, v3
    v_lshl_or_b32 v5, v6, 3, v5
    v_and_b32 v6, 1, v5
    v_xor_b32 v6, 1, v6
    v_sub_u32 v7, 2047, v5
    v_sub_u32 v7, v7, v6
    v_lshl_add_u32 v7, v4, 3, v7
    v_lshlrev_b32 v7, 1, v7
    v_mul_u32_u24 v6, {KRH}, v6
    v_add_u32 v7, v7, v6
    v_add_u32 v8, {KR - 4032}, v7
    v_mul_u32_u24 v6, 1536, v4
    v_lshl_add_u32 v6, v3, 4, v6
    v_add_u32 v9, {UP + 512 - 1008}, v6
    v_lshlrev_b32 v6, 6, v3
    v_lshl_add_u32 v10, v4, 4, v6
    s_waitcnt lgkmcnt(0)
    """)
    srd(k, 60, 54, WS_END)
    k.label(ljob)
    k.e(f"""
    s_mul_i32 s44, s40, {KRC}
    s_mul_i32 s45, s40, {UPC}
    s_lshl_b32 s46, s41, 9
    s_add_u32 s45, s45, s46
    v_add_u32 v11, s44, v8
    v_add_u32 v12, s45, v9
    s_mov_b32 s47, 4032
    s_mov_b32 s48, 1008
    """)
    ACC = 16; FR = 32
    def loads(slot):
        b = FR + 16 * slot
        k.e(f"buffer_load_dwordx4 {vr(b,4)}, v11, s[60:63], s47 offen")
        k.e(f"buffer_load_dwordx4 {vr(b+4,4)}, v12, s[60:63], s48 offen")
        k.e(f"buffer_load_dwordx4 {vr(b+8,4)}, v11, s[60:63], s47 offen offset:32")
        k.e(f"buffer_load_dwordx4 {vr(b+12,4)}, v12, s[60:63], s48 offen offset:3072")
        k.e("s_sub_u32 s47, s47, 64")
        k.e("s_max_i32 s47, s47, 0")
        k.e("s_sub_u32 s48, s48, 16")
        k.e("s_max_i32 s48, s48, 0")
    for i in range(16): k.e(f"v_mov_b32 v{ACC+i}, 0")
    for slot in range(PD): loads(slot)
    k.e("s_mov_b32 s49, 0")
    ll = k.newlabel("cl")
    k.label(ll)
    for slot in range(PD):
        b = FR + 16 * slot
        k.e(f"s_waitcnt vmcnt({4*(PD-1)+2})")
        k.e(f"v_mfma_f32_32x32x16_bf16 {vr(ACC,16)}, {vr(b,4)}, {vr(b+4,4)}, {vr(ACC,16)}")
        k.e(f"s_waitcnt vmcnt({4*(PD-1)})")
        k.e(f"v_mfma_f32_32x32x16_bf16 {vr(ACC,16)}, {vr(b+8,4)}, {vr(b+12,4)}, {vr(ACC,16)}")
        loads(slot)
    k.e(f"""
    s_add_u32 s49, s49, {PD}
    s_cmp_lt_u32 s49, s42
    s_cbranch_scc1 {ll}
    s_mul_i32 s44, s40, 4096
    s_lshl_b32 s46, s41, 11
    s_add_u32 s44, s44, s46
    s_add_u32 s44, s44, {YT}
    s_waitcnt vmcnt(0)
    """)
    k.nop(8)
    for g in range(2):
        for e in range(4):
            k.e(f"v_permlane32_swap_b32 v{ACC+8*g+e}, v{ACC+8*g+4+e}")
    k.e("s_nop 1")
    for g in range(2):
        for e in range(4):
            k.e(f"v_cvt_pk_bf16_f32 v{FR+4*g+e}, v{ACC+8*g+e}, v{ACC+8*g+4+e}")
        k.e(f"buffer_store_dwordx4 {vr(FR+4*g,4)}, v10, s[60:63], s44 offen offset:{32*g}")
    k.e(f"""
    s_add_u32 s40, s40, 1
    s_sub_u32 s43, s43, 1
    s_cmp_lg_u32 s43, 0
    s_nop 1
    s_cbranch_scc1 {ljob}
    """)
    k.label(lend)

FIN_LDS = 2 * 192 * 128
def gen_fin(k, wg="s2", two=True):
    lane = 2; t = 32
    k.c("---- SSM finalisation ----")
    k.e(f"""
    s_load_dwordx2 s[26:27], s[0:1], 80
    s_load_dwordx2 s[28:29], s[0:1], 96
    v_lshrrev_b32 v1, 6, v0
    v_and_b32 v2, 63, v0
    s_mul_i32 s21, {wg}, 21846
    v_readfirstlane_b32 s38, v1
    s_lshr_b32 s21, s21, 16
    s_mul_i32 s22, s21, 3
    s_sub_u32 s22, {wg}, s22
    """)
    k.e(f"""
    s_mul_i32 s24, s22, {192*4096}
    s_lshl_b32 s25, s21, 7
    s_add_u32 s24, s24, s25
    s_mul_i32 s25, s38, {48*4096}
    s_add_u32 s24, s24, s25
    s_add_u32 s24, s24, {YT}
    s_mul_i32 s30, s38, 6144
    v_lshrrev_b32 v{t}, 3, v{lane}
    v_bfe_u32 v{t+1}, v{lane}, 4, 1
    v_lshlrev_b32 v{t+1}, 1, v{t+1}
    v_and_b32 v{t+2}, 7, v{lane}
    v_xor_b32 v{t+2}, v{t+2}, v{t+1}
    v_lshlrev_b32 v{t}, 12, v{t}
    v_lshl_add_u32 v{t+3}, v{t+2}, 4, v{t}
    v_xor_b32 v{t+2}, 4, v{t+2}
    v_lshl_add_u32 v{t+4}, v{t+2}, 4, v{t}
    s_waitcnt lgkmcnt(0)
    """)
    srd(k, 8, 28, WS_END)
    srd(k, 16, 26, OUTB)
    for i in range(6):
        k.e(f"""
        s_add_u32 m0, s30, {i*1024}
        s_add_u32 s31, s24, {i*8*4096}
        buffer_load_dwordx4 v{t+3 if i % 2 == 0 else t+4}, s[8:11], s31 offen lds
        """)
    if two:
        k.e(f"""
        s_mul_i32 s39, s22, {192*2048}
        s_lshl_b32 s25, s21, 7
        s_add_u32 s39, s39, s25
        s_mul_i32 s25, s38, {48*2048}
        s_add_u32 s39, s39, s25
        s_add_u32 s39, s39, {YT2 - 2048}
        s_cmp_ge_u32 s21, 16
        s_cselect_b32 s39, s39, 0x40000000
        v_lshrrev_b32 v{t+9}, 3, v{lane}
        v_lshlrev_b32 v{t+9}, 11, v{t+9}
        v_sub_u32 v{t+10}, v{t+4}, v{t}
        v_sub_u32 v{t+11}, v{t+3}, v{t}
        v_add_u32 v{t+10}, v{t+10}, v{t+9}
        v_add_u32 v{t+11}, v{t+11}, v{t+9}
        """)
        for i in range(6):
            k.e(f"""
            s_add_u32 m0, s30, {24576 + i*1024}
            s_add_u32 s31, s39, {i*8*2048}
            buffer_load_dwordx4 v{t+11 if i % 2 == 0 else t+10}, s[8:11], s31 offen lds
            """)
    k.e(f"""
    v_lshrrev_b32 v{t}, 4, v{lane}
    v_bfe_u32 v{t+1}, v{lane}, 2, 2
    v_lshl_add_u32 v{t+2}, v{t}, 3, v{t+1}
    v_lshlrev_b32 v{t+2}, 7, v{t+2}
    v_bfe_u32 v{t+5}, v{lane}, 1, 1
    s_lshl_b32 s31, s38, 1
    v_add_u32 v{t+5}, s31, v{t+5}
    v_bfe_u32 v{t+6}, v{lane}, 3, 1
    v_lshlrev_b32 v{t+6}, 1, v{t+6}
    v_and_b32 v{t+7}, 1, v{t}
    v_lshl_or_b32 v{t+6}, v{t+7}, 2, v{t+6}
    v_xor_b32 v{t+5}, v{t+5}, v{t+6}
    v_lshl_add_u32 v{t+2}, v{t+5}, 4, v{t+2}
    v_and_b32 v{t+5}, 1, v{lane}
    v_lshl_add_u32 v{t+2}, v{t+5}, 3, v{t+2}
    v_and_b32 v{t+5}, 15, v{lane}
    s_lshl_b32 s31, s21, 6
    s_lshl_b32 s36, s38, 4
    s_add_u32 s31, s31, s36
    v_add_u32 v{t+5}, s31, v{t+5}
    v_mul_u32_u24 v{t+7}, 2304, v{t+5}
    v_lshl_add_u32 v{t+7}, v{t}, 4, v{t+7}
    s_mul_i32 s36, s22, 384
    """)
    k.e("s_waitcnt vmcnt(0)")
    k.e("s_barrier")
    k.e("s_mov_b32 s37, 0xffff0000")
    for oq in range(6):
        Y = 8 + 8 * (oq & 1)
        k.e(f"""
        ds_read_b64_tr_b16 {vr(Y,2)}, v{t+2} offset:{oq*4096}
        ds_read_b64_tr_b16 {vr(Y+2,2)}, v{t+2} offset:{oq*4096 + 512}
        """)
        if not two:
            k.e("s_waitcnt lgkmcnt(0)")
            k.e(f"buffer_store_dwordx4 {vr(Y,4)}, v{t+7}, s[16:19], s36 offen offset:{64*oq}")
            continue
        k.e(f"""
        ds_read_b64_tr_b16 {vr(Y+4,2)}, v{t+2} offset:{24576 + oq*4096}
        ds_read_b64_tr_b16 {vr(Y+6,2)}, v{t+2} offset:{24576 + oq*4096 + 512}
        s_waitcnt lgkmcnt(0)
        """)
        O_ = 24 + 4 * (oq & 1)
        for i in range(4):
            k.e(f"""
            v_lshlrev_b32 v48, 16, v{Y+i}
            v_and_b32 v49, s37, v{Y+i}
            v_lshlrev_b32 v50, 16, v{Y+4+i}
            v_and_b32 v51, s37, v{Y+4+i}
            v_add_f32 v48, v48, v50
            v_add_f32 v49, v49, v51
            v_cvt_pk_bf16_f32 v{O_+i}, v48, v49
            """)
        k.e(f"buffer_store_dwordx4 {vr(O_,4)}, v{t+7}, s[16:19], s36 offen offset:{64*oq}")


def gen_kgen_with_barriers(k, chan_sgpr, ldsbase_sgpr, nbar):
    tmp = K(k.name + "_kg")
    tmp.uid = k.uid + 1000
    gen_kgen(tmp, chan_sgpr, ldsbase_sgpr)
    k.uid = tmp.uid
    lines = tmp.lines
    idx = [i for i, l in enumerate(lines) if l.strip() and not l.strip().startswith(";") and not l.strip().endswith(":")]
    n = len(idx)
    first = next(i for i in idx if "s_waitcnt vmcnt(0)" in lines[i])
    rest = [i for i in idx if i > first]
    pos = [first] + [rest[int(len(rest) * 0.7 * j / (nbar - 1))] for j in range(1, nbar)]
    out = []
    ps = set(pos)
    assert len(ps) == nbar
    for i, l in enumerate(lines):
        out.append(l)
        if i in ps: out.append("    s_barrier")
    k.lines += out


UTW_LDS = 4096
def gen_utrans_wave(k, task_sgpr, lds_sgpr):
    T = task_sgpr; LB = lds_sgpr
    k.c("---- u transposition (per wave) ----")
    k.e(f"""
    s_load_dwordx2 s[4:5], s[0:1], 0
    s_load_dwordx2 s[6:7], s[0:1], 96
    s_mul_i32 s22, s{T}, 1821
    s_lshr_b32 s22, s22, 16
    s_mul_i32 s23, s22, 36
    s_sub_u32 s23, s{T}, s23
    s_mul_i32 s24, s22, {128*1152}
    s_lshl_b32 s25, s23, 5
    s_add_u32 s24, s24, s25
    v_lshrrev_b32 v3, 1, v2
    v_mul_u32_u24 v3, 1152, v3
    v_and_b32 v4, 1, v2
    v_lshl_add_u32 v3, v4, 4, v3
    s_waitcnt lgkmcnt(0)
    """)
    srd(k, 8, 4, UB)
    srd(k, 12, 6, WS_END)
    for i in range(4):
        k.e(f"""
        s_add_u32 m0, s{LB}, {i*1024}
        s_add_u32 s26, s24, {i*32*1152}
        buffer_load_dwordx4 v3, s[8:11], s26 offen lds
        """)
    k.e(f"""
    v_mov_b32 v8, 0
    v_mov_b32 v9, 0
    v_mov_b32 v10, 0
    v_mov_b32 v11, 0
    v_and_b32 v5, 15, v2
    v_mul_u32_u24 v5, {UPC}, v5
    v_lshrrev_b32 v6, 4, v2
    v_mul_u32_u24 v7, 1536, v6
    v_add_u32 v7, v7, v5
    s_mul_i32 s27, s23, {16*UPC}
    s_add_u32 s27, s27, {UP}
    s_lshl_b32 s28, s22, 5
    s_add_u32 s28, s28, s27
    buffer_store_dwordx4 v[8:11], v7, s[12:15], s28 offen
    buffer_store_dwordx4 v[8:11], v7, s[12:15], s28 offen offset:16
    v_lshl_add_u32 v5, v6, 4, v5
    s_lshl_b32 s28, s22, 6
    s_add_u32 s28, s28, s27
    s_add_u32 s28, s28, 512
    v_bfe_u32 v12, v2, 2, 2
    v_lshl_add_u32 v12, v6, 5, v12
    v_lshlrev_b32 v12, 5, v12
    v_and_b32 v13, 3, v2
    v_lshl_add_u32 v12, v13, 3, v12
    v_add_u32 v12, s{LB}, v12
    s_waitcnt vmcnt(2)
    """)
    for p in range(4):
        b = 16 + 4 * p
        k.e(f"ds_read_b64_tr_b16 {vr(b,2)}, v12 offset:{p*8*32}")
        k.e(f"ds_read_b64_tr_b16 {vr(b+2,2)}, v12 offset:{p*8*32 + 4*32}")
    for p in range(4):
        b = 16 + 4 * p
        k.e(f"s_waitcnt lgkmcnt({6 - 2*p})")
        k.e(f"buffer_store_dwordx4 {vr(b,4)}, v5, s[12:15], s28 offen offset:{p*1536 if p*1536 < 4096 else 0}" if p < 3 else f"s_add_u32 s28, s28, 4608\nbuffer_store_dwordx4 {vr(b,4)}, v5, s[12:15], s28 offen")


UTA_LDS = 64 * 288
def gen_utrans_aux(k, tb64_sgpr, db_sgpr, lds_sgpr, after_loads=None):
    TB = tb64_sgpr; DB = db_sgpr; LB = lds_sgpr
    k.c("---- u transposition (aux wave) ----")
    k.e(f"""
    s_load_dwordx2 s[4:5], s[0:1], 0
    s_load_dwordx2 s[6:7], s[0:1], 96
    s_mul_i32 s24, s{TB}, {64*1152}
    s_mul_i32 s25, s{DB}, 288
    s_add_u32 s24, s24, s25
    s_mov_b32 s30, 3641
    s_waitcnt lgkmcnt(0)
    """)
    srd(k, 8, 4, UB)
    srd(k, 12, 6, WS_END)
    for i in range(18):
        k.e(f"""
        v_add_u32 v4, {64*i}, v2
        v_mul_lo_u32 v5, v4, s30
        v_lshrrev_b32 v5, 16, v5
        v_mul_u32_u24 v6, 18, v5
        v_sub_u32 v6, v4, v6
        v_mul_u32_u24 v5, 1152, v5
        v_lshl_add_u32 v5, v6, 4, v5
        s_add_u32 m0, s{LB}, {i*1024}
        s_nop 0
        buffer_load_dwordx4 v5, s[8:11], s24 offen lds
        """)
    if after_loads: after_loads()
    k.e(f"""
    v_and_b32 v4, 15, v2
    v_mul_u32_u24 v4, {UPC}, v4
    v_lshrrev_b32 v5, 4, v2
    s_mul_i32 s27, s{DB}, {144*UPC}
    s_add_u32 s27, s27, {UP}
    """)
    k.e(f"""
    v_and_b32 v7, 1, v5
    v_lshrrev_b32 v12, 1, v5
    v_lshlrev_b32 v13, 5, v7
    v_lshl_add_u32 v13, v12, 3, v13
    v_bfe_u32 v14, v2, 2, 2
    v_add_u32 v13, v13, v14
    v_mul_u32_u24 v13, 288, v13
    v_and_b32 v14, 3, v2
    v_lshl_add_u32 v13, v14, 3, v13
    v_add_u32 v13, s{LB}, v13
    v_mul_u32_u24 v12, 1536, v12
    v_lshl_add_u32 v12, v7, 4, v12
    v_add_u32 v12, v12, v4
    s_lshl_b32 s28, s{TB}, 5
    s_add_u32 s28, s28, s27
    s_add_u32 s28, s28, 512
    s_waitcnt vmcnt(0)
    """)
    for dg in range(9):
        for pp in range(2):
            b = 16 + 4 * ((2 * dg + pp) & 3)
            k.e(f"ds_read_b64_tr_b16 {vr(b,2)}, v13 offset:{32*dg + pp*16*288}")
            k.e(f"ds_read_b64_tr_b16 {vr(b+2,2)}, v13 offset:{32*dg + pp*16*288 + 4*288}")
            k.e("s_waitcnt lgkmcnt(0)")
            k.e(f"buffer_store_dwordx4 {vr(b,4)}, v12, s[12:15], s28 offen offset:{pp*3072}")
        k.e(f"s_add_u32 s28, s28, {16*UPC}")
```

```python
import sys
from g import *
from build import assemble
import k_qkv, k_attn, k_oproj
STAMPS = "stamps" in sys.argv
PROFON = "prof" in sys.argv
var = [a[2:] for a in sys.argv if a.startswith('v=')]
if 'base' not in var: var += ['rebal', 'b2s', 'odma']
kernels = []; launches = []
def make(name, idx, nwg, block, lds, nv, body):
    k = K(name)
    if STAMPS: stamp_id(k, 8); stamp_begin(k)
    k.e(f"s_cmp_ge_u32 s2, {nwg}")
    k.e(f"s_cbranch_scc1 L_{name}_exit")
    PR = Prof(k, PROFON, idx)
    if PR.on:
        stamp_id(k, 8)
        k.e("s_memtime s[56:57]\ns_waitcnt lgkmcnt(0)\ns_mov_b32 s83, s56\ns_memrealtime s[56:57]\ns_waitcnt lgkmcnt(0)\ns_mov_b32 s55, s56")
    body(k, PR if PR.on else None)
    if PR.on:
        PR.mark(); k.e("s_mov_b32 s82, s83"); PR.n = 23; PR.dump()
    if STAMPS: stamp_end(k, idx)
    k.label(f"L_{name}_exit")
    k.e("s_endpgm")
    kernels.append((k, nv, 96)); launches.append((name, nwg, block, lds))

import k_ssm
K1_LDS = max(k_qkv.GEMM_LDS, 9 * k_ssm.KG_LDS_WAVE + 2 * k_ssm.UTA_LDS)
def k1_body(k, p):
    lut = k.newlabel("ut"); lkg = k.newlabel("kg"); lend = k.newlabel("k1end")
    k.e("""
    v_lshrrev_b32 v1, 6, v0
    v_and_b32 v2, 63, v0
    s_nop 0
    v_readfirstlane_b32 s49, v1
    s_cmp_ge_u32 s2, 192
    """)
    k.e(f"s_cbranch_scc1 {lkg}")
    lpf = k.newlabel("pf")
    k.e("s_cmp_ge_u32 s49, 8")
    k.e(f"s_cbranch_scc1 {lpf}")
    k_qkv.gen_qkv(k, p)
    k.e(f"s_branch {lend}")
    k.label(lpf)
    if "pf" in var:
        k_qkv.gen_prefetch(k, 49, k_qkv.GEMM_LDS, first_after=1)
    k.e(f"s_branch L_{k.name}_exit")
    k.label(lkg)
    k.e("s_cmp_ge_u32 s49, 9")
    k.e(f"s_cbranch_scc1 {lut}")
    k.e(f"""
    s_sub_u32 s20, s2, 192
    s_mul_i32 s20, s20, 9
    s_add_u32 s20, s20, s49
    s_mul_i32 s21, s49, {k_ssm.KG_LDS_WAVE}
    """)
    if p: p.n = 0
    k_ssm.gen_kgen(k, 20, 21, p)
    k.e(f"s_branch {lend}")
    k.label(lut)
    k.e(f"""
    s_sub_u32 s40, s2, 192
    s_and_b32 s41, s40, 3
    s_lshr_b32 s40, s40, 2
    s_lshl_b32 s40, s40, 1
    s_sub_u32 s42, s49, 9
    s_add_u32 s40, s40, s42
    s_mul_i32 s42, s42, {k_ssm.UTA_LDS}
    s_add_u32 s42, s42, {9 * k_ssm.KG_LDS_WAVE}
    """)
    k_ssm.gen_utrans_aux(k, 40, 41, 42)
    k.label(lend)
def k3_body(k, p):
    lf = k.newlabel("fin"); lend = k.newlabel("k3end")
    k.e("s_cmp_ge_u32 s2, 144")
    k.e(f"s_cbranch_scc1 {lf}")
    k_oproj.gen_oproj(k, p)
    k.e(f"s_branch {lend}")
    k.label(lf)
    k.e("""
    v_lshrrev_b32 v1, 6, v0
    s_nop 0
    v_readfirstlane_b32 s49, v1
    s_nop 3
    s_cmp_ge_u32 s49, 4
    """)
    k.e(f"s_cbranch_scc1 L_{k.name}_exit")
    k.e("s_sub_u32 s50, s2, 144")
    k_ssm.gen_fin(k, wg="s50", two=("sepconv" not in var))
    k.label(lend)
make("k1_kernel", 0, 256, 704, K1_LDS, 128, k1_body)
if "old2" in var:
    make("k2_kernel", 1, 256, 768, k_attn.ATT_LDS, k_attn.NV_K2, lambda k, p: k_attn.gen_k2(k, p, var=var))
else:
    import k_attn2
    make("k2_kernel", 1, 256, 512, k_attn2.ATT_LDS, k_attn2.NV_K2, lambda k, p: k_attn2.gen_k2(k, p, var=var))
make("k3_kernel", 2, 240, 512, k_oproj.OP_LDS, 100, k3_body)
import re
def add_flag(kern, flag, pred=lambda l: True):
    out = []
    for l in kern.lines:
        if "buffer_store" in l and pred(l): l = l.rstrip() + " " + flag
        out.append(l)
    kern.lines = out
def add_flag_after(kern, marker, flag):
    out = []; on = False
    for l in kern.lines:
        if marker in l: on = True
        if on and "buffer_store" in l: l = l.rstrip() + " " + flag
        out.append(l)
    kern.lines = out
for x in var:
    if x.startswith("ssm"): add_flag_after(kernels[0][0], "SSM kernel generation", x[3:].replace("_", " "))
    if x.startswith("st1"): add_flag(kernels[0][0], x[3:].replace("_", " "))
    if x.startswith("st2"): add_flag(kernels[1][0], x[3:].replace("_", " "))
    if x.startswith("st3"): add_flag(kernels[2][0], x[3:].replace("_", " "))
txt, nerr = assemble(kernels, launches)
open(sys.argv[1] if len(sys.argv) > 1 else "out.s", "w").write(txt)
print("lint errors:", nerr)
```

```python
from g import *
from sb import SB
from layout import *
from k_qkv import srd, f2u

QF, Q2A, Q2B = 4, 8, 10
KF, KX = 12, 16
V0, V1 = 20, 24
P = 28
SA, SBUF = 36, 52
O = 68
vK, vK2, vV = 84, 85, 86
T0 = 88
CA0, CA1 = 100, 116
CR = 132
vAa, vUa, vAb, vUb, vY, vD, vJ = 212, 213, 214, 215, 216, 217, 218
QN, Q2N = 220, 224
NV_K2 = 228
ATT_LDS = 163840

def koff(tt): return (tt >> 3) * CH + (tt & 7) * 1024
def kxoff(q): return (q >> 1) * CH + (q & 1) * 512
def voff(ks): return (ks >> 4) * CH + (ks & 15) * VKS

def gen_k2(k, prof=None, var=()):
    t = T0
    lane = 2
    k.c("---- attention + convolution ----")
    k.e(f"""
    s_load_dwordx2 s[4:5], s[0:1], 96
    v_lshrrev_b32 v1, 6, v0
    v_and_b32 v2, 63, v0
    s_and_b32 s20, s2, 7
    v_readfirstlane_b32 s19, v1
    s_lshr_b32 s21, s2, 3
    s_and_b32 s22, s21, 3
    s_lshl_b32 s20, s20, 2
    s_add_u32 s20, s20, s22
    s_lshr_b32 s21, s21, 2
    s_lshl_b32 s21, s21, 3
    s_add_u32 s21, s21, s19
    s_lshl_b32 s26, s20, 16
    s_lshl_b32 s27, s21, 10
    s_add_u32 s26, s26, s27
    s_add_u32 s26, s26, {QM}
    s_lshl_b32 s28, s20, 13
    s_lshl_b32 s27, s21, 7
    s_add_u32 s28, s28, s27
    s_add_u32 s28, s28, {Q2}
    s_mul_i32 s24, s20, {HB}
    v_lshlrev_b32 v{vK}, 4, v{lane}
    v_lshlrev_b32 v{vD}, 4, v{lane}
    v_and_b32 v{t}, 31, v{lane}
    v_lshlrev_b32 v{t+1}, 2, v{t}
    v_mov_b32 v{t+2}, -1
    v_cmp_gt_u32 vcc, 32, v{lane}
    v_mov_b32 v{Q2A+1}, 0
    v_mov_b32 v{Q2B}, 0
    v_cndmask_b32 v{t+2}, v{t+2}, v{t+1}, vcc
    """)
    k.e(f"""
    s_add_u32 s44, s19, 4
    s_add_u32 s45, s19, 12
    s_cmp_lt_u32 s19, 4
    s_cselect_b32 s44, s19, s44
    s_cselect_b32 s45, s45, s19
    s_lshl_b32 s44, s44, 10
    s_lshl_b32 s45, s45, 10
    s_lshl_b32 s46, s19, 10
    s_add_u32 s46, s46, 16384
    s_add_u32 s47, s46, 8192
    s_waitcnt lgkmcnt(0)
    """)
    if prof: prof.mark()
    srd(k, 8, 4, WS_END)
    k.e(f"buffer_load_dwordx4 {vr(QF,4)}, v{vK}, s[8:11], s26 offen")
    k.e(f"buffer_load_dword v{Q2A}, v{t+2}, s[8:11], s28 offen")
    for sreg in (44, 45, 46, 47):
        k.e(f"""
        s_mov_b32 m0, s{sreg}
        s_add_u32 s27, s24, s{sreg}
        buffer_load_dwordx4 v{vD}, s[8:11], s27 offen lds
        """)
    lw3 = k.newlabel("w3"); lu = k.newlabel("ud"); lnn = k.newlabel("nn"); lx = k.newlabel("x96")
    k.e(f"""
    s_mov_b32 s35, 3
    s_mov_b32 s30, 0
    s_mov_b32 s31, 0
    s_cmp_ge_u32 s19, 4
    s_cbranch_scc1 {lu}
    s_cmp_eq_u32 s19, 3
    s_cbranch_scc1 {lw3}
    s_lshl_b32 s30, s2, 1
    s_add_u32 s31, s30, 1
    s_mov_b32 s35, 1
    s_cmp_eq_u32 s19, 2
    s_cbranch_scc1 {lu}
    s_add_u32 s30, s30, s19
    s_mov_b32 s31, s30
    s_mov_b32 s35, 0
    s_branch {lu}
    """)
    k.label(lw3)
    k.e(f"""
    s_cmp_ge_u32 s2, 96
    s_cbranch_scc1 {lu}
    s_cmp_ge_u32 s2, 64
    s_cbranch_scc1 {lx}
    s_add_u32 s30, s2, 512
    s_mov_b32 s31, s30
    s_mov_b32 s35, 0
    s_branch {lu}
    """)
    k.label(lx)
    k.e(f"""
    s_sub_u32 s30, s2, 64
    s_lshl_b32 s30, s30, 1
    s_add_u32 s30, s30, 512
    s_add_u32 s31, s30, 1
    s_mov_b32 s35, 1
    """)
    k.label(lu)
    k.e(f"""
    v_and_b32 v{t+5}, 3, v{t}
    v_lshlrev_b32 v{t+5}, 1, v{t+5}
    v_bfe_u32 v{t+6}, v{t}, 2, 1
    v_or_b32 v{t+5}, v{t+5}, v{t+6}
    v_lshrrev_b32 v{t+6}, 3, v{t}
    v_lshl_or_b32 v{t+5}, v{t+6}, 3, v{t+5}
    v_and_b32 v{t+6}, 1, v{t+5}
    v_xor_b32 v{t+6}, 1, v{t+6}
    v_sub_u32 v{t+7}, 2047, v{t+5}
    v_sub_u32 v{t+7}, v{t+7}, v{t+6}
    v_lshrrev_b32 v{t+4}, 5, v{lane}
    v_lshl_add_u32 v{t+7}, v{t+4}, 3, v{t+7}
    v_lshlrev_b32 v{t+7}, 1, v{t+7}
    v_mul_u32_u24 v{t+6}, {KRH}, v{t+6}
    v_add_u32 v{t+7}, v{t+7}, v{t+6}
    v_mul_u32_u24 v{t+6}, 1536, v{t+4}
    v_lshl_add_u32 v{t+6}, v{t}, 4, v{t+6}
    v_lshlrev_b32 v{t+8}, 6, v{t}
    v_lshl_add_u32 v{vY}, v{t+4}, 4, v{t+8}
    s_mul_i32 s36, s30, {KRC}
    s_add_u32 s36, s36, {KR - 4288}
    s_mul_i32 s37, s31, {KRC}
    s_add_u32 s37, s37, {KR - 4288}
    s_sub_u32 s40, s37, 2048
    s_cmp_eq_u32 s35, 0
    s_cselect_b32 s37, s40, s37
    v_add_u32 v{vAa}, s36, v{t+7}
    v_add_u32 v{vAb}, s37, v{t+7}
    s_mul_i32 s36, s30, {UPC}
    s_add_u32 s36, s36, {UP + 512 - 1072}
    s_mul_i32 s37, s31, {UPC}
    s_add_u32 s37, s37, {UP + 512 - 1072}
    s_cmp_eq_u32 s35, 0
    s_cselect_b32 s40, 0, 512
    s_add_u32 s36, s36, s40
    s_add_u32 s37, s37, s40
    v_add_u32 v{vUa}, s36, v{t+6}
    v_add_u32 v{vUb}, s37, v{t+6}
    s_mul_i32 s33, s30, 4096
    s_add_u32 s33, s33, {YT}
    s_mul_i32 s34, s31, 4096
    s_add_u32 s34, s34, {YT + 2048}
    s_mul_i32 s36, s30, 2048
    s_add_u32 s36, s36, {YT2}
    s_add_u32 s37, s33, 2048
    s_cmp_eq_u32 s35, 0
    s_cselect_b32 s34, s36, s34
    s_cselect_b32 s33, s33, s37
    s_mov_b32 s38, 4032
    s_mov_b32 s39, 1008
    """)
    for i in range(32 + 80): k.e(f"v_mov_b32 v{CA0+i}, 0")
    k.e(f"""
    v_lshrrev_b32 v{t+3}, 5, v{lane}
    v_mul_u32_u24 v{t+3}, {VH}, v{t+3}
    v_min_u32 v{t+5}, 19, v{t}
    v_lshl_add_u32 v{t+5}, v{t+5}, 4, v{t+3}
    v_add_u32 v{vV}, 9216, v{t+5}
    v_lshlrev_b32 v{vK2}, 4, v{t}
    v_add_u32 v{vK2}, 8192, v{vK2}
    s_and_b32 s25, s19, 3
    s_lshl_b32 s25, s25, 10
    s_add_u32 s25, s25, 32768
    s_add_u32 s24, s24, s25
    """)
    for i in range(16): k.e(f"v_mov_b32 v{O+i}, 0")
    for i in range(4): k.e(f"v_mov_b32 v{P+4+i}, 0")
    for i in range(4): k.e(f"v_mov_b32 v{V1+i}, 0")
    k.e("s_waitcnt vmcnt(2)")
    k.e(f"v_mov_b32 v{Q2B+1}, v{Q2A}")
    if prof: prof.mark()
    k.e("s_barrier")
    if prof: prof.mark()
    if "kxm" in var:
        for i in range(4): k.e(f"v_mov_b32 v{KX+i}, 0")
        k.e("s_mov_b32 exec_hi, 0")
    k.e(f"ds_read_b128 {vr(KX,4)}, v{vK2}")
    if "kxm" in var: k.e("s_mov_b32 exec_hi, -1")
    k.e(f"""
    ds_read_b128 {vr(KF,4)}, v{vK}
    s_waitcnt lgkmcnt(0)
    v_mfma_f32_32x32x16_bf16 {vr(SA,16)}, {vr(KF,4)}, {vr(QF,4)}, 0
    v_mfma_f32_32x32x8_bf16 {vr(SA,16)}, {vr(KX,2)}, {vr(Q2A,2)}, {vr(SA,16)}
    ds_read_b128 {vr(KF,4)}, v{vK} offset:1024
    ds_read_b128 {vr(V0,4)}, v{vV}
    s_waitcnt lgkmcnt(0)
    s_nop 7
    """)
    k.e("s_mov_b32 s51, 0x07060302")
    PAT_PLAIN = "1 eeeecc p eeeecc 2 eeeecc P eeeecc"
    PAT_DMA = "1 eeeecc D p eeeecc 2 eeeecc D P eeeecc"
    PAT_DMA4 = "1 eeee D cc D p eeeecc 2 eeee D cc D P eeeecc"
    PAT_C1 = "1 eeee p ccee a eecc 2 eeee b ccee P eecc"
    PAT_C2 = "1 eee p ecc a eee b ecc 2 eee a ecc b eee P ecc"
    DBL = {"0": (2, 6), "1": (3, 7), "2": (1, 5), "3": (0, 4)}[([x[3:] for x in var if x.startswith("dbl")] + ["0"])[0]]
    pc1 = {"0": PAT_C1, "1": "1 eeee p ccee 2 eecc a eeee b ccee P eecc", "2": "1 eeee a ccee p eecc b eeee 2 ccee P eecc",
           "3": "1 eeeec p ceee a ecce 2 eece b ceee P ecc"}
    PAT_C1 = pc1[([x[3:] for x in var if x.startswith("pc1")] + ["1"])[0]]
    PRIOS = {"n": [], "1": [(7, 4, 0)], "2": [(6, 4, 2), (7, 2, 1), (7, 6, 0)]}
    PRIO = PRIOS[[x[2:] for x in var if x.startswith("pr")][0]] if any(x.startswith("pr") for x in var) else PRIOS["n"]
    def piece(kk, j):
        kk.e(f"s_add_u32 m0, s25, {j*4096}")
        kk.e(f"s_add_u32 s27, s24, {j*4096}")
        kk.e(f"buffer_load_dwordx4 v{vD}, s[8:11], s27 offen lds")
    def body(kk, lg, mode, pieces=None, first=False, loop=False, vm_at2=None):
        xs = 0
        for tin in range(8):
            cur = SA if tin % 2 == 0 else SBUF
            nxt = SBUF if tin % 2 == 0 else SA
            e = c = 0
            if tin == 2 and first:
                kk.e(f"s_waitcnt vmcnt({vm_at2})")
                kk.e("s_barrier")
            if loop:
                for (pc, pt, pr) in PRIO:
                    if pt == tin:
                        lp = k.newlabel("pl")
                        kk.e(f"s_cmp_eq_u32 s41, {pc}")
                        kk.e(f"s_cbranch_scc0 {lp}")
                        kk.e(f"s_setprio {pr}")
                        kk.lines.append(lp + ":")
            pat = {"plain": PAT_PLAIN, "dma": PAT_DMA, "dma4": PAT_DMA4}.get(mode) or (PAT_C2 if tin in DBL else PAT_C1)
            for tok in pat.replace(" ", ""):
                if tok == "e":
                    kk.e(f"v_exp_f32 v{cur+e}, v{cur+e}"); e += 1
                elif tok == "c":
                    assert e >= 2*c + 2
                    if "perm" in var: kk.e(f"v_perm_b32 v{P+c}, v{cur+2*c+1}, v{cur+2*c}, s51")
                    else: kk.e(f"v_cvt_pk_bf16_f32 v{P+c}, v{cur+2*c}, v{cur+2*c+1}")
                    c += 1
                elif tok == "D":
                    if pieces: piece(kk, pieces.pop(0))
                elif tok == "1":
                    lg.wait_for(["K"])
                    kk.e(f"v_mfma_f32_32x32x16_bf16 {vr(nxt,16)}, {vr(KF,4)}, {vr(QF,4)}, 0")
                    kk.e(f"ds_read_b128 {vr(KF,4)}, v{vK} offset:{koff(tin+2)}"); lg.issue("K")
                elif tok == "p":
                    assert c <= 4
                    lg.wait_for(["V1"])
                    kk.e(f"v_mfma_f32_32x32x16_bf16 {vr(O,16)}, {vr(V1,4)}, {vr(P+4,4)}, {vr(O,16)}")
                    kk.e(f"ds_read_b128 {vr(V1,4)}, v{vV} offset:{voff(2*tin+1)}"); lg.issue("V1")
                elif tok == "2":
                    t1 = tin + 1
                    lg.wait_for(["X"])
                    kx = KX + 2 * ((t1 & 3) >> 1)
                    q2 = Q2A if (t1 & 1) == 0 else Q2B
                    kk.e(f"v_mfma_f32_32x32x8_bf16 {vr(nxt,16)}, {vr(kx,2)}, {vr(q2,2)}, {vr(nxt,16)}")
                    if (t1 & 3) == 3:
                        if "kxm" in var: kk.e("s_mov_b32 exec_hi, 0")
                        kk.e(f"ds_read_b128 {vr(KX,4)}, v{vK2} offset:{kxoff((t1+1) >> 2)}"); lg.issue("X")
                        if "kxm" in var: kk.e("s_mov_b32 exec_hi, -1")
                elif tok == "P":
                    assert c >= 4
                    lg.wait_for(["V0"])
                    kk.e(f"v_mfma_f32_32x32x16_bf16 {vr(O,16)}, {vr(V0,4)}, {vr(P,4)}, {vr(O,16)}")
                    kk.e(f"ds_read_b128 {vr(V0,4)}, v{vV} offset:{voff(2*tin+2)}"); lg.issue("V0")
                elif tok in "ab":
                    j = xs
                    r = CR + 16 * (j % 5)
                    nl = 3 if mode == "S" else 4
                    if tok == "a":
                        kk.e(f"s_waitcnt vmcnt({4*nl})")
                        ins = f"v_mfma_f32_32x32x16_bf16 {vr(CA0,16)}, {vr(r,4)}, {vr(r+4,4)}, {vr(CA0,16)}"
                    else:
                        ub = r + 4 if mode == "S" else r + 12
                        ins = f"v_mfma_f32_32x32x16_bf16 {vr(CA1,16)}, {vr(r+8,4)}, {vr(ub,4)}, {vr(CA1,16)}"
                    if j == 9:
                        lx_ = k.newlabel("skipx")
                        kk.e("s_cmp_eq_u32 s41, 7")
                        kk.e(f"s_cbranch_scc1 {lx_}")
                        kk.e(ins)
                        kk.lines.append(lx_ + ":")
                    else:
                        kk.e(ins)
                    if tok == "b":
                        dr = j >> 1; s_ = j & 1
                        oa = 256 - 64*dr + 32*s_; ou = 64 - 16*dr + 3072*s_
                        kk.e(f"buffer_load_dwordx4 {vr(r,4)}, v{vAa}, s[8:11], s38 offen offset:{oa}")
                        kk.e(f"buffer_load_dwordx4 {vr(r+4,4)}, v{vUa}, s[8:11], s39 offen offset:{ou}")
                        kk.e(f"buffer_load_dwordx4 {vr(r+8,4)}, v{vAb}, s[8:11], s38 offen offset:{oa}")
                        if mode == "N": kk.e(f"buffer_load_dwordx4 {vr(r+12,4)}, v{vUb}, s[8:11], s39 offen offset:{ou}")
                        xs += 1
            assert e == 16 and c == 8
    def advance():
        k.e(f"""
        v_add_u32 v{vK}, {CH}, v{vK}
        v_add_u32 v{vK2}, {CH}, v{vK2}
        v_add_u32 v{vV}, {CH}, v{vV}
        """)
    tmp = K("tmp"); lg = SB(tmp, "lgkmcnt", 15)
    body(tmp, lg, "plain"); state = list(lg.q)
    lg.k = k
    yp = [x[2:] for x in var if x.startswith("yp")]
    def loop(mode, start, vmbar=False, stop=8):
        k.e(f"s_mov_b32 s41, {start}")
        ll = k.newlabel("loop")
        k.label(ll)
        if start == 2 and yp:
            c1, c2 = int(yp[0][0]), int(yp[0][1])
            for (cc, pr) in ((c1, 1), (c2, 0)):
                l_ = k.newlabel("yp")
                k.e(f"s_cmp_eq_u32 s41, {cc}")
                k.e(f"s_cbranch_scc0 {l_}")
                k.e(f"s_setprio {pr}")
                k.label(l_)
        body(k, lg, mode, loop=True)
        assert lg.q == state
        advance()
        if mode in "SN":
            k.e("s_sub_u32 s38, s38, 320")
            k.e("s_sub_u32 s39, s39, 80")
        k.e("s_add_u32 s41, s41, 1")
        if start == 1:
            ls = k.newlabel("nobar")
            k.e("s_cmp_eq_u32 s41, 2")
            k.e(f"s_cbranch_scc0 {ls}")
            if vmbar: k.e("s_waitcnt vmcnt(0)")
            k.e("s_barrier")
            k.label(ls)
        k.e(f"s_cmp_lt_u32 s41, {stop}")
        k.e(f"s_cbranch_scc1 {ll}")
    ldma = k.newlabel("dma"); ljoin = k.newlabel("join"); lN = k.newlabel("N"); lP = k.newlabel("Pl")
    k.e("s_cmp_ge_u32 s19, 4")
    k.e(f"s_cbranch_scc1 {ldma}")
    if "odma" in var:
        pcs = list(range(30))
        body(k, lg, "dma4", pieces=pcs, first=True, vm_at2=8)
        assert lg.q == state and not pcs
        advance()
        k.e("s_waitcnt vmcnt(25)")
        k.e("s_barrier")
    else:
        body(k, lg, "plain", first=True, vm_at2=0)
        assert lg.q == state
        advance()
        k.e("s_barrier")
    k.e("s_cmp_eq_u32 s35, 3")
    k.e(f"s_cbranch_scc1 {lP}")
    cp = [x[2:] for x in var if x.startswith("cp")]
    if cp: k.e(f"s_setprio {cp[0]}")
    k.e("s_cmp_eq_u32 s35, 1")
    k.e(f"s_cbranch_scc1 {lN}")
    loop("S", 1)
    k.e(f"s_branch {ljoin}")
    k.label(lN)
    loop("N", 1)
    k.e(f"s_branch {ljoin}")
    k.label(lP)
    loop("plain", 1, vmbar=("odma" in var))
    k.e(f"s_branch {ljoin}")
    k.label(ldma)
    if "odma" in var:
        body(k, lg, "plain", first=True, vm_at2=0)
        advance()
        k.e("s_barrier")
        body(k, lg, "plain")
        advance()
        k.e("s_barrier")
    else:
        pcs = list(range(30))
        body(k, lg, "dma", pieces=pcs, first=True, vm_at2=4)
        assert lg.q == state
        advance()
        k.e("s_waitcnt vmcnt(11)")
        k.e("s_barrier")
        body(k, lg, "dma", pieces=pcs)
        assert lg.q == state and not pcs
        advance()
        k.e("s_waitcnt vmcnt(0)")
        k.e("s_barrier")
    k.e(f"""
    s_load_dwordx2 s[6:7], s[0:1], 72
    s_lshr_b32 s30, s2, 3
    s_lshl_b32 s30, s30, 2
    s_add_u32 s30, s30, s19
    s_sub_u32 s30, s30, 4
    s_mul_i32 s30, s30, {41*128}
    v_lshlrev_b32 v{t+8}, 7, v{lane}
    v_cmp_gt_u32 vcc, 41, v{lane}
    s_and_saveexec_b64 s[44:45], vcc
    s_waitcnt lgkmcnt(0)
    """)
    srd(k, 12, 6, WOB)
    k.e(f"buffer_load_dword v{vJ}, v{t+8}, s[12:15], s30 offen")
    k.e("s_mov_b64 exec, -1")
    lg.q = list(state)
    HELP = "help" in var
    loop("plain", 2, stop=(7 if HELP else 8))
    k.label(ljoin)
    if HELP:
        lnq = k.newlabel("noq")
        k.e(f"""
        s_cmp_ge_u32 s19, 4
        s_cbranch_scc1 {lnq}
        s_lshl_b32 s26, s20, 16
        s_add_u32 s27, s21, 4
        s_lshl_b32 s27, s27, 10
        s_add_u32 s26, s26, s27
        s_add_u32 s26, s26, {QM}
        s_lshl_b32 s28, s20, 13
        s_add_u32 s27, s21, 4
        s_lshl_b32 s27, s27, 7
        s_add_u32 s28, s28, s27
        s_add_u32 s28, s28, {Q2}
        v_and_b32 v{t}, 31, v{lane}
        v_lshlrev_b32 v{t+1}, 2, v{t}
        v_mov_b32 v{t+2}, -1
        v_cmp_gt_u32 vcc, 32, v{lane}
        s_nop 1
        v_cndmask_b32 v{t+2}, v{t+2}, v{t+1}, vcc
        buffer_load_dwordx4 {vr(QN,4)}, v{vD}, s[8:11], s26 offen
        buffer_load_dword v{Q2N}, v{t+2}, s[8:11], s28 offen
        """)
        k.label(lnq)
    k.e(f"""
    s_waitcnt lgkmcnt(0)
    v_mfma_f32_32x32x16_bf16 {vr(O,16)}, {vr(V1,4)}, {vr(P+4,4)}, {vr(O,16)}
    """)
    if prof: prof.mark()
    k.nop(12)
    if HELP:
        lnh = k.newlabel("nohelp")
        k.e(f"""
        s_cmp_lt_u32 s19, 4
        s_cbranch_scc1 {lnh}
        s_barrier
        s_sub_u32 s26, s19, 4
        s_mul_i32 s26, s26, 2816
        v_lshlrev_b32 v{t}, 2, v{lane}
        v_add_u32 v{t}, s26, v{t}
        """)
        for r in range(11): k.e(f"ds_read_b32 v{SA+r}, v{t} offset:{256*r}")
        k.e("s_waitcnt lgkmcnt(0)")
        for r in range(11): k.e(f"v_add_f32 v{O+r}, v{O+r}, v{SA+r}")
        k.label(lnh)
    lfin = k.newlabel("fin"); lfb = k.newlabel("fb")
    k.e(f"""
    v_mov_b32 v{t}, v{O+10}
    v_mov_b32 v{t+1}, v{O+10}
    s_mov_b32 s42, {f2u(2.0**-64)}
    s_mov_b32 s43, {f2u(2.0**40)}
    v_permlane32_swap_b32 v{t}, v{t+1}
    s_nop 1
    v_cmp_le_f32 vcc, s42, v{t}
    v_cmp_ge_f32 s[44:45], s43, v{t}
    s_and_b64 s[44:45], s[44:45], vcc
    s_cmp_eq_u64 s[44:45], exec
    s_cbranch_scc0 {lfb}
    """)
    k.label(lfin)
    k.e(f"""
    v_rcp_f32 v{t}, v{t}
    v_and_b32 v{t+2}, 31, v{lane}
    v_lshrrev_b32 v{t+3}, 5, v{lane}
    s_lshl_b32 s26, s21, 5
    v_add_u32 v{t+2}, s26, v{t+2}
    v_mul_u32_u24 v{t+2}, 1152, v{t+2}
    v_lshl_add_u32 v{t+2}, v{t+3}, 3, v{t+2}
    s_mul_i32 s27, s20, 36
    s_add_u32 s27, s27, {OA}
    """)
    for r in range(10): k.e(f"v_mul_f32 v{O+r}, v{O+r}, v{t}")
    for j in range(5): k.e(f"v_cvt_pk_bf16_f32 v{P+j}, v{O+2*j}, v{O+2*j+1}")
    k.e(f"""
    buffer_store_dwordx2 {vr(P,2)}, v{t+2}, s[8:11], s27 offen
    buffer_store_dwordx2 {vr(P+2,2)}, v{t+2}, s[8:11], s27 offen offset:16
    s_mov_b32 exec_hi, 0
    buffer_store_dword v{P+4}, v{t+2}, s[8:11], s27 offen offset:32
    s_mov_b64 exec, -1
    """)
    lend = k.newlabel("end"); lhelp = k.newlabel("help")
    k.e("s_cmp_eq_u32 s35, 3")
    k.e(f"s_cbranch_scc1 {lhelp}")
    k.e("s_waitcnt vmcnt(3)")
    for (ca, dst) in ((CA0, 33), (CA1, 34)):
        for g in range(2):
            for e in range(4):
                k.e(f"v_permlane32_swap_b32 v{ca+8*g+e}, v{ca+8*g+4+e}")
        k.e("s_nop 1")
        rr = CR + (0 if ca == CA0 else 8)
        for g in range(2):
            for e in range(4):
                k.e(f"v_cvt_pk_bf16_f32 v{rr+4*g+e}, v{ca+8*g+e}, v{ca+8*g+4+e}")
        for g in range(2):
            k.e(f"buffer_store_dwordx4 {vr(rr+4*g,4)}, v{vY}, s[8:11], s{dst} offen offset:{32*g}")
    k.label(lhelp)
    if HELP:
        k.e("s_cmp_ge_u32 s19, 4")
        k.e(f"s_cbranch_scc1 {lend}")
        k.e(f"s_waitcnt vmcnt(7)")
        k.e("s_cmp_eq_u32 s35, 3")
        lw = k.newlabel("hw")
        k.e(f"s_cbranch_scc0 {lw}")
        k.e("s_waitcnt vmcnt(3)")
        k.label(lw)
        for i in range(4): k.e(f"v_mov_b32 v{QF+i}, v{QN+i}")
        k.e(f"v_mov_b32 v{Q2A}, v{Q2N}")
        k.e(f"v_mov_b32 v{Q2B+1}, v{Q2N}")
        for i in range(16): k.e(f"v_mov_b32 v{O+i}, 0")
        for i in range(4): k.e(f"v_mov_b32 v{P+4+i}, 0")
        for i in range(4): k.e(f"v_mov_b32 v{V1+i}, 0")
        k.e(f"""
        v_subrev_u32 v{vK}, {CH}, v{vK}
        v_subrev_u32 v{vK2}, {CH}, v{vK2}
        v_subrev_u32 v{vV}, {CH}, v{vV}
        ds_read_b128 {vr(KX,4)}, v{vK2}
        ds_read_b128 {vr(KF,4)}, v{vK}
        s_waitcnt lgkmcnt(0)
        v_mfma_f32_32x32x16_bf16 {vr(SA,16)}, {vr(KF,4)}, {vr(QF,4)}, 0
        v_mfma_f32_32x32x8_bf16 {vr(SA,16)}, {vr(KX,2)}, {vr(Q2A,2)}, {vr(SA,16)}
        ds_read_b128 {vr(KF,4)}, v{vK} offset:1024
        ds_read_b128 {vr(V0,4)}, v{vV}
        s_waitcnt lgkmcnt(0)
        s_nop 7
        """)
        lg.q = list(state)
        body(k, lg, "plain")
        k.e(f"""
        s_waitcnt lgkmcnt(0)
        s_nop 0
        v_mfma_f32_32x32x16_bf16 {vr(O,16)}, {vr(V1,4)}, {vr(P+4,4)}, {vr(O,16)}
        s_mul_i32 s26, s19, 2816
        v_lshlrev_b32 v{t}, 2, v{lane}
        v_add_u32 v{t}, s26, v{t}
        """)
        k.nop(12)
        for r in range(11): k.e(f"ds_write_b32 v{t}, v{O+r} offset:{256*r}")
        k.e("s_waitcnt lgkmcnt(0)")
        k.e("s_barrier")
    k.e(f"s_branch {lend}")
    k.label(lfb)
    k.c("fallback: pass 1 = true row max, pass 2 = exp(s - max)")
    mx = t + 6
    k.e(f"""
    v_mov_b32 v{mx}, 0xff800000
    s_mov_b32 s46, 0
    s_nop 7
    """)
    lpass = k.newlabel("pass")
    k.label(lpass)
    for i in range(16): k.e(f"v_mov_b32 v{O+i}, 0")
    k.e(f"s_mov_b32 s41, 0")
    lm = k.newlabel("sl")
    k.label(lm)
    k.e(f"""
    s_lshr_b32 s47, s41, 3
    s_mul_i32 s47, s47, {CH}
    s_and_b32 s48, s41, 7
    s_mul_i32 s52, s20, {HB}
    s_add_u32 s47, s47, s52
    s_lshl_b32 s49, s48, 10
    s_add_u32 s49, s49, s47
    v_lshlrev_b32 v{t+7}, 4, v{lane}
    buffer_load_dwordx4 {vr(KF,4)}, v{t+7}, s[8:11], s49 offen
    s_lshr_b32 s49, s48, 2
    s_lshl_b32 s49, s49, 9
    s_and_b32 s50, s48, 3
    s_lshl_b32 s50, s50, 2
    s_add_u32 s49, s49, s50
    s_add_u32 s49, s49, s47
    s_add_u32 s49, s49, 8192
    v_and_b32 v{t+8}, 31, v{lane}
    v_lshlrev_b32 v{t+8}, 4, v{t+8}
    buffer_load_dword v{KX}, v{t+8}, s[8:11], s49 offen
    s_mul_i32 s49, s48, {2*VKS}
    s_add_u32 s49, s49, s47
    s_add_u32 s49, s49, 9216
    v_mov_b32 v{KX+1}, 0
    buffer_load_dwordx4 {vr(V0,4)}, v{t+5}, s[8:11], s49 offen
    buffer_load_dwordx4 {vr(V1,4)}, v{t+5}, s[8:11], s49 offen offset:{VKS}
    s_waitcnt vmcnt(0)
    v_mfma_f32_32x32x16_bf16 {vr(SA,16)}, {vr(KF,4)}, {vr(QF,4)}, 0
    v_mfma_f32_32x32x8_bf16 {vr(SA,16)}, {vr(KX,2)}, {vr(Q2A,2)}, {vr(SA,16)}
    """)
    k.nop(12)
    lp2 = k.newlabel("p2"); lnx = k.newlabel("nx")
    k.e("s_cmp_eq_u32 s46, 1")
    k.e(f"s_cbranch_scc1 {lp2}")
    for i in range(8):
        k.e(f"v_max3_f32 v{mx}, v{SA+2*i}, v{SA+2*i+1}, v{mx}")
    k.e(f"s_branch {lnx}")
    k.label(lp2)
    for i in range(16):
        k.e(f"v_sub_f32 v{SA+i}, v{SA+i}, v{mx}")
    for i in range(16):
        k.e(f"v_exp_f32 v{SA+i}, v{SA+i}")
    k.e("s_nop 0")
    for j in range(8):
        k.e(f"v_cvt_pk_bf16_f32 v{P+j}, v{SA+2*j}, v{SA+2*j+1}")
    k.e(f"""
    s_nop 1
    v_mfma_f32_32x32x16_bf16 {vr(O,16)}, {vr(V0,4)}, {vr(P,4)}, {vr(O,16)}
    v_mfma_f32_32x32x16_bf16 {vr(O,16)}, {vr(V1,4)}, {vr(P+4,4)}, {vr(O,16)}
    """)
    k.label(lnx)
    ldone = k.newlabel("fbdone")
    k.e(f"""
    s_add_u32 s41, s41, 1
    s_cmp_lt_u32 s41, 64
    s_cbranch_scc1 {lm}
    s_cmp_eq_u32 s46, 1
    s_cbranch_scc1 {ldone}
    v_mov_b32 v{t+7}, v{mx}
    s_nop 1
    v_permlane32_swap_b32 v{mx}, v{t+7}
    s_nop 1
    v_max_f32 v{mx}, v{mx}, v{t+7}
    s_mov_b32 s46, 1
    s_branch {lpass}
    """)
    k.label(ldone)
    k.nop(12)
    k.e(f"""
    v_mov_b32 v{t}, v{O+10}
    v_mov_b32 v{t+1}, v{O+10}
    s_nop 1
    v_permlane32_swap_b32 v{t}, v{t+1}
    s_nop 1
    s_branch {lfin}
    """)
    k.label(lend)
```

```python
import sys
from g import *
from build import assemble
import k_qkv, k_attn, k_oproj
STAMPS = "stamps" in sys.argv
PROFON = "prof" in sys.argv
var = [a[2:] for a in sys.argv if a.startswith('v=')]
if 'base' not in var: var += ['rebal', 'b2s', 'odma']
kernels = []; launches = []
def make(name, idx, nwg, block, lds, nv, body):
    k = K(name)
    if STAMPS: stamp_id(k, 8); stamp_begin(k)
    k.e(f"s_cmp_ge_u32 s2, {nwg}")
    k.e(f"s_cbranch_scc1 L_{name}_exit")
    PR = Prof(k, PROFON, idx)
    if PR.on:
        stamp_id(k, 8)
        k.e("s_memtime s[56:57]\ns_waitcnt lgkmcnt(0)\ns_mov_b32 s83, s56\ns_memrealtime s[56:57]\ns_waitcnt lgkmcnt(0)\ns_mov_b32 s55, s56")
    body(k, PR if PR.on else None)
    if PR.on:
        PR.mark(); k.e("s_mov_b32 s82, s83"); PR.n = 23; PR.dump()
    if STAMPS: stamp_end(k, idx)
    k.label(f"L_{name}_exit")
    k.e("s_endpgm")
    kernels.append((k, nv, 96)); launches.append((name, nwg, block, lds))

import k_ssm
K1_LDS = max(k_qkv.GEMM_LDS, 9 * k_ssm.KG_LDS_WAVE + 2 * k_ssm.UTA_LDS)
def k1_body(k, p):
    lut = k.newlabel("ut"); lkg = k.newlabel("kg"); lend = k.newlabel("k1end")
    k.e("""
    v_lshrrev_b32 v1, 6, v0
    v_and_b32 v2, 63, v0
    s_nop 0
    v_readfirstlane_b32 s49, v1
    s_cmp_ge_u32 s2, 192
    """)
    k.e(f"s_cbranch_scc1 {lkg}")
    lpf = k.newlabel("pf")
    k.e("s_cmp_ge_u32 s49, 8")
    k.e(f"s_cbranch_scc1 {lpf}")
    k_qkv.gen_qkv(k, p)
    k.e(f"s_branch {lend}")
    k.label(lpf)
    if "ipf" in var:
        lhere = k.newlabel("pc"); lsk = k.newlabel("ipfskip")
        k.e(f"""
        s_cmp_ge_u32 s2, 8
        s_cbranch_scc1 {lsk}
        s_getpc_b64 s[4:5]
        """)
        k.label(lhere)
        k.e(f"""
        s_add_u32 s4, s4, k1_kernel - {lhere}
        s_addc_u32 s5, s5, -1
        s_sub_u32 s6, s49, 8
        s_mul_i32 s6, s6, 24576
        s_mov_b32 s7, L_text_end - k1_kernel - 4
        """)
        for j in range(3):
            k.e(f"""
            v_lshlrev_b32 v4, 7, v2
            v_add_u32 v4, s6, v4
            v_min_u32 v4, s7, v4
            v_mov_b32 v5, s5
            v_add_co_u32 v4, vcc, s4, v4
            s_nop 1
            v_addc_co_u32 v5, vcc, 0, v5, vcc
            global_load_dword v{8+j}, v[4:5], off
            s_add_u32 s6, s6, 8192
            """)
        for _ in range(10): k.e("s_barrier")
        k.label(lsk)
    if "nopf" not in var:
        k_qkv.gen_prefetch(k, 49, k_qkv.GEMM_LDS, first_after=(0 if "pf0" in var else 1), burst=("pfb" in var))
    k.e(f"s_branch L_{k.name}_exit")
    k.label(lkg)
    k.e("s_cmp_ge_u32 s49, 9")
    k.e(f"s_cbranch_scc1 {lut}")
    k.e(f"""
    s_sub_u32 s20, s2, 192
    s_mul_i32 s20, s20, 9
    s_add_u32 s20, s20, s49
    s_mul_i32 s21, s49, {k_ssm.KG_LDS_WAVE}
    """)
    if p: p.n = 0
    k_ssm.gen_kgen(k, 20, 21, p)
    k.e(f"s_branch {lend}")
    k.label(lut)
    k.e(f"""
    s_sub_u32 s40, s2, 192
    s_and_b32 s41, s40, 3
    s_lshr_b32 s40, s40, 2
    s_lshl_b32 s40, s40, 1
    s_sub_u32 s42, s49, 9
    s_add_u32 s40, s40, s42
    s_mul_i32 s42, s42, {k_ssm.UTA_LDS}
    s_add_u32 s42, s42, {9 * k_ssm.KG_LDS_WAVE}
    """)
    k_ssm.gen_utrans_aux(k, 40, 41, 42)
    k.label(lend)
def k3_body(k, p):
    lf = k.newlabel("fin"); lend = k.newlabel("k3end")
    k.e("s_cmp_ge_u32 s2, 144")
    k.e(f"s_cbranch_scc1 {lf}")
    k_oproj.gen_oproj(k, p)
    k.e(f"s_branch {lend}")
    k.label(lf)
    k.e("""
    v_lshrrev_b32 v1, 6, v0
    s_nop 0
    v_readfirstlane_b32 s49, v1
    s_nop 3
    s_cmp_ge_u32 s49, 4
    """)
    k.e(f"s_cbranch_scc1 L_{k.name}_exit")
    k.e("s_sub_u32 s50, s2, 144")
    k_ssm.gen_fin(k, wg="s50", two=("sepconv" not in var))
    k.label(lend)
make("k1_kernel", 0, 256, 704, K1_LDS, 128, k1_body)
if "old2" in var:
    make("k2_kernel", 1, 256, 768, k_attn.ATT_LDS, k_attn.NV_K2, lambda k, p: k_attn.gen_k2(k, p, var=var))
else:
    import k_attn2
    make("k2_kernel", 1, 256, 512, k_attn2.ATT_LDS, k_attn2.NV_K2, lambda k, p: k_attn2.gen_k2(k, p, var=var))
make("k3_kernel", 2, 240, 512, k_oproj.OP_LDS, 100, k3_body)
import re
def add_flag(kern, flag, pred=lambda l: True):
    out = []
    for l in kern.lines:
        if "buffer_store" in l and pred(l): l = l.rstrip() + " " + flag
        out.append(l)
    kern.lines = out
def add_flag_after(kern, marker, flag):
    out = []; on = False
    for l in kern.lines:
        if marker in l: on = True
        if on and "buffer_store" in l: l = l.rstrip() + " " + flag
        out.append(l)
    kern.lines = out
for x in var:
    if x.startswith("ssm"): add_flag_after(kernels[0][0], "SSM kernel generation", x[3:].replace("_", " "))
    if x.startswith("st1"): add_flag(kernels[0][0], x[3:].replace("_", " "))
    if x.startswith("st2"): add_flag(kernels[1][0], x[3:].replace("_", " "))
    if x.startswith("st3"): add_flag(kernels[2][0], x[3:].replace("_", " "))
txt, nerr = assemble(kernels, launches)
open(sys.argv[1] if len(sys.argv) > 1 else "out.s", "w").write(txt)
print("lint errors:", nerr)
```

```python
from g import *
from sb import SB
from layout import *
from k_qkv import srd, f2u

QF, Q2A, Q2B = 4, 8, 10
KF, KX = 12, 16
V0, V1 = 20, 24
P = 28
SA, SBUF = 36, 52
O = 68
vK, vK2, vV = 84, 85, 86
T0 = 88
CA0, CA1 = 100, 116
CR = 132
vAa, vUa, vAb, vUb, vY, vD, vJ = 212, 213, 214, 215, 216, 217, 218
QN, Q2N = 220, 224
NV_K2 = 228
ATT_LDS = 163840

def koff(tt): return (tt >> 3) * CH + (tt & 7) * 1024
def kxoff(q): return (q >> 1) * CH + (q & 1) * 512
def voff(ks): return (ks >> 4) * CH + (ks & 15) * VKS

def gen_k2(k, prof=None, var=()):
    t = T0
    lane = 2
    k.c("---- attention + convolution ----")
    k.e(f"""
    s_load_dwordx2 s[4:5], s[0:1], 96
    v_lshrrev_b32 v1, 6, v0
    v_and_b32 v2, 63, v0
    s_and_b32 s20, s2, 7
    v_readfirstlane_b32 s19, v1
    s_lshr_b32 s21, s2, 3
    s_and_b32 s22, s21, 3
    s_lshl_b32 s20, s20, 2
    s_add_u32 s20, s20, s22
    s_lshr_b32 s21, s21, 2
    s_lshl_b32 s21, s21, 3
    s_add_u32 s21, s21, s19
    s_lshl_b32 s26, s20, 16
    s_lshl_b32 s27, s21, 10
    s_add_u32 s26, s26, s27
    s_add_u32 s26, s26, {QM}
    s_lshl_b32 s28, s20, 13
    s_lshl_b32 s27, s21, 7
    s_add_u32 s28, s28, s27
    s_add_u32 s28, s28, {Q2}
    s_mul_i32 s24, s20, {HB}
    v_lshlrev_b32 v{vK}, 4, v{lane}
    v_lshlrev_b32 v{vD}, 4, v{lane}
    v_and_b32 v{t}, 31, v{lane}
    v_lshlrev_b32 v{t+1}, 2, v{t}
    v_mov_b32 v{t+2}, -1
    v_cmp_gt_u32 vcc, 32, v{lane}
    v_mov_b32 v{Q2A+1}, 0
    v_mov_b32 v{Q2B}, 0
    v_cndmask_b32 v{t+2}, v{t+2}, v{t+1}, vcc
    """)
    k.e(f"""
    s_add_u32 s44, s19, 4
    s_add_u32 s45, s19, 12
    s_cmp_lt_u32 s19, 4
    s_cselect_b32 s44, s19, s44
    s_cselect_b32 s45, s45, s19
    s_lshl_b32 s44, s44, 10
    s_lshl_b32 s45, s45, 10
    s_lshl_b32 s46, s19, 10
    s_add_u32 s46, s46, 16384
    s_add_u32 s47, s46, 8192
    s_waitcnt lgkmcnt(0)
    """)
    if prof: prof.mark()
    srd(k, 8, 4, WS_END)
    k.e(f"buffer_load_dwordx4 {vr(QF,4)}, v{vK}, s[8:11], s26 offen")
    k.e(f"buffer_load_dword v{Q2A}, v{t+2}, s[8:11], s28 offen")
    for sreg in (44, 45, 46, 47):
        k.e(f"""
        s_mov_b32 m0, s{sreg}
        s_add_u32 s27, s24, s{sreg}
        buffer_load_dwordx4 v{vD}, s[8:11], s27 offen lds
        """)
    lw3 = k.newlabel("w3"); lu = k.newlabel("ud"); lnn = k.newlabel("nn"); lx = k.newlabel("x96")
    k.e(f"""
    s_mov_b32 s35, 3
    s_mov_b32 s30, 0
    s_mov_b32 s31, 0
    s_cmp_ge_u32 s19, 4
    s_cbranch_scc1 {lu}
    s_cmp_eq_u32 s19, 3
    s_cbranch_scc1 {lw3}
    s_and_b32 s30, s2, 7
    s_lshl_b32 s30, s30, 6
    s_lshr_b32 s31, s2, 3
    s_lshl_b32 s31, s31, 1
    s_add_u32 s30, s30, s31
    s_add_u32 s31, s30, 1
    s_mov_b32 s35, 1
    s_cmp_eq_u32 s19, 2
    s_cbranch_scc1 {lu}
    s_add_u32 s30, s30, s19
    s_mov_b32 s31, s30
    s_mov_b32 s35, 0
    s_branch {lu}
    """)
    k.label(lw3)
    k.e(f"""
    s_cmp_ge_u32 s2, 96
    s_cbranch_scc1 {lu}
    s_cmp_ge_u32 s2, 64
    s_cbranch_scc1 {lx}
    s_add_u32 s30, s2, 512
    s_mov_b32 s31, s30
    s_mov_b32 s35, 0
    s_branch {lu}
    """)
    k.label(lx)
    k.e(f"""
    s_sub_u32 s30, s2, 64
    s_lshl_b32 s30, s30, 1
    s_add_u32 s30, s30, 512
    s_add_u32 s31, s30, 1
    s_mov_b32 s35, 1
    """)
    k.label(lu)
    k.e(f"""
    v_and_b32 v{t+5}, 3, v{t}
    v_lshlrev_b32 v{t+5}, 1, v{t+5}
    v_bfe_u32 v{t+6}, v{t}, 2, 1
    v_or_b32 v{t+5}, v{t+5}, v{t+6}
    v_lshrrev_b32 v{t+6}, 3, v{t}
    v_lshl_or_b32 v{t+5}, v{t+6}, 3, v{t+5}
    v_and_b32 v{t+6}, 1, v{t+5}
    v_xor_b32 v{t+6}, 1, v{t+6}
    v_sub_u32 v{t+7}, 2047, v{t+5}
    v_sub_u32 v{t+7}, v{t+7}, v{t+6}
    v_lshrrev_b32 v{t+4}, 5, v{lane}
    v_lshl_add_u32 v{t+7}, v{t+4}, 3, v{t+7}
    v_lshlrev_b32 v{t+7}, 1, v{t+7}
    v_mul_u32_u24 v{t+6}, {KRH}, v{t+6}
    v_add_u32 v{t+7}, v{t+7}, v{t+6}
    v_mul_u32_u24 v{t+6}, 1536, v{t+4}
    v_lshl_add_u32 v{t+6}, v{t}, 4, v{t+6}
    v_lshlrev_b32 v{t+8}, 6, v{t}
    v_lshl_add_u32 v{vY}, v{t+4}, 4, v{t+8}
    s_mul_i32 s36, s30, {KRC}
    s_add_u32 s36, s36, {KR - 4288}
    s_mul_i32 s37, s31, {KRC}
    s_add_u32 s37, s37, {KR - 4288}
    s_sub_u32 s40, s37, 2048
    s_cmp_eq_u32 s35, 0
    s_cselect_b32 s37, s40, s37
    v_add_u32 v{vAa}, s36, v{t+7}
    v_add_u32 v{vAb}, s37, v{t+7}
    s_mul_i32 s36, s30, {UPC}
    s_add_u32 s36, s36, {UP + 512 - 1072}
    s_mul_i32 s37, s31, {UPC}
    s_add_u32 s37, s37, {UP + 512 - 1072}
    s_cmp_eq_u32 s35, 0
    s_cselect_b32 s40, 0, 512
    s_add_u32 s36, s36, s40
    s_add_u32 s37, s37, s40
    v_add_u32 v{vUa}, s36, v{t+6}
    v_add_u32 v{vUb}, s37, v{t+6}
    s_mul_i32 s33, s30, 4096
    s_add_u32 s33, s33, {YT}
    s_mul_i32 s34, s31, 4096
    s_add_u32 s34, s34, {YT + 2048}
    s_mul_i32 s36, s30, 2048
    s_add_u32 s36, s36, {YT2}
    s_add_u32 s37, s33, 2048
    s_cmp_eq_u32 s35, 0
    s_cselect_b32 s34, s36, s34
    s_cselect_b32 s33, s33, s37
    s_mov_b32 s38, 4032
    s_mov_b32 s39, 1008
    """)
    for i in range(32 + 80): k.e(f"v_mov_b32 v{CA0+i}, 0")
    k.e(f"""
    v_lshrrev_b32 v{t+3}, 5, v{lane}
    v_mul_u32_u24 v{t+3}, {VH}, v{t+3}
    v_min_u32 v{t+5}, 19, v{t}
    v_lshl_add_u32 v{t+5}, v{t+5}, 4, v{t+3}
    v_add_u32 v{vV}, 9216, v{t+5}
    v_lshlrev_b32 v{vK2}, 4, v{t}
    v_add_u32 v{vK2}, 8192, v{vK2}
    s_and_b32 s25, s19, 3
    s_lshl_b32 s25, s25, 10
    s_add_u32 s25, s25, 32768
    s_add_u32 s24, s24, s25
    """)
    for i in range(16): k.e(f"v_mov_b32 v{O+i}, 0")
    for i in range(4): k.e(f"v_mov_b32 v{P+4+i}, 0")
    for i in range(4): k.e(f"v_mov_b32 v{V1+i}, 0")
    k.e("s_waitcnt vmcnt(2)")
    k.e(f"v_mov_b32 v{Q2B+1}, v{Q2A}")
    if prof: prof.mark()
    k.e("s_barrier")
    if prof: prof.mark()
    if "kxm" in var:
        for i in range(4): k.e(f"v_mov_b32 v{KX+i}, 0")
        k.e("s_mov_b32 exec_hi, 0")
    k.e(f"ds_read_b128 {vr(KX,4)}, v{vK2}")
    if "kxm" in var: k.e("s_mov_b32 exec_hi, -1")
    k.e(f"""
    ds_read_b128 {vr(KF,4)}, v{vK}
    s_waitcnt lgkmcnt(0)
    v_mfma_f32_32x32x16_bf16 {vr(SA,16)}, {vr(KF,4)}, {vr(QF,4)}, 0
    v_mfma_f32_32x32x8_bf16 {vr(SA,16)}, {vr(KX,2)}, {vr(Q2A,2)}, {vr(SA,16)}
    ds_read_b128 {vr(KF,4)}, v{vK} offset:1024
    ds_read_b128 {vr(V0,4)}, v{vV}
    s_waitcnt lgkmcnt(0)
    s_nop 7
    """)
    k.e("s_mov_b32 s51, 0x07060302")
    PAT_PLAIN = "1 eeeecc p eeeecc 2 eeeecc P eeeecc"
    PAT_DMA = "1 eeeecc D p eeeecc 2 eeeecc D P eeeecc"
    PAT_DMA4 = "1 eeee D cc D p eeeecc 2 eeee D cc D P eeeecc"
    PAT_C1 = "1 eeee p ccee a eecc 2 eeee b ccee P eecc"
    PAT_C2 = "1 eee p ecc a eee b ecc 2 eee a ecc b eee P ecc"
    DBL = {"0": (2, 6), "1": (3, 7), "2": (1, 5), "3": (0, 4)}[([x[3:] for x in var if x.startswith("dbl")] + ["0"])[0]]
    pc1 = {"0": PAT_C1, "1": "1 eeee p ccee 2 eecc a eeee b ccee P eecc", "2": "1 eeee a ccee p eecc b eeee 2 ccee P eecc",
           "3": "1 eeeec p ceee a ecce 2 eece b ceee P ecc"}
    PAT_C1 = pc1[([x[3:] for x in var if x.startswith("pc1")] + ["1"])[0]]
    PRIOS = {"n": [], "1": [(7, 4, 0)], "2": [(6, 4, 2), (7, 2, 1), (7, 6, 0)]}
    PRIO = PRIOS[[x[2:] for x in var if x.startswith("pr")][0]] if any(x.startswith("pr") for x in var) else PRIOS["n"]
    def piece(kk, j):
        kk.e(f"s_add_u32 m0, s25, {j*4096}")
        kk.e(f"s_add_u32 s27, s24, {j*4096}")
        kk.e(f"buffer_load_dwordx4 v{vD}, s[8:11], s27 offen lds")
    def body(kk, lg, mode, pieces=None, first=False, loop=False, vm_at2=None):
        xs = 0
        for tin in range(8):
            cur = SA if tin % 2 == 0 else SBUF
            nxt = SBUF if tin % 2 == 0 else SA
            e = c = 0
            if tin == 2 and first:
                kk.e(f"s_waitcnt vmcnt({vm_at2})")
                kk.e("s_barrier")
            if loop:
                for (pc, pt, pr) in PRIO:
                    if pt == tin:
                        lp = k.newlabel("pl")
                        kk.e(f"s_cmp_eq_u32 s41, {pc}")
                        kk.e(f"s_cbranch_scc0 {lp}")
                        kk.e(f"s_setprio {pr}")
                        kk.lines.append(lp + ":")
            pat = {"plain": PAT_PLAIN, "dma": PAT_DMA, "dma4": PAT_DMA4}.get(mode) or (PAT_C2 if tin in DBL else PAT_C1)
            for tok in pat.replace(" ", ""):
                if tok == "e":
                    kk.e(f"v_exp_f32 v{cur+e}, v{cur+e}"); e += 1
                elif tok == "c":
                    assert e >= 2*c + 2
                    if "perm" in var: kk.e(f"v_perm_b32 v{P+c}, v{cur+2*c+1}, v{cur+2*c}, s51")
                    else: kk.e(f"v_cvt_pk_bf16_f32 v{P+c}, v{cur+2*c}, v{cur+2*c+1}")
                    c += 1
                elif tok == "D":
                    if pieces: piece(kk, pieces.pop(0))
                elif tok == "1":
                    lg.wait_for(["K"])
                    kk.e(f"v_mfma_f32_32x32x16_bf16 {vr(nxt,16)}, {vr(KF,4)}, {vr(QF,4)}, 0")
                    kk.e(f"ds_read_b128 {vr(KF,4)}, v{vK} offset:{koff(tin+2)}"); lg.issue("K")
                elif tok == "p":
                    assert c <= 4
                    lg.wait_for(["V1"])
                    kk.e(f"v_mfma_f32_32x32x16_bf16 {vr(O,16)}, {vr(V1,4)}, {vr(P+4,4)}, {vr(O,16)}")
                    kk.e(f"ds_read_b128 {vr(V1,4)}, v{vV} offset:{voff(2*tin+1)}"); lg.issue("V1")
                elif tok == "2":
                    t1 = tin + 1
                    lg.wait_for(["X"])
                    kx = KX + 2 * ((t1 & 3) >> 1)
                    q2 = Q2A if (t1 & 1) == 0 else Q2B
                    kk.e(f"v_mfma_f32_32x32x8_bf16 {vr(nxt,16)}, {vr(kx,2)}, {vr(q2,2)}, {vr(nxt,16)}")
                    if (t1 & 3) == 3:
                        if "kxm" in var: kk.e("s_mov_b32 exec_hi, 0")
                        kk.e(f"ds_read_b128 {vr(KX,4)}, v{vK2} offset:{kxoff((t1+1) >> 2)}"); lg.issue("X")
                        if "kxm" in var: kk.e("s_mov_b32 exec_hi, -1")
                elif tok == "P":
                    assert c >= 4
                    lg.wait_for(["V0"])
                    kk.e(f"v_mfma_f32_32x32x16_bf16 {vr(O,16)}, {vr(V0,4)}, {vr(P,4)}, {vr(O,16)}")
                    kk.e(f"ds_read_b128 {vr(V0,4)}, v{vV} offset:{voff(2*tin+2)}"); lg.issue("V0")
                elif tok in "ab":
                    j = xs
                    r = CR + 16 * (j % 5)
                    nl = 3 if mode == "S" else 4
                    if tok == "a":
                        kk.e(f"s_waitcnt vmcnt({4*nl})")
                        ins = f"v_mfma_f32_32x32x16_bf16 {vr(CA0,16)}, {vr(r,4)}, {vr(r+4,4)}, {vr(CA0,16)}"
                    else:
                        ub = r + 4 if mode == "S" else r + 12
                        ins = f"v_mfma_f32_32x32x16_bf16 {vr(CA1,16)}, {vr(r+8,4)}, {vr(ub,4)}, {vr(CA1,16)}"
                    if j == 9:
                        lx_ = k.newlabel("skipx")
                        kk.e("s_cmp_eq_u32 s41, 7")
                        kk.e(f"s_cbranch_scc1 {lx_}")
                        kk.e(ins)
                        kk.lines.append(lx_ + ":")
                    else:
                        kk.e(ins)
                    if tok == "b":
                        dr = j >> 1; s_ = j & 1
                        oa = 256 - 64*dr + 32*s_; ou = 64 - 16*dr + 3072*s_
                        kk.e(f"buffer_load_dwordx4 {vr(r,4)}, v{vAa}, s[8:11], s38 offen offset:{oa}")
                        kk.e(f"buffer_load_dwordx4 {vr(r+4,4)}, v{vUa}, s[8:11], s39 offen offset:{ou}")
                        kk.e(f"buffer_load_dwordx4 {vr(r+8,4)}, v{vAb}, s[8:11], s38 offen offset:{oa}")
                        if mode == "N": kk.e(f"buffer_load_dwordx4 {vr(r+12,4)}, v{vUb}, s[8:11], s39 offen offset:{ou}")
                        xs += 1
            assert e == 16 and c == 8
    def advance():
        k.e(f"""
        v_add_u32 v{vK}, {CH}, v{vK}
        v_add_u32 v{vK2}, {CH}, v{vK2}
        v_add_u32 v{vV}, {CH}, v{vV}
        """)
    tmp = K("tmp"); lg = SB(tmp, "lgkmcnt", 15)
    body(tmp, lg, "plain"); state = list(lg.q)
    lg.k = k
    yp = [x[2:] for x in var if x.startswith("yp")]
    def loop(mode, start, vmbar=False, stop=8):
        k.e(f"s_mov_b32 s41, {start}")
        ll = k.newlabel("loop")
        k.label(ll)
        if start == 2 and yp:
            c1, c2 = int(yp[0][0]), int(yp[0][1])
            for (cc, pr) in ((c1, 1), (c2, 0)):
                l_ = k.newlabel("yp")
                k.e(f"s_cmp_eq_u32 s41, {cc}")
                k.e(f"s_cbranch_scc0 {l_}")
                k.e(f"s_setprio {pr}")
                k.label(l_)
        body(k, lg, mode, loop=True)
        assert lg.q == state
        advance()
        if mode in "SN":
            k.e("s_sub_u32 s38, s38, 320")
            k.e("s_sub_u32 s39, s39, 80")
        k.e("s_add_u32 s41, s41, 1")
        if start == 1:
            ls = k.newlabel("nobar")
            k.e("s_cmp_eq_u32 s41, 2")
            k.e(f"s_cbranch_scc0 {ls}")
            if vmbar: k.e("s_waitcnt vmcnt(0)")
            k.e("s_barrier")
            k.label(ls)
        k.e(f"s_cmp_lt_u32 s41, {stop}")
        k.e(f"s_cbranch_scc1 {ll}")
    ldma = k.newlabel("dma"); ljoin = k.newlabel("join"); lN = k.newlabel("N"); lP = k.newlabel("Pl")
    k.e("s_cmp_ge_u32 s19, 4")
    k.e(f"s_cbranch_scc1 {ldma}")
    if "odma" in var:
        pcs = list(range(30))
        body(k, lg, "dma4", pieces=pcs, first=True, vm_at2=8)
        assert lg.q == state and not pcs
        advance()
        k.e("s_waitcnt vmcnt(25)")
        k.e("s_barrier")
    else:
        body(k, lg, "plain", first=True, vm_at2=0)
        assert lg.q == state
        advance()
        k.e("s_barrier")
    k.e("s_cmp_eq_u32 s35, 3")
    k.e(f"s_cbranch_scc1 {lP}")
    cp = [x[2:] for x in var if x.startswith("cp")]
    if cp: k.e(f"s_setprio {cp[0]}")
    k.e("s_cmp_eq_u32 s35, 1")
    k.e(f"s_cbranch_scc1 {lN}")
    loop("S", 1)
    k.e(f"s_branch {ljoin}")
    k.label(lN)
    loop("N", 1)
    k.e(f"s_branch {ljoin}")
    k.label(lP)
    loop("plain", 1, vmbar=("odma" in var))
    k.e(f"s_branch {ljoin}")
    k.label(ldma)
    if "odma" in var:
        body(k, lg, "plain", first=True, vm_at2=0)
        advance()
        k.e("s_barrier")
        body(k, lg, "plain")
        advance()
        k.e("s_barrier")
    else:
        pcs = list(range(30))
        body(k, lg, "dma", pieces=pcs, first=True, vm_at2=4)
        assert lg.q == state
        advance()
        k.e("s_waitcnt vmcnt(11)")
        k.e("s_barrier")
        body(k, lg, "dma", pieces=pcs)
        assert lg.q == state and not pcs
        advance()
        k.e("s_waitcnt vmcnt(0)")
        k.e("s_barrier")
    k.e(f"""
    s_load_dwordx2 s[6:7], s[0:1], 72
    s_lshr_b32 s30, s2, 3
    s_lshl_b32 s30, s30, 2
    s_add_u32 s30, s30, s19
    s_sub_u32 s30, s30, 4
    s_mul_i32 s30, s30, {41*128}
    v_lshlrev_b32 v{t+8}, 7, v{lane}
    v_cmp_gt_u32 vcc, 41, v{lane}
    s_and_saveexec_b64 s[44:45], vcc
    s_waitcnt lgkmcnt(0)
    """)
    srd(k, 12, 6, WOB)
    k.e(f"buffer_load_dword v{vJ}, v{t+8}, s[12:15], s30 offen")
    k.e("s_mov_b64 exec, -1")
    lg.q = list(state)
    HELP = "help" in var
    loop("plain", 2, stop=(7 if HELP else 8))
    k.label(ljoin)
    if HELP:
        lnq = k.newlabel("noq")
        k.e(f"""
        s_cmp_ge_u32 s19, 4
        s_cbranch_scc1 {lnq}
        s_lshl_b32 s26, s20, 16
        s_add_u32 s27, s21, 4
        s_lshl_b32 s27, s27, 10
        s_add_u32 s26, s26, s27
        s_add_u32 s26, s26, {QM}
        s_lshl_b32 s28, s20, 13
        s_add_u32 s27, s21, 4
        s_lshl_b32 s27, s27, 7
        s_add_u32 s28, s28, s27
        s_add_u32 s28, s28, {Q2}
        v_and_b32 v{t}, 31, v{lane}
        v_lshlrev_b32 v{t+1}, 2, v{t}
        v_mov_b32 v{t+2}, -1
        v_cmp_gt_u32 vcc, 32, v{lane}
        s_nop 1
        v_cndmask_b32 v{t+2}, v{t+2}, v{t+1}, vcc
        buffer_load_dwordx4 {vr(QN,4)}, v{vD}, s[8:11], s26 offen
        buffer_load_dword v{Q2N}, v{t+2}, s[8:11], s28 offen
        """)
        k.label(lnq)
    k.e(f"""
    s_waitcnt lgkmcnt(0)
    v_mfma_f32_32x32x16_bf16 {vr(O,16)}, {vr(V1,4)}, {vr(P+4,4)}, {vr(O,16)}
    """)
    if prof: prof.mark()
    k.nop(12)
    if HELP:
        lnh = k.newlabel("nohelp")
        k.e(f"""
        s_cmp_lt_u32 s19, 4
        s_cbranch_scc1 {lnh}
        s_barrier
        s_sub_u32 s26, s19, 4
        s_mul_i32 s26, s26, 2816
        v_lshlrev_b32 v{t}, 2, v{lane}
        v_add_u32 v{t}, s26, v{t}
        """)
        for r in range(11): k.e(f"ds_read_b32 v{SA+r}, v{t} offset:{256*r}")
        k.e("s_waitcnt lgkmcnt(0)")
        for r in range(11): k.e(f"v_add_f32 v{O+r}, v{O+r}, v{SA+r}")
        k.label(lnh)
    lfin = k.newlabel("fin"); lfb = k.newlabel("fb")
    k.e(f"""
    v_mov_b32 v{t}, v{O+10}
    v_mov_b32 v{t+1}, v{O+10}
    s_mov_b32 s42, {f2u(2.0**-64)}
    s_mov_b32 s43, {f2u(2.0**40)}
    v_permlane32_swap_b32 v{t}, v{t+1}
    s_nop 1
    v_cmp_le_f32 vcc, s42, v{t}
    v_cmp_ge_f32 s[44:45], s43, v{t}
    s_and_b64 s[44:45], s[44:45], vcc
    s_cmp_eq_u64 s[44:45], exec
    s_cbranch_scc0 {lfb}
    """)
    k.label(lfin)
    k.e(f"""
    v_rcp_f32 v{t}, v{t}
    v_and_b32 v{t+2}, 31, v{lane}
    v_lshrrev_b32 v{t+3}, 5, v{lane}
    s_lshl_b32 s26, s21, 5
    v_add_u32 v{t+2}, s26, v{t+2}
    v_mul_u32_u24 v{t+2}, 1152, v{t+2}
    v_lshl_add_u32 v{t+2}, v{t+3}, 3, v{t+2}
    s_mul_i32 s27, s20, 36
    s_add_u32 s27, s27, {OA}
    """)
    for r in range(10): k.e(f"v_mul_f32 v{O+r}, v{O+r}, v{t}")
    for j in range(5): k.e(f"v_cvt_pk_bf16_f32 v{P+j}, v{O+2*j}, v{O+2*j+1}")
    k.e(f"""
    buffer_store_dwordx2 {vr(P,2)}, v{t+2}, s[8:11], s27 offen
    buffer_store_dwordx2 {vr(P+2,2)}, v{t+2}, s[8:11], s27 offen offset:16
    s_mov_b32 exec_hi, 0
    buffer_store_dword v{P+4}, v{t+2}, s[8:11], s27 offen offset:32
    s_mov_b64 exec, -1
    """)
    lend = k.newlabel("end"); lhelp = k.newlabel("help")
    k.e("s_cmp_eq_u32 s35, 3")
    k.e(f"s_cbranch_scc1 {lhelp}")
    k.e("s_waitcnt vmcnt(3)")
    for (ca, dst) in ((CA0, 33), (CA1, 34)):
        for g in range(2):
            for e in range(4):
                k.e(f"v_permlane32_swap_b32 v{ca+8*g+e}, v{ca+8*g+4+e}")
        k.e("s_nop 1")
        rr = CR + (0 if ca == CA0 else 8)
        for g in range(2):
            for e in range(4):
                k.e(f"v_cvt_pk_bf16_f32 v{rr+4*g+e}, v{ca+8*g+e}, v{ca+8*g+4+e}")
        for g in range(2):
            k.e(f"buffer_store_dwordx4 {vr(rr+4*g,4)}, v{vY}, s[8:11], s{dst} offen offset:{32*g}")
    k.label(lhelp)
    if HELP:
        k.e("s_cmp_ge_u32 s19, 4")
        k.e(f"s_cbranch_scc1 {lend}")
        k.e(f"s_waitcnt vmcnt(7)")
        k.e("s_cmp_eq_u32 s35, 3")
        lw = k.newlabel("hw")
        k.e(f"s_cbranch_scc0 {lw}")
        k.e("s_waitcnt vmcnt(3)")
        k.label(lw)
        for i in range(4): k.e(f"v_mov_b32 v{QF+i}, v{QN+i}")
        k.e(f"v_mov_b32 v{Q2A}, v{Q2N}")
        k.e(f"v_mov_b32 v{Q2B+1}, v{Q2N}")
        for i in range(16): k.e(f"v_mov_b32 v{O+i}, 0")
        for i in range(4): k.e(f"v_mov_b32 v{P+4+i}, 0")
        for i in range(4): k.e(f"v_mov_b32 v{V1+i}, 0")
        k.e(f"""
        v_subrev_u32 v{vK}, {CH}, v{vK}
        v_subrev_u32 v{vK2}, {CH}, v{vK2}
        v_subrev_u32 v{vV}, {CH}, v{vV}
        ds_read_b128 {vr(KX,4)}, v{vK2}
        ds_read_b128 {vr(KF,4)}, v{vK}
        s_waitcnt lgkmcnt(0)
        v_mfma_f32_32x32x16_bf16 {vr(SA,16)}, {vr(KF,4)}, {vr(QF,4)}, 0
        v_mfma_f32_32x32x8_bf16 {vr(SA,16)}, {vr(KX,2)}, {vr(Q2A,2)}, {vr(SA,16)}
        ds_read_b128 {vr(KF,4)}, v{vK} offset:1024
        ds_read_b128 {vr(V0,4)}, v{vV}
        s_waitcnt lgkmcnt(0)
        s_nop 7
        """)
        lg.q = list(state)
        body(k, lg, "plain")
        k.e(f"""
        s_waitcnt lgkmcnt(0)
        s_nop 0
        v_mfma_f32_32x32x16_bf16 {vr(O,16)}, {vr(V1,4)}, {vr(P+4,4)}, {vr(O,16)}
        s_mul_i32 s26, s19, 2816
        v_lshlrev_b32 v{t}, 2, v{lane}
        v_add_u32 v{t}, s26, v{t}
        """)
        k.nop(12)
        for r in range(11): k.e(f"ds_write_b32 v{t}, v{O+r} offset:{256*r}")
        k.e("s_waitcnt lgkmcnt(0)")
        k.e("s_barrier")
    k.e(f"s_branch {lend}")
    k.label(lfb)
    k.c("fallback: pass 1 = true row max, pass 2 = exp(s - max)")
    mx = t + 6
    k.e(f"""
    v_mov_b32 v{mx}, 0xff800000
    s_mov_b32 s46, 0
    s_nop 7
    """)
    lpass = k.newlabel("pass")
    k.label(lpass)
    for i in range(16): k.e(f"v_mov_b32 v{O+i}, 0")
    k.e(f"s_mov_b32 s41, 0")
    lm = k.newlabel("sl")
    k.label(lm)
    k.e(f"""
    s_lshr_b32 s47, s41, 3
    s_mul_i32 s47, s47, {CH}
    s_and_b32 s48, s41, 7
    s_mul_i32 s52, s20, {HB}
    s_add_u32 s47, s47, s52
    s_lshl_b32 s49, s48, 10
    s_add_u32 s49, s49, s47
    v_lshlrev_b32 v{t+7}, 4, v{lane}
    buffer_load_dwordx4 {vr(KF,4)}, v{t+7}, s[8:11], s49 offen
    s_lshr_b32 s49, s48, 2
    s_lshl_b32 s49, s49, 9
    s_and_b32 s50, s48, 3
    s_lshl_b32 s50, s50, 2
    s_add_u32 s49, s49, s50
    s_add_u32 s49, s49, s47
    s_add_u32 s49, s49, 8192
    v_and_b32 v{t+8}, 31, v{lane}
    v_lshlrev_b32 v{t+8}, 4, v{t+8}
    buffer_load_dword v{KX}, v{t+8}, s[8:11], s49 offen
    s_mul_i32 s49, s48, {2*VKS}
    s_add_u32 s49, s49, s47
    s_add_u32 s49, s49, 9216
    v_mov_b32 v{KX+1}, 0
    buffer_load_dwordx4 {vr(V0,4)}, v{t+5}, s[8:11], s49 offen
    buffer_load_dwordx4 {vr(V1,4)}, v{t+5}, s[8:11], s49 offen offset:{VKS}
    s_waitcnt vmcnt(0)
    v_mfma_f32_32x32x16_bf16 {vr(SA,16)}, {vr(KF,4)}, {vr(QF,4)}, 0
    v_mfma_f32_32x32x8_bf16 {vr(SA,16)}, {vr(KX,2)}, {vr(Q2A,2)}, {vr(SA,16)}
    """)
    k.nop(12)
    lp2 = k.newlabel("p2"); lnx = k.newlabel("nx")
    k.e("s_cmp_eq_u32 s46, 1")
    k.e(f"s_cbranch_scc1 {lp2}")
    for i in range(8):
        k.e(f"v_max3_f32 v{mx}, v{SA+2*i}, v{SA+2*i+1}, v{mx}")
    k.e(f"s_branch {lnx}")
    k.label(lp2)
    for i in range(16):
        k.e(f"v_sub_f32 v{SA+i}, v{SA+i}, v{mx}")
    for i in range(16):
        k.e(f"v_exp_f32 v{SA+i}, v{SA+i}")
    k.e("s_nop 0")
    for j in range(8):
        k.e(f"v_cvt_pk_bf16_f32 v{P+j}, v{SA+2*j}, v{SA+2*j+1}")
    k.e(f"""
    s_nop 1
    v_mfma_f32_32x32x16_bf16 {vr(O,16)}, {vr(V0,4)}, {vr(P,4)}, {vr(O,16)}
    v_mfma_f32_32x32x16_bf16 {vr(O,16)}, {vr(V1,4)}, {vr(P+4,4)}, {vr(O,16)}
    """)
    k.label(lnx)
    ldone = k.newlabel("fbdone")
    k.e(f"""
    s_add_u32 s41, s41, 1
    s_cmp_lt_u32 s41, 64
    s_cbranch_scc1 {lm}
    s_cmp_eq_u32 s46, 1
    s_cbranch_scc1 {ldone}
    v_mov_b32 v{t+7}, v{mx}
    s_nop 1
    v_permlane32_swap_b32 v{mx}, v{t+7}
    s_nop 1
    v_max_f32 v{mx}, v{mx}, v{t+7}
    s_mov_b32 s46, 1
    s_branch {lpass}
    """)
    k.label(ldone)
    k.nop(12)
    k.e(f"""
    v_mov_b32 v{t}, v{O+10}
    v_mov_b32 v{t+1}, v{O+10}
    s_nop 1
    v_permlane32_swap_b32 v{t}, v{t+1}
    s_nop 1
    s_branch {lfin}
    """)
    k.label(lend)
```

```python
from g import *
from sb import SB
from layout import *
from k_qkv import srd, f2u

import sys
NST = 6 if 'v=on6' in sys.argv else (3 if 'v=on3' in sys.argv else 4)
XST = 16384
WBASE = NST * XST
WST = 8192
OP_LDS = WBASE + NST * WST
ACC = 16
XF = [32, 36]
WF = [40, 44]
vXd, vXd2, vWd = 4, 5, 6
vXr = [8, 9, 10, 11]
vWr = 12
vXr2 = [56, 57, 58, 59]
T0 = 48
NV = 64

def gen_oproj(k, prof=None):
    lane = 2; t = T0
    k.c("---- output projection ----")
    k.e(f"""
    s_load_dwordx4 s[4:7], s[0:1], 72
    s_load_dwordx2 s[28:29], s[0:1], 96
    v_lshrrev_b32 v1, 6, v0
    v_and_b32 v2, 63, v0
    s_and_b32 s30, s2, 7
    v_readfirstlane_b32 s19, v1
    s_lshr_b32 s31, s2, 3
    """)
    k.e(f"""
    s_lshl_b32 s21, s30, 1
    s_and_b32 s32, s31, 1
    s_add_u32 s21, s21, s32
    s_lshr_b32 s22, s31, 1
    s_and_b32 s20, s19, 3
    s_lshr_b32 s43, s19, 2
    s_lshl_b32 s24, s21, 7
    s_lshl_b32 s33, s20, 5
    s_add_u32 s24, s24, s33
    s_lshl_b32 s33, s43, 4
    s_add_u32 s24, s24, s33
    s_mul_i32 s24, s24, 1152
    s_add_u32 s24, s24, {OA}
    s_lshl_b32 s25, s22, 7
    s_mul_i32 s33, s19, {8*1152}
    s_add_u32 s25, s25, s33
    s_lshl_b32 s26, s20, 12
    s_lshl_b32 s33, s43, 11
    s_add_u32 s48, s26, s33
    s_lshl_b32 s27, s19, 10
    s_add_u32 s27, s27, {WBASE}
    v_lshrrev_b32 v{t}, 3, v{lane}
    v_mul_u32_u24 v{t}, 1152, v{t}
    v_and_b32 v{t+1}, 7, v{lane}
    v_lshrrev_b32 v{t+2}, 4, v{lane}
    v_xor_b32 v{t+3}, v{t+1}, v{t+2}
    v_lshl_add_u32 v{vXd}, v{t+3}, 4, v{t}
    v_xor_b32 v{t+3}, 4, v{t+3}
    v_lshl_add_u32 v{vXd2}, v{t+3}, 4, v{t}
    v_bfe_u32 v{t+3}, v{lane}, 4, 1
    v_lshlrev_b32 v{t+3}, 2, v{t+3}
    v_xor_b32 v{t+3}, v{t+1}, v{t+3}
    v_lshl_add_u32 v{vWd}, v{t+3}, 4, v{t}
    s_waitcnt lgkmcnt(0)
    """)
    srd(k, 8, 28, WS_END)
    srd(k, 12, 4, WOB)
    srd(k, 16, 6, OUTB)
    vm = SB(k, "vmcnt", 63)
    def dma_list(c):
        st = c % NST
        out = []
        for jj in range(2):
            out.append((f"""s_add_u32 m0, s48, {st*XST + jj*1024}
            s_add_u32 s28, s24, {jj*9216 + c*128}
            buffer_load_dwordx4 v{vXd if jj == 0 else vXd2}, s[8:11], s28 offen lds""", ("D", c)))
        out.append((f"""s_add_u32 m0, s27, {st*WST}
            s_add_u32 s28, s25, {c*64*1152}
            buffer_load_dwordx4 v{vWd}, s[12:15], s28 offen lds""", ("D", c)))
        return out
    def emit_dma(d):
        k.e(d[0]); vm.issue(d[1])
    for d in dma_list(0): emit_dma(d)
    k.e("s_barrier")
    for c in range(1, NST - 1):
        for d in dma_list(c): emit_dma(d)
    k.e(f"""
    v_and_b32 v{t}, 31, v{lane}
    v_lshrrev_b32 v{t+1}, 5, v{lane}
    v_bfe_u32 v{t+2}, v{t}, 1, 3
    v_lshlrev_b32 v{t}, 7, v{t}
    v_add_u32 v{t}, s26, v{t}
    """)
    for sx in range(4):
        k.e(f"""
        v_add_u32 v{t+3}, {2*sx}, v{t+1}
        v_xor_b32 v{t+3}, v{t+3}, v{t+2}
        v_lshl_add_u32 v{vXr[sx]}, v{t+3}, 4, v{t}
        """)
    for sx in range(4): k.e(f"v_add_u32 v{vXr2[sx]}, 65536, v{vXr[sx]}")
    k.e(f"""
    v_bfe_u32 v{t}, v{lane}, 2, 2
    v_lshrrev_b32 v{t+1}, 5, v{lane}
    v_lshl_add_u32 v{t}, v{t+1}, 3, v{t}
    v_lshlrev_b32 v{t}, 7, v{t}
    v_add_u32 v{t}, {WBASE}, v{t}
    v_bfe_u32 v{t+1}, v{lane}, 4, 1
    v_and_b32 v{t+2}, 3, v{lane}
    v_bfe_u32 v{t+3}, v{lane}, 3, 1
    v_and_b32 v{t+4}, 1, v{t+2}
    v_lshl_add_u32 v{t+4}, v{t+1}, 1, v{t+4}
    v_xor_b32 v{t+3}, s43, v{t+3}
    v_lshl_add_u32 v{t+4}, v{t+3}, 2, v{t+4}
    v_lshlrev_b32 v{t+4}, 4, v{t+4}
    v_lshrrev_b32 v{t+5}, 1, v{t+2}
    v_lshl_add_u32 v{t+4}, v{t+5}, 3, v{t+4}
    v_add_u32 v{vWr}, v{t}, v{t+4}
    """)
    lg = SB(k, "lgkmcnt", 15)
    def reads(c, sx, buf):
        st = c % NST
        r = [(f"ds_read_b128 {vr(XF[buf],4)}, v{vXr[sx] if st < 4 else vXr2[sx]} offset:{(st & 3)*XST}", ("X", c, sx))]
        for z in range(2):
            r.append((f"ds_read_b64_tr_b16 {vr(WF[buf]+2*z,2)}, v{vWr} offset:{st*WST + sx*2048 + z*512}", ("W", c, sx, z)))
        return r
    first = [True]
    def mfma(c, sx, buf):
        lg.wait_for([("X", c, sx), ("W", c, sx, 0), ("W", c, sx, 1)])
        d = vr(ACC, 16)
        k.e(f"v_mfma_f32_32x32x16_bf16 {d}, {vr(WF[buf],4)}, {vr(XF[buf],4)}, {'0' if first[0] else d}")
        first[0] = False
    for c in range(9):
        vm.wait_for([("D", c)])
        lg.wait_all()
        k.e("s_barrier")
        if prof: prof.mark()
        dm = dma_list(c + NST - 1) if c + NST - 1 < 9 else []
        for (txt, tag) in reads(c, 0, 0):
            k.e(txt); lg.issue(tag)
        if c > 0: mfma(c - 1, 3, 1)
        for sx in range(3 if c < 8 else 4):
            buf = sx & 1
            if sx < 3:
                for (txt, tag) in reads(c, sx + 1, buf ^ 1):
                    k.e(txt); lg.issue(tag)
            if dm: emit_dma(dm.pop(0))
            mfma(c, sx, buf)
        assert not dm
    if prof: prof.mark()
    k.e(f"""
    s_lshl_b32 s30, s21, 7
    s_lshl_b32 s31, s20, 5
    s_add_u32 s30, s30, s31
    s_mul_i32 s30, s30, 2304
    s_lshl_b32 s31, s22, 7
    s_add_u32 s30, s30, s31
    s_lshl_b32 s31, s43, 6
    s_add_u32 s30, s30, s31
    s_add_u32 s30, s30, 1152
    v_and_b32 v{t}, 31, v{lane}
    v_mul_u32_u24 v{t}, 2304, v{t}
    v_lshrrev_b32 v{t+1}, 5, v{lane}
    v_lshl_add_u32 v{t}, v{t+1}, 4, v{t}
    """)
    k.nop(4)
    for g in range(2):
        for i in range(4):
            k.e(f"v_cvt_pk_bf16_f32 v{32+4*g+i}, v{ACC+8*g+2*i}, v{ACC+8*g+2*i+1}")
        k.e(f"buffer_store_dwordx4 {vr(32+4*g,4)}, v{t}, s[16:19], s30 offen offset:{32*g}")
```

```python
from g import *
from sb import SB
from layout import *
from k_qkv import srd, f2u
import math

LOG2E = 1.4426950408889634
UB = 2048 * 576 * 2

UT_LDS = 36864
def gen_utrans(k, wg="s2", nw=4):
    lane = 2; t = 20
    k.c("---- u transposition ----")
    k.e(f"""
    s_load_dwordx2 s[4:5], s[0:1], 0
    s_load_dwordx2 s[6:7], s[0:1], 96
    v_lshrrev_b32 v1, 6, v0
    v_and_b32 v2, 63, v0
    s_lshr_b32 s21, {wg}, 2
    v_readfirstlane_b32 s19, v1
    s_and_b32 s22, {wg}, 3
    s_mul_i32 s24, s21, {128*1152}
    s_mul_i32 s25, s22, 288
    s_add_u32 s24, s24, s25
    s_mul_i32 s26, s19, {9*1024}
    """)
    k.e(f"""
    s_mul_i32 s27, s19, 576
    v_add_u32 v{t}, s27, v{lane}
    s_waitcnt lgkmcnt(0)
    """)
    srd(k, 8, 4, UB)
    srd(k, 12, 6, WS_END)
    k.e("s_mov_b32 s30, 3641")
    for i in range(9):
        k.e(f"""
        v_add_u32 v{t+1}, {64*i}, v{t}
        v_mul_lo_u32 v{t+2}, v{t+1}, s30
        v_lshrrev_b32 v{t+2}, 16, v{t+2}
        v_mul_u32_u24 v{t+3}, 18, v{t+2}
        v_sub_u32 v{t+3}, v{t+1}, v{t+3}
        v_mul_u32_u24 v{t+2}, 1152, v{t+2}
        v_lshl_add_u32 v{t+2}, v{t+3}, 4, v{t+2}
        s_add_u32 m0, s26, {i*1024}
        s_nop 0
        buffer_load_dwordx4 v{t+2}, s[8:11], s24 offen lds
        """)
    k.e(f"""
    v_mov_b32 v8, 0
    v_mov_b32 v9, 0
    v_mov_b32 v10, 0
    v_mov_b32 v11, 0
    s_mul_i32 s31, s22, {144*UPC}
    s_lshl_b32 s32, s21, 5
    s_add_u32 s31, s31, s32
    s_add_u32 s31, s31, {UP}
    v_and_b32 v{t+6}, 255, v0
    """)
    for i in range(5):
        k.e(f"""
        v_add_u32 v{t+1}, {256*i}, v{t+6}
        v_lshrrev_b32 v{t+2}, 3, v{t+1}
        v_mul_u32_u24 v{t+2}, {UPC}, v{t+2}
        v_bfe_u32 v{t+3}, v{t+1}, 1, 2
        v_mul_u32_u24 v{t+3}, 1536, v{t+3}
        v_add_u32 v{t+2}, v{t+2}, v{t+3}
        v_and_b32 v{t+3}, 1, v{t+1}
        v_lshl_add_u32 v{t+2}, v{t+3}, 4, v{t+2}
        """)
        if i == 4:
            k.e(f"""
            v_cmp_gt_u32 vcc, 1152, v{t+1}
            v_mov_b32 v{t+3}, -1
            s_nop 0
            v_cndmask_b32 v{t+2}, v{t+3}, v{t+2}, vcc
            s_mov_b32 s33, 0
            v_cmp_gt_u32 vcc, 1152, v{t+1}
            s_and_saveexec_b64 s[34:35], vcc
            buffer_store_dwordx4 v[8:11], v{t+2}, s[12:15], s31 offen
            s_mov_b64 exec, s[34:35]
            """)
        else:
            k.e(f"buffer_store_dwordx4 v[8:11], v{t+2}, s[12:15], s31 offen")
    k.e(f"""
    v_lshrrev_b32 v{t+1}, 4, v{lane}
    v_bfe_u32 v{t+2}, v{lane}, 2, 2
    v_lshl_add_u32 v{t+2}, v{t+1}, 5, v{t+2}
    v_mul_u32_u24 v{t+2}, 288, v{t+2}
    v_and_b32 v{t+3}, 3, v{lane}
    v_lshl_add_u32 v{t+2}, v{t+3}, 3, v{t+2}
    v_and_b32 v{t+3}, 15, v{lane}
    v_mul_u32_u24 v{t+3}, {UPC}, v{t+3}
    v_lshl_add_u32 v{t+3}, v{t+1}, 4, v{t+3}
    s_mul_i32 s31, s22, {144*UPC}
    s_lshl_b32 s32, s21, 6
    s_add_u32 s31, s31, s32
    s_add_u32 s31, s31, {UP + 512}
    s_mul_i32 s32, s19, 1536
    s_add_u32 s31, s31, s32
    s_mul_i32 s33, s19, {8*288}
    v_add_u32 v{t+2}, s33, v{t+2}
    s_waitcnt vmcnt(5)
    s_barrier
    """)
    for dg in range(9):
        b = 12 + 4 * (dg & 1)
        k.e(f"""
        ds_read_b64_tr_b16 {vr(b,2)}, v{t+2} offset:{32*dg}
        ds_read_b64_tr_b16 {vr(b+2,2)}, v{t+2} offset:{32*dg + 4*288}
        s_waitcnt lgkmcnt(0)
        buffer_store_dwordx4 {vr(b,4)}, v{t+3}, s[12:15], s31 offen
        s_add_u32 s31, s31, {16*UPC}
        """)

KG_LDS_WAVE = 53 * 256
def gen_kgen(k, chan_sgpr, ldsbase_sgpr, prof=None, after_loads=None):
    lane = 2
    k.c("---- SSM kernel generation ----")
    ch = chan_sgpr; lb = ldsbase_sgpr
    k.e(f"""
    s_load_dwordx8 s[44:51], s[0:1], 8
    s_load_dwordx4 s[52:55], s[0:1], 40
    s_load_dwordx2 s[56:57], s[0:1], 96
    v_lshlrev_b32 v3, 1, v{lane}
    s_lshl_b32 s22, s{ch}, 8
    s_lshl_b32 s23, s{ch}, 1
    v_mov_b32 v4, s23
    s_waitcnt lgkmcnt(0)
    """)
    S = 24
    for i in range(4): srd(k, S + 4*i, 44 + 2*i, PB)
    srd(k, S + 16, 52, 1152)
    srd(k, 16, 54, 1152)
    k.e("s_mov_b32 s54, s56")
    k.e("s_mov_b32 s55, s57")
    k.e("buffer_load_ushort v33, v4, s[16:19], 0 offen")
    k.e(f"buffer_load_ushort v5, v4, s[{S+16}:{S+19}], 0 offen")
    for i in range(4):
        for ps in range(2):
            k.e(f"buffer_load_ushort v{8+2*i+ps}, v3, s[{S+4*i}:{S+4*i+3}], s22 offen offset:{128*ps}")
    if after_loads: after_loads()
    AW = 16
    k.e("v_lshlrev_b32 v6, 2, v2")
    k.e(f"v_add_u32 v6, s{lb}, v6")
    for j in range(16):
        k.e(f"v_xor_b32 v{AW+j}, {16*j}, v6")
    k.e(f"""
    v_and_b32 v6, 31, v2
    v_lshrrev_b32 v7, 5, v2
    v_bfe_u32 v32, v6, 1, 4
    v_xor_b32 v32, v32, v7
    v_lshlrev_b32 v32, 4, v32
    v_lshl_add_u32 v32, v6, 8, v32
    v_add_u32 v32, s{lb}, v32
    """)
    RB = 32
    D = 112
    k.e("s_waitcnt vmcnt(0)")
    if prof: prof.mark()
    c_l2e = f2u(LOG2E); c_i2pi = f2u(1.0 / (2 * math.pi))
    k.e(f"""
    v_lshlrev_b32 v5, 16, v5
    v_mul_f32 v5, {c_l2e}, v5
    v_exp_f32 v5, v5
    s_nop 0
    v_cvt_pk_bf16_f32 v5, v5, v5
    v_lshlrev_b32 v5, 16, v5
    """)
    DT = 5
    def cmul(d, a, b):
        k.e(f"v_mul_f32 v36, v{a+1}, v{b+1}")
        k.e(f"v_mul_f32 v37, v{a+1}, v{b}")
        k.e(f"v_fma_f32 v38, v{a}, v{b+1}, v37")
        k.e(f"v_fma_f32 v{d}, v{a}, v{b}, -v36")
        k.e(f"v_mov_b32 v{d+1}, v38")
    def cmul2(d, a, b, t0, t1):
        k.e(f"v_mul_f32 v{t0}, v{a+1}, v{b+1}")
        k.e(f"v_mul_f32 v{t1}, v{a+1}, v{b}")
        k.e(f"v_fma_f32 v{d}, v{a}, v{b}, -v{t0}")
        k.e(f"v_fma_f32 v{d+1}, v{a}, v{b+1}, v{t1}")
    ZR, ZI = 40, 41
    def cexp(d, tt):
        k.e(f"""
        v_mul_f32 v36, {f2u(float(tt))}, v{ZR}
        v_mul_f32 v37, {f2u(float(tt))}, v{ZI}
        v_exp_f32 v36, v36
        v_fract_f32 v37, v37
        v_cos_f32 v38, v37
        v_sin_f32 v39, v37
        s_nop 0
        v_mul_f32 v{d}, v36, v38
        v_mul_f32 v{d+1}, v36, v39
        """)
    W1, W2, W4, W8, W256, W512, W768, W1024 = 42, 44, 46, 48, 50, 52, 54, 56
    CC, XA, XB_, EA, EB, TT = 58, 60, 62, 64, 66, 68
    PK = 72
    nbar = [0]
    pend = {True: None, False: None}
    def store_row(row, re, im, isA):
        r = row if isA else row - 21
        pk = (PK if isA else PK + 2) + (r & 1)
        k.e(f"v_cvt_pk_bf16_f32 v{pk}, v{re}, {'-' if isA else ''}v{im}")
        last = (r == 20) if isA else False
        if r & 1:
            k.e(f"ds_write2st64_b32 v{AW + ((r >> 1) & 15)}, v{pk-1}, v{pk} offset0:{row-1} offset1:{row}")
        elif last:
            k.e(f"ds_write_b32 v{AW + ((r >> 1) & 15)}, v{pk} offset:{row*256}")
    k.e("s_setprio 3")
    for ps in range(2):
        if ps == 1: k.e("s_setprio 2")
        k.e(f"""
        v_lshlrev_b32 v36, 16, v{8+ps}
        v_mul_f32 v36, {c_l2e}, v36
        v_exp_f32 v36, v36
        v_lshlrev_b32 v37, 16, v{10+ps}
        v_lshlrev_b32 v{CC}, 16, v{12+ps}
        v_cvt_pk_bf16_f32 v36, v36, v36
        v_lshlrev_b32 v36, 16, v36
        v_mul_f32 v36, v36, v{DT}
        v_mul_f32 v37, v37, v{DT}
        v_mul_f32 v{ZR}, {f2u(-LOG2E)}, v36
        v_mul_f32 v{ZI}, {c_i2pi}, v37
        v_lshlrev_b32 v{CC+1}, 16, v{14+ps}
        v_mul_f32 v{CC}, v{CC}, v{DT}
        v_mul_f32 v{CC+1}, v{CC+1}, v{DT}
        v_add_f32 v{CC}, v{CC}, v{CC}
        v_add_f32 v{CC+1}, v{CC+1}, v{CC+1}
        """)
        cexp(W1, 1); cexp(W8, 8); cexp(W256, 256)
        cmul2(W2, W1, W1, 36, 37)
        cmul2(W4, W2, W2, 36, 37)
        cmul2(W512, W256, W256, 36, 37)
        cmul2(W768, W512, W256, 36, 37)
        cmul2(W1024, W512, W512, 36, 37)
        k.e(f"v_mov_b32 v{EA}, 1.0")
        k.e(f"v_mov_b32 v{EA+1}, 0")
        Bops = []
        cur, nx = EA, EB
        Bops.append(lambda cur=cur: store_row(21, cur, cur + 1, False))
        for b in range(1, 32):
            if b == 1:
                Bops.append(lambda: (k.e(f"v_mov_b32 v{EB}, v{W8}"), k.e(f"v_mov_b32 v{EB+1}, v{W8+1}"), store_row(22, EB, EB + 1, False)))
                cur, nx = EB, EA
            else:
                Bops.append(lambda cur=cur, nx=nx, b=b: (cmul2(nx, cur, W8, 76, 77), store_row(21 + b, nx, nx + 1, False)))
                cur, nx = nx, cur
        Aops = []
        Aops.append(lambda: store_row(0, CC, CC + 1, True))
        pa, pb = CC, XA
        seq = [XA, XB_]
        prev = CC
        for j in range(1, 8):
            dst = seq[j & 1]
            Aops.append(lambda dst=dst, prev=prev, j=j: (cmul2(dst, prev, W1, 78, 79), store_row(j, dst, dst + 1, True)))
            prev = dst
        Aops.append(lambda: (cmul2(XA, CC, W256, 78, 79), store_row(8, XA, XA + 1, True)))
        prev = XA
        for j in range(1, 4):
            dst = XB_ if prev == XA else XA
            Aops.append(lambda dst=dst, prev=prev, j=j: (cmul2(dst, prev, W2, 78, 79), store_row(8 + j, dst, dst + 1, True)))
            prev = dst
        Aops.append(lambda: (cmul2(XA, CC, W512, 78, 79), store_row(12, XA, XA + 1, True)))
        Aops.append(lambda: (cmul2(XB_, XA, W4, 78, 79), store_row(13, XB_, XB_ + 1, True)))
        Aops.append(lambda: (cmul2(XA, CC, W768, 78, 79), store_row(14, XA, XA + 1, True)))
        Aops.append(lambda: (cmul2(XB_, XA, W4, 78, 79), store_row(15, XB_, XB_ + 1, True)))
        Aops.append(lambda: (cmul2(XA, CC, W1024, 78, 79), store_row(16, XA, XA + 1, True)))
        Aops.append(lambda: (cmul2(XB_, XA, W256, 78, 79), store_row(17, XB_, XB_ + 1, True)))
        Aops.append(lambda: (cmul2(TT, XA, W512, 78, 79), store_row(18, TT, TT + 1, True)))
        Aops.append(lambda: (cmul2(XB_, XA, W768, 78, 79), store_row(19, XB_, XB_ + 1, True)))
        Aops.append(lambda: (cmul2(TT, XA, W1024, 78, 79), store_row(20, TT, TT + 1, True)))
        ia = 0
        for ib, bo in enumerate(Bops):
            bo()
            if ia < len(Aops) and (ib * len(Aops)) // len(Bops) >= ia:
                Aops[ia](); ia += 1
        while ia < len(Aops):
            Aops[ia](); ia += 1
        k.e("s_waitcnt lgkmcnt(0)")
        if prof: prof.mark()
        FA, FB = 80, 96
        for ks in range(8):
            fa = FA + 4 * (ks & 3); fb = FB + 4 * (ks & 3)
            k.e(f"v_xor_b32 v36, {32*ks}, v{RB}")
            k.e(f"ds_read_b128 {vr(fa,4)}, v36")
            k.e(f"ds_read_b128 {vr(fb,4)}, v36 offset:{21*256}")
            if ks % 4 == 3:
                k.e("s_waitcnt lgkmcnt(0)")
                for q in range(ks - 3, ks + 1):
                    c = "0" if (ps == 0 and q == 0) else vr(D, 16)
                    k.e(f"v_mfma_f32_32x32x16_bf16 {vr(D,16)}, {vr(FA+4*(q&3),4)}, {vr(FB+4*(q&3),4)}, {c}")
    k.e("s_setprio 1")
    if prof: prof.mark()
    k.e(f"""
    v_and_b32 v6, 31, v2
    v_lshrrev_b32 v7, 5, v2
    v_lshlrev_b32 v40, 4, v6
    v_lshl_add_u32 v40, v7, 3, v40
    v_add_u32 v40, s{lb}, v40
    v_lshlrev_b32 v41, 3, v6
    v_add_u32 v41, 512, v41
    v_lshlrev_b32 v42, 2, v6
    v_add_u32 v42, 768, v42
    v_cmp_eq_u32 vcc, 1, v7
    v_mov_b32 v44, 4
    v_mov_b32 v45, 128
    v_cndmask_b32 v41, v41, v42, vcc
    v_cndmask_b32 v44, v44, v45, vcc
    v_add_u32 v41, s{lb}, v41
    v_add_u32 v42, v41, v44
    v_lshlrev_b32 v43, 1, v6
    v_add_u32 v43, 1024, v43
    v_mov_b32 v45, 1400
    v_mov_b32 v46, 1280
    v_cmp_eq_u32 s[56:57], 0, v6
    s_nop 1
    v_cndmask_b32 v45, v45, v46, s[56:57]
    v_cndmask_b32 v43, v43, v45, vcc
    v_add_u32 v43, s{lb}, v43
    """)
    k.nop(8)
    k.e(f"""
    v_lshlrev_b32 v33, 16, v33
    v_cmp_eq_u32 s[56:57], 0, v2
    v_mov_b32 v34, 0
    s_nop 0
    v_cndmask_b32 v33, v34, v33, s[56:57]
    v_add_f32 v{D}, v{D}, v33
    """)
    for j in range(6):
        k.e(f"v_cvt_pk_bf16_f32 v{48+j}, v{D+2*j}, v{D+2*j+1}")
    k.e("""
    ds_write_b16 v40, v48
    ds_write_b16_d16_hi v40, v48 offset:2
    ds_write_b16 v40, v49 offset:4
    ds_write_b16_d16_hi v40, v49 offset:6
    ds_write_b16 v41, v50
    ds_write_b16_d16_hi v41, v50 offset:2
    ds_write_b16 v42, v51
    ds_write_b16_d16_hi v42, v51 offset:2
    ds_write_b16 v43, v52
    ds_write_b16_d16_hi v43, v52 offset:64
    ds_write_b16 v43, v53 offset:128
    ds_write_b16_d16_hi v43, v53 offset:192
    """)
    E = 60
    k.e(f"""
    v_lshlrev_b32 v6, 3, v2
    v_sub_u32 v6, 2047, v6
    v_add_u32 v40, -1, v6
    v_lshl_or_b32 v40, v40, 16, v6
    s_lshr_b32 s58, s{lb}, 1
    v_cmp_gt_u32 s[56:57], 32, v2
    v_mov_b32 v41, 0
    v_mov_b32 v42, 0x00010001
    v_mov_b32 v43, s58
    v_add_u32 v44, 128, v43
    v_cndmask_b32 v41, v41, v42, s[56:57]
    v_cndmask_b32 v43, v43, v44, s[56:57]
    v_lshl_or_b32 v43, v43, 16, v43
    s_add_u32 s59, s58, 384
    s_lshl_b32 s57, s59, 16
    s_or_b32 s59, s59, s57
    s_add_u32 s58, s58, 256
    s_lshl_b32 s57, s58, 16
    s_or_b32 s58, s58, s57
    v_mov_b32 v45, s59
    v_mov_b32 v46, s58
    v_mov_b32 v47, 0x00030003
    v_mov_b32 v48, 0x00020002
    s_waitcnt lgkmcnt(0)
    """)
    k.e("s_setprio 0")
    if prof: prof.mark()
    n = 0
    for i in range(4):
        for d in range(4):
            a_ = 80 + 4 * (n & 3); n += 1
            off = (-(512 * i + 2 * d) * 0x10001) & 0xffffffff
            k.e(f"v_add_u32 v{a_}, {off}, v40")
            if i < 3:
                sh = 3 if i < 2 else 2
                c = (1 << sh >> 1) - 1
                k.e(f"""
                v_lshrrev_b32 v{a_+1}, {sh}, v{a_}
                v_and_b32 v{a_+1}, 0x00010001, v{a_+1}
                v_add_u32 v{a_}, {c * 0x10001}, v{a_}
                v_add_u32 v{a_}, v{a_}, v{a_+1}
                v_pk_lshrrev_b16 v{a_}, v{47 if sh == 3 else 48}, v{a_}
                v_add_u32 v{a_}, v{a_}, v{45 if i < 2 else 46}
                """)
            else:
                k.e(f"""
                v_lshrrev_b32 v{a_+1}, 1, v{a_}
                v_and_b32 v{a_+1}, v41, v{a_+1}
                v_add_u32 v{a_}, v{a_}, v{a_+1}
                v_pk_lshrrev_b16 v{a_}, v41, v{a_}
                v_add_u32 v{a_}, v{a_}, v43
                """)
            k.e(f"""
            v_add_u32 v{a_+1}, v{a_}, v{a_}
            v_and_b32 v{a_+1}, 0x1fffe, v{a_+1}
            v_lshrrev_b32 v{a_}, 15, v{a_}
            v_and_b32 v{a_}, 0x1fffe, v{a_}
            ds_read_u16 v{E+4*i+d}, v{a_+1}
            ds_read_u16_d16_hi v{96+4*i+d}, v{a_}
            """)
            if n % 4 == 0: k.e("s_waitcnt lgkmcnt(4)")
    k.e("s_waitcnt lgkmcnt(0)")
    for jj in range(16):
        k.e(f"v_and_b32 v{96+jj}, 0xffff0000, v{96+jj}")
        k.e(f"v_or_b32 v{E+jj}, v{E+jj}, v{96+jj}")
    k.e("s_nop 1")
    for i in range(4):
        k.e(f"v_mov_b32_dpp v{76+i}, v{E+4*i} wave_shl:1 row_mask:0xf bank_mask:0xf bound_ctrl:0")
    for i in range(3):
        k.e(f"v_readlane_b32 s56, v{E+4*(i+1)}, 0")
        k.e("s_nop 3")
        k.e(f"v_writelane_b32 v{76+i}, s56, 63")
    if prof: prof.mark()
    OO = 96
    for i in range(4):
        for d in range(4):
            nx = E + 4*i + d + 1 if d < 3 else 76 + i
            k.e(f"v_alignbit_b32 v{OO+4*i+d}, v{nx}, v{E+4*i+d}, 16")
    srd(k, S, 54, WS_END)
    k.e(f"""
    s_mul_i32 s40, s{ch}, {KRC}
    s_add_u32 s40, s40, {KR}
    s_add_u32 s41, s40, {KRH}
    v_lshlrev_b32 v7, 4, v2
    v_mov_b32 v8, 0
    v_mov_b32 v9, 0
    v_mov_b32 v10, 0
    v_mov_b32 v11, 0
    """)
    for i in range(4):
        k.e(f"buffer_store_dwordx4 {vr(E+4*i,4)}, v7, s[{S}:{S+3}], s40 offen offset:{1024*i}")
        k.e(f"buffer_store_dwordx4 {vr(OO+4*i,4)}, v7, s[{S}:{S+3}], s41 offen offset:{1024*i}")
    k.e(f"""
    s_add_u32 s40, s40, 4096
    s_add_u32 s41, s41, 4096
    s_mul_i32 s42, s{ch}, {UPC}
    s_add_u32 s42, s42, {UP}
    v_lshrrev_b32 v6, 5, v2
    v_mul_u32_u24 v6, 1536, v6
    v_and_b32 v12, 31, v2
    v_lshl_add_u32 v6, v12, 4, v6
    buffer_store_dwordx4 v[8:11], v6, s[{S}:{S+3}], s42 offen
    buffer_store_dwordx4 v[8:11], v6, s[{S}:{S+3}], s42 offen offset:3072
    s_mov_b64 exec, 0xff
    buffer_store_dwordx4 v[8:11], v7, s[{S}:{S+3}], s40 offen
    buffer_store_dwordx4 v[8:11], v7, s[{S}:{S+3}], s41 offen
    s_mov_b64 exec, -1
    """)

def gen_conv(k, widx_sgpr, PD=4, var=()):
    lane = 2
    W = widx_sgpr
    k.c("---- SSM convolution ----")
    lend = k.newlabel("cend"); l1 = k.newlabel("nt1"); ljob = k.newlabel("job")
    k.e(f"""
    s_load_dwordx2 s[54:55], s[0:1], 96
    s_cmp_ge_u32 s{W}, 864
    s_cbranch_scc1 {lend}
    s_mov_b32 s40, s{W}
    s_mov_b32 s41, 1
    s_mov_b32 s42, 64
    s_mov_b32 s43, 1
    s_cmp_lt_u32 s{W}, 576
    s_cbranch_scc1 {l1}
    s_sub_u32 s40, s{W}, 576
    s_lshl_b32 s40, s40, 1
    s_mov_b32 s41, 0
    s_mov_b32 s42, 32
    s_mov_b32 s43, 2
    """)
    k.label(l1)
    k.e(f"""
    v_and_b32 v3, 31, v{lane}
    v_lshrrev_b32 v4, 5, v{lane}
    v_and_b32 v5, 3, v3
    v_lshlrev_b32 v5, 1, v5
    v_bfe_u32 v6, v3, 2, 1
    v_or_b32 v5, v5, v6
    v_lshrrev_b32 v6, 3, v3
    v_lshl_or_b32 v5, v6, 3, v5
    v_and_b32 v6, 1, v5
    v_xor_b32 v6, 1, v6
    v_sub_u32 v7, 2047, v5
    v_sub_u32 v7, v7, v6
    v_lshl_add_u32 v7, v4, 3, v7
    v_lshlrev_b32 v7, 1, v7
    v_mul_u32_u24 v6, {KRH}, v6
    v_add_u32 v7, v7, v6
    v_add_u32 v8, {KR - 4032}, v7
    v_mul_u32_u24 v6, 1536, v4
    v_lshl_add_u32 v6, v3, 4, v6
    v_add_u32 v9, {UP + 512 - 1008}, v6
    v_lshlrev_b32 v6, 6, v3
    v_lshl_add_u32 v10, v4, 4, v6
    s_waitcnt lgkmcnt(0)
    """)
    srd(k, 60, 54, WS_END)
    k.label(ljob)
    k.e(f"""
    s_mul_i32 s44, s40, {KRC}
    s_mul_i32 s45, s40, {UPC}
    s_lshl_b32 s46, s41, 9
    s_add_u32 s45, s45, s46
    v_add_u32 v11, s44, v8
    v_add_u32 v12, s45, v9
    s_mov_b32 s47, 4032
    s_mov_b32 s48, 1008
    """)
    ACC = 16; FR = 32
    def loads(slot):
        b = FR + 16 * slot
        k.e(f"buffer_load_dwordx4 {vr(b,4)}, v11, s[60:63], s47 offen")
        k.e(f"buffer_load_dwordx4 {vr(b+4,4)}, v12, s[60:63], s48 offen")
        k.e(f"buffer_load_dwordx4 {vr(b+8,4)}, v11, s[60:63], s47 offen offset:32")
        k.e(f"buffer_load_dwordx4 {vr(b+12,4)}, v12, s[60:63], s48 offen offset:3072")
        k.e("s_sub_u32 s47, s47, 64")
        k.e("s_max_i32 s47, s47, 0")
        k.e("s_sub_u32 s48, s48, 16")
        k.e("s_max_i32 s48, s48, 0")
    for i in range(16): k.e(f"v_mov_b32 v{ACC+i}, 0")
    for slot in range(PD): loads(slot)
    k.e("s_mov_b32 s49, 0")
    ll = k.newlabel("cl")
    k.label(ll)
    for slot in range(PD):
        b = FR + 16 * slot
        k.e(f"s_waitcnt vmcnt({4*(PD-1)+2})")
        k.e(f"v_mfma_f32_32x32x16_bf16 {vr(ACC,16)}, {vr(b,4)}, {vr(b+4,4)}, {vr(ACC,16)}")
        k.e(f"s_waitcnt vmcnt({4*(PD-1)})")
        k.e(f"v_mfma_f32_32x32x16_bf16 {vr(ACC,16)}, {vr(b+8,4)}, {vr(b+12,4)}, {vr(ACC,16)}")
        loads(slot)
    k.e(f"""
    s_add_u32 s49, s49, {PD}
    s_cmp_lt_u32 s49, s42
    s_cbranch_scc1 {ll}
    s_mul_i32 s44, s40, 4096
    s_lshl_b32 s46, s41, 11
    s_add_u32 s44, s44, s46
    s_add_u32 s44, s44, {YT}
    s_waitcnt vmcnt(0)
    """)
    k.nop(8)
    for g in range(2):
        for e in range(4):
            k.e(f"v_permlane32_swap_b32 v{ACC+8*g+e}, v{ACC+8*g+4+e}")
    k.e("s_nop 1")
    for g in range(2):
        for e in range(4):
            k.e(f"v_cvt_pk_bf16_f32 v{FR+4*g+e}, v{ACC+8*g+e}, v{ACC+8*g+4+e}")
        k.e(f"buffer_store_dwordx4 {vr(FR+4*g,4)}, v10, s[60:63], s44 offen offset:{32*g}")
    k.e(f"""
    s_add_u32 s40, s40, 1
    s_sub_u32 s43, s43, 1
    s_cmp_lg_u32 s43, 0
    s_nop 1
    s_cbranch_scc1 {ljob}
    """)
    k.label(lend)

FIN_LDS = 2 * 192 * 128
def gen_fin(k, wg="s2", two=True):
    lane = 2; t = 32
    k.c("---- SSM finalisation ----")
    k.e(f"""
    s_load_dwordx2 s[26:27], s[0:1], 80
    s_load_dwordx2 s[28:29], s[0:1], 96
    v_lshrrev_b32 v1, 6, v0
    v_and_b32 v2, 63, v0
    s_mul_i32 s21, {wg}, 21846
    v_readfirstlane_b32 s38, v1
    s_lshr_b32 s21, s21, 16
    s_mul_i32 s22, s21, 3
    s_sub_u32 s22, {wg}, s22
    """)
    k.e(f"""
    s_mul_i32 s24, s22, {192*4096}
    s_lshl_b32 s25, s21, 7
    s_add_u32 s24, s24, s25
    s_mul_i32 s25, s38, {48*4096}
    s_add_u32 s24, s24, s25
    s_add_u32 s24, s24, {YT}
    s_mul_i32 s30, s38, 6144
    v_lshrrev_b32 v{t}, 3, v{lane}
    v_bfe_u32 v{t+1}, v{lane}, 4, 1
    v_lshlrev_b32 v{t+1}, 1, v{t+1}
    v_and_b32 v{t+2}, 7, v{lane}
    v_xor_b32 v{t+2}, v{t+2}, v{t+1}
    v_lshlrev_b32 v{t}, 12, v{t}
    v_lshl_add_u32 v{t+3}, v{t+2}, 4, v{t}
    v_xor_b32 v{t+2}, 4, v{t+2}
    v_lshl_add_u32 v{t+4}, v{t+2}, 4, v{t}
    s_waitcnt lgkmcnt(0)
    """)
    srd(k, 8, 28, WS_END)
    srd(k, 16, 26, OUTB)
    for i in range(6):
        k.e(f"""
        s_add_u32 m0, s30, {i*1024}
        s_add_u32 s31, s24, {i*8*4096}
        buffer_load_dwordx4 v{t+3 if i % 2 == 0 else t+4}, s[8:11], s31 offen lds
        """)
    if two:
        k.e(f"""
        s_mul_i32 s39, s22, {192*2048}
        s_lshl_b32 s25, s21, 7
        s_add_u32 s39, s39, s25
        s_mul_i32 s25, s38, {48*2048}
        s_add_u32 s39, s39, s25
        s_add_u32 s39, s39, {YT2 - 2048}
        s_cmp_ge_u32 s21, 16
        s_cselect_b32 s39, s39, 0x40000000
        v_lshrrev_b32 v{t+9}, 3, v{lane}
        v_lshlrev_b32 v{t+9}, 11, v{t+9}
        v_sub_u32 v{t+10}, v{t+4}, v{t}
        v_sub_u32 v{t+11}, v{t+3}, v{t}
        v_add_u32 v{t+10}, v{t+10}, v{t+9}
        v_add_u32 v{t+11}, v{t+11}, v{t+9}
        """)
        for i in range(6):
            k.e(f"""
            s_add_u32 m0, s30, {24576 + i*1024}
            s_add_u32 s31, s39, {i*8*2048}
            buffer_load_dwordx4 v{t+11 if i % 2 == 0 else t+10}, s[8:11], s31 offen lds
            """)
    k.e(f"""
    v_lshrrev_b32 v{t}, 4, v{lane}
    v_bfe_u32 v{t+1}, v{lane}, 2, 2
    v_lshl_add_u32 v{t+2}, v{t}, 3, v{t+1}
    v_lshlrev_b32 v{t+2}, 7, v{t+2}
    v_bfe_u32 v{t+5}, v{lane}, 1, 1
    s_lshl_b32 s31, s38, 1
    v_add_u32 v{t+5}, s31, v{t+5}
    v_bfe_u32 v{t+6}, v{lane}, 3, 1
    v_lshlrev_b32 v{t+6}, 1, v{t+6}
    v_and_b32 v{t+7}, 1, v{t}
    v_lshl_or_b32 v{t+6}, v{t+7}, 2, v{t+6}
    v_xor_b32 v{t+5}, v{t+5}, v{t+6}
    v_lshl_add_u32 v{t+2}, v{t+5}, 4, v{t+2}
    v_and_b32 v{t+5}, 1, v{lane}
    v_lshl_add_u32 v{t+2}, v{t+5}, 3, v{t+2}
    v_and_b32 v{t+5}, 15, v{lane}
    s_lshl_b32 s31, s21, 6
    s_lshl_b32 s36, s38, 4
    s_add_u32 s31, s31, s36
    v_add_u32 v{t+5}, s31, v{t+5}
    v_mul_u32_u24 v{t+7}, 2304, v{t+5}
    v_lshl_add_u32 v{t+7}, v{t}, 4, v{t+7}
    s_mul_i32 s36, s22, 384
    """)
    k.e("s_waitcnt vmcnt(0)")
    k.e("s_barrier")
    k.e("s_mov_b32 s37, 0xffff0000")
    for oq in range(6):
        Y = 8 + 8 * (oq & 1)
        k.e(f"""
        ds_read_b64_tr_b16 {vr(Y,2)}, v{t+2} offset:{oq*4096}
        ds_read_b64_tr_b16 {vr(Y+2,2)}, v{t+2} offset:{oq*4096 + 512}
        """)
        if not two:
            k.e("s_waitcnt lgkmcnt(0)")
            k.e(f"buffer_store_dwordx4 {vr(Y,4)}, v{t+7}, s[16:19], s36 offen offset:{64*oq}")
            continue
        k.e(f"""
        ds_read_b64_tr_b16 {vr(Y+4,2)}, v{t+2} offset:{24576 + oq*4096}
        ds_read_b64_tr_b16 {vr(Y+6,2)}, v{t+2} offset:{24576 + oq*4096 + 512}
        s_waitcnt lgkmcnt(0)
        """)
        O_ = 24 + 4 * (oq & 1)
        for i in range(4):
            k.e(f"""
            v_lshlrev_b32 v48, 16, v{Y+i}
            v_and_b32 v49, s37, v{Y+i}
            v_lshlrev_b32 v50, 16, v{Y+4+i}
            v_and_b32 v51, s37, v{Y+4+i}
            v_add_f32 v48, v48, v50
            v_add_f32 v49, v49, v51
            v_cvt_pk_bf16_f32 v{O_+i}, v48, v49
            """)
        k.e(f"buffer_store_dwordx4 {vr(O_,4)}, v{t+7}, s[16:19], s36 offen offset:{64*oq}")


def gen_kgen_with_barriers(k, chan_sgpr, ldsbase_sgpr, nbar):
    tmp = K(k.name + "_kg")
    tmp.uid = k.uid + 1000
    gen_kgen(tmp, chan_sgpr, ldsbase_sgpr)
    k.uid = tmp.uid
    lines = tmp.lines
    idx = [i for i, l in enumerate(lines) if l.strip() and not l.strip().startswith(";") and not l.strip().endswith(":")]
    n = len(idx)
    first = next(i for i in idx if "s_waitcnt vmcnt(0)" in lines[i])
    rest = [i for i in idx if i > first]
    pos = [first] + [rest[int(len(rest) * 0.85 * j / (nbar - 1))] for j in range(1, nbar)]
    out = []
    ps = set(pos)
    assert len(ps) == nbar
    for i, l in enumerate(lines):
        out.append(l)
        if i in ps: out.append("    s_barrier")
    k.lines += out


UTW_LDS = 4096
def gen_utrans_wave(k, task_sgpr, lds_sgpr):
    T = task_sgpr; LB = lds_sgpr
    k.c("---- u transposition (per wave) ----")
    k.e(f"""
    s_load_dwordx2 s[4:5], s[0:1], 0
    s_load_dwordx2 s[6:7], s[0:1], 96
    s_mul_i32 s22, s{T}, 1821
    s_lshr_b32 s22, s22, 16
    s_mul_i32 s23, s22, 36
    s_sub_u32 s23, s{T}, s23
    s_mul_i32 s24, s22, {128*1152}
    s_lshl_b32 s25, s23, 5
    s_add_u32 s24, s24, s25
    v_lshrrev_b32 v3, 1, v2
    v_mul_u32_u24 v3, 1152, v3
    v_and_b32 v4, 1, v2
    v_lshl_add_u32 v3, v4, 4, v3
    s_waitcnt lgkmcnt(0)
    """)
    srd(k, 8, 4, UB)
    srd(k, 12, 6, WS_END)
    for i in range(4):
        k.e(f"""
        s_add_u32 m0, s{LB}, {i*1024}
        s_add_u32 s26, s24, {i*32*1152}
        buffer_load_dwordx4 v3, s[8:11], s26 offen lds
        """)
    k.e(f"""
    v_mov_b32 v8, 0
    v_mov_b32 v9, 0
    v_mov_b32 v10, 0
    v_mov_b32 v11, 0
    v_and_b32 v5, 15, v2
    v_mul_u32_u24 v5, {UPC}, v5
    v_lshrrev_b32 v6, 4, v2
    v_mul_u32_u24 v7, 1536, v6
    v_add_u32 v7, v7, v5
    s_mul_i32 s27, s23, {16*UPC}
    s_add_u32 s27, s27, {UP}
    s_lshl_b32 s28, s22, 5
    s_add_u32 s28, s28, s27
    buffer_store_dwordx4 v[8:11], v7, s[12:15], s28 offen
    buffer_store_dwordx4 v[8:11], v7, s[12:15], s28 offen offset:16
    v_lshl_add_u32 v5, v6, 4, v5
    s_lshl_b32 s28, s22, 6
    s_add_u32 s28, s28, s27
    s_add_u32 s28, s28, 512
    v_bfe_u32 v12, v2, 2, 2
    v_lshl_add_u32 v12, v6, 5, v12
    v_lshlrev_b32 v12, 5, v12
    v_and_b32 v13, 3, v2
    v_lshl_add_u32 v12, v13, 3, v12
    v_add_u32 v12, s{LB}, v12
    s_waitcnt vmcnt(2)
    """)
    for p in range(4):
        b = 16 + 4 * p
        k.e(f"ds_read_b64_tr_b16 {vr(b,2)}, v12 offset:{p*8*32}")
        k.e(f"ds_read_b64_tr_b16 {vr(b+2,2)}, v12 offset:{p*8*32 + 4*32}")
    for p in range(4):
        b = 16 + 4 * p
        k.e(f"s_waitcnt lgkmcnt({6 - 2*p})")
        k.e(f"buffer_store_dwordx4 {vr(b,4)}, v5, s[12:15], s28 offen offset:{p*1536 if p*1536 < 4096 else 0}" if p < 3 else f"s_add_u32 s28, s28, 4608\nbuffer_store_dwordx4 {vr(b,4)}, v5, s[12:15], s28 offen")


UTA_LDS = 64 * 288
def gen_utrans_aux(k, tb64_sgpr, db_sgpr, lds_sgpr, after_loads=None):
    TB = tb64_sgpr; DB = db_sgpr; LB = lds_sgpr
    k.c("---- u transposition (aux wave) ----")
    k.e(f"""
    s_load_dwordx2 s[4:5], s[0:1], 0
    s_load_dwordx2 s[6:7], s[0:1], 96
    s_mul_i32 s24, s{TB}, {64*1152}
    s_mul_i32 s25, s{DB}, 288
    s_add_u32 s24, s24, s25
    s_mov_b32 s30, 3641
    s_waitcnt lgkmcnt(0)
    """)
    srd(k, 8, 4, UB)
    srd(k, 12, 6, WS_END)
    for i in range(18):
        k.e(f"""
        v_add_u32 v4, {64*i}, v2
        v_mul_lo_u32 v5, v4, s30
        v_lshrrev_b32 v5, 16, v5
        v_mul_u32_u24 v6, 18, v5
        v_sub_u32 v6, v4, v6
        v_mul_u32_u24 v5, 1152, v5
        v_lshl_add_u32 v5, v6, 4, v5
        s_add_u32 m0, s{LB}, {i*1024}
        s_nop 0
        buffer_load_dwordx4 v5, s[8:11], s24 offen lds
        """)
    if after_loads: after_loads()
    k.e(f"""
    v_and_b32 v4, 15, v2
    v_mul_u32_u24 v4, {UPC}, v4
    v_lshrrev_b32 v5, 4, v2
    s_mul_i32 s27, s{DB}, {144*UPC}
    s_add_u32 s27, s27, {UP}
    """)
    k.e(f"""
    v_and_b32 v7, 1, v5
    v_lshrrev_b32 v12, 1, v5
    v_lshlrev_b32 v13, 5, v7
    v_lshl_add_u32 v13, v12, 3, v13
    v_bfe_u32 v14, v2, 2, 2
    v_add_u32 v13, v13, v14
    v_mul_u32_u24 v13, 288, v13
    v_and_b32 v14, 3, v2
    v_lshl_add_u32 v13, v14, 3, v13
    v_add_u32 v13, s{LB}, v13
    v_mul_u32_u24 v12, 1536, v12
    v_lshl_add_u32 v12, v7, 4, v12
    v_add_u32 v12, v12, v4
    s_lshl_b32 s28, s{TB}, 5
    s_add_u32 s28, s28, s27
    s_add_u32 s28, s28, 512
    s_waitcnt vmcnt(0)
    """)
    for dg in range(9):
        for pp in range(2):
            b = 16 + 4 * ((2 * dg + pp) & 3)
            k.e(f"ds_read_b64_tr_b16 {vr(b,2)}, v13 offset:{32*dg + pp*16*288}")
            k.e(f"ds_read_b64_tr_b16 {vr(b+2,2)}, v13 offset:{32*dg + pp*16*288 + 4*288}")
            k.e("s_waitcnt lgkmcnt(0)")
            k.e(f"buffer_store_dwordx4 {vr(b,4)}, v12, s[12:15], s28 offen offset:{pp*3072}")
        k.e(f"s_add_u32 s28, s28, {16*UPC}")


def gen_fin2(k, f_sgpr):
    lane = 2; t = 32
    F = f_sgpr
    k.c("---- SSM output transposition ----")
    lg8 = k.newlabel("g8"); ld = k.newlabel("gd")
    k.e(f"""
    s_load_dwordx2 s[26:27], s[0:1], 80
    s_load_dwordx2 s[28:29], s[0:1], 96
    v_lshrrev_b32 v1, 6, v0
    v_and_b32 v2, 63, v0
    s_and_b32 s22, s{F}, 7
    v_readfirstlane_b32 s38, v1
    s_lshr_b32 s21, s{F}, 3
    s_cmp_lt_u32 s{F}, 64
    s_cbranch_scc1 {ld}
    s_mov_b32 s22, 8
    s_sub_u32 s21, s{F}, 64
    """)
    k.label(ld)
    k.e(f"""
    s_mul_i32 s24, s22, {64*4096}
    s_lshl_b32 s25, s21, 9
    s_add_u32 s24, s24, s25
    s_mul_i32 s25, s38, {8*4096}
    s_add_u32 s24, s24, s25
    s_add_u32 s24, s24, {YT}
    s_mul_i32 s39, s22, {64*2048}
    s_lshl_b32 s25, s21, 9
    s_add_u32 s39, s39, s25
    s_mul_i32 s25, s38, {8*2048}
    s_add_u32 s39, s39, s25
    s_add_u32 s39, s39, {YT2 - 2048}
    s_cmp_ge_u32 s21, 4
    s_cselect_b32 s39, s39, 0x40000000
    s_lshl_b32 s30, s38, 12
    s_and_b32 s31, s38, 1
    s_lshl_b32 s31, s31, 3
    v_lshrrev_b32 v{t}, 5, v{lane}
    v_and_b32 v{t+1}, 31, v{lane}
    v_lshlrev_b32 v{t+2}, 1, v{t}
    v_add_u32 v{t+2}, s31, v{t+2}
    v_xor_b32 v{t+3}, v{t+1}, v{t+2}
    v_xor_b32 v{t+4}, 4, v{t+3}
    v_lshlrev_b32 v{t+3}, 4, v{t+3}
    v_lshlrev_b32 v{t+4}, 4, v{t+4}
    v_lshlrev_b32 v{t+5}, 12, v{t}
    v_lshlrev_b32 v{t+6}, 11, v{t}
    v_add_u32 v{t+7}, v{t+3}, v{t+5}
    v_add_u32 v{t+8}, v{t+4}, v{t+5}
    v_add_u32 v{t+9}, v{t+3}, v{t+6}
    v_add_u32 v{t+10}, v{t+4}, v{t+6}
    s_waitcnt lgkmcnt(0)
    """)
    srd(k, 8, 28, WS_END)
    srd(k, 16, 26, OUTB)
    for i in range(4):
        k.e(f"""
        s_add_u32 m0, s30, {i*1024}
        s_add_u32 s31, s24, {i*2*4096}
        buffer_load_dwordx4 v{t+7 if i % 2 == 0 else t+8}, s[8:11], s31 offen lds
        """)
    for i in range(4):
        k.e(f"""
        s_add_u32 m0, s30, {32768 + i*1024}
        s_add_u32 s31, s39, {i*2*2048}
        buffer_load_dwordx4 v{t+9 if i % 2 == 0 else t+10}, s[8:11], s31 offen lds
        """)
    k.e(f"""
    v_lshrrev_b32 v{t}, 4, v{lane}
    v_bfe_u32 v{t+1}, v{lane}, 2, 2
    v_lshl_add_u32 v{t+2}, v{t}, 3, v{t+1}
    v_lshlrev_b32 v{t+2}, 9, v{t+2}
    v_and_b32 v{t+3}, 1, v{t}
    v_lshlrev_b32 v{t+3}, 3, v{t+3}
    v_lshl_add_u32 v{t+3}, v{t+1}, 1, v{t+3}
    v_bfe_u32 v{t+4}, v{lane}, 1, 1
    s_lshl_b32 s31, s38, 2
    v_add_u32 v{t+4}, s31, v{t+4}
    v_xor_b32 v{t+5}, v{t+4}, v{t+3}
    v_add_u32 v{t+4}, 2, v{t+4}
    v_xor_b32 v{t+6}, v{t+4}, v{t+3}
    v_and_b32 v{t+4}, 1, v{lane}
    v_lshl_add_u32 v{t+2}, v{t+4}, 3, v{t+2}
    v_lshl_add_u32 v{t+5}, v{t+5}, 4, v{t+2}
    v_lshl_add_u32 v{t+6}, v{t+6}, 4, v{t+2}
    v_and_b32 v{t+4}, 15, v{lane}
    s_lshl_b32 s31, s21, 8
    s_lshl_b32 s36, s38, 5
    s_add_u32 s31, s31, s36
    v_add_u32 v{t+4}, s31, v{t+4}
    v_mul_u32_u24 v{t+4}, 2304, v{t+4}
    v_lshl_add_u32 v{t+4}, v{t}, 4, v{t+4}
    s_lshl_b32 s36, s22, 7
    s_mov_b32 s37, 0xffff0000
    s_waitcnt vmcnt(0)
    s_barrier
    """)
    n = 0
    for tgi in range(2):
        for oh in range(2):
            a = t + 5 + tgi
            Y = 8 + 8 * (n & 1); O_ = 24 + 4 * (n & 1); n += 1
            base = oh * 32 * 512
            k.e(f"""
            ds_read_b64_tr_b16 {vr(Y,2)}, v{a} offset:{base}
            ds_read_b64_tr_b16 {vr(Y+2,2)}, v{a} offset:{base + 4*512}
            ds_read_b64_tr_b16 {vr(Y+4,2)}, v{a} offset:{32768 + base}
            ds_read_b64_tr_b16 {vr(Y+6,2)}, v{a} offset:{32768 + base + 4*512}
            s_waitcnt lgkmcnt(0)
            """)
            for i in range(4):
                k.e(f"""
                v_lshlrev_b32 v48, 16, v{Y+i}
                v_and_b32 v49, s37, v{Y+i}
                v_lshlrev_b32 v50, 16, v{Y+4+i}
                v_and_b32 v51, s37, v{Y+4+i}
                v_add_f32 v48, v48, v50
                v_add_f32 v49, v49, v51
                v_cvt_pk_bf16_f32 v{O_+i}, v48, v49
                """)
            so = tgi * 16 * 2304
            k.e(f"s_add_u32 s31, s36, {so}")
            k.e(f"buffer_store_dwordx4 {vr(O_,4)}, v{t+4}, s[16:19], s31 offen offset:{64*oh}")
```

```python
import sys
from g import *
from build import assemble
import k_qkv, k_attn, k_oproj
STAMPS = "stamps" in sys.argv
PROFON = "prof" in sys.argv
var = [a[2:] for a in sys.argv if a.startswith('v=')]
if 'base' not in var: var += ['rebal', 'b2s', 'odma']
kernels = []; launches = []
def make(name, idx, nwg, block, lds, nv, body):
    k = K(name)
    if STAMPS: stamp_id(k, 8); stamp_begin(k)
    k.e(f"s_cmp_ge_u32 s2, {nwg}")
    k.e(f"s_cbranch_scc1 L_{name}_exit")
    PR = Prof(k, PROFON, idx)
    if PR.on:
        stamp_id(k, 8)
        k.e("s_memtime s[56:57]\ns_waitcnt lgkmcnt(0)\ns_mov_b32 s83, s56\ns_memrealtime s[56:57]\ns_waitcnt lgkmcnt(0)\ns_mov_b32 s55, s56")
    body(k, PR if PR.on else None)
    if PR.on:
        PR.mark(); k.e("s_mov_b32 s82, s83"); PR.n = 23; PR.dump()
    if STAMPS: stamp_end(k, idx)
    k.label(f"L_{name}_exit")
    k.e("s_endpgm")
    kernels.append((k, nv, 96)); launches.append((name, nwg, block, lds))

import k_ssm
K1_LDS = max(k_qkv.GEMM_LDS, 9 * k_ssm.KG_LDS_WAVE + 2 * k_ssm.UTA_LDS)
def k1_body(k, p):
    lut = k.newlabel("ut"); lkg = k.newlabel("kg"); lend = k.newlabel("k1end")
    k.e("""
    v_lshrrev_b32 v1, 6, v0
    v_and_b32 v2, 63, v0
    s_nop 0
    v_readfirstlane_b32 s49, v1
    s_cmp_ge_u32 s2, 192
    """)
    k.e(f"s_cbranch_scc1 {lkg}")
    lpf = k.newlabel("pf")
    k.e("s_cmp_ge_u32 s49, 8")
    k.e(f"s_cbranch_scc1 {lpf}")
    k_qkv.gen_qkv(k, p)
    k.e(f"s_branch {lend}")
    k.label(lpf)
    if "ipf" in var:
        lhere = k.newlabel("pc"); lsk = k.newlabel("ipfskip")
        k.e(f"""
        s_cmp_ge_u32 s2, 8
        s_cbranch_scc1 {lsk}
        s_getpc_b64 s[4:5]
        """)
        k.label(lhere)
        k.e(f"""
        s_add_u32 s4, s4, k1_kernel - {lhere}
        s_addc_u32 s5, s5, -1
        s_sub_u32 s6, s49, 8
        s_mul_i32 s6, s6, 24576
        s_mov_b32 s7, L_text_end - k1_kernel - 4
        """)
        for j in range(3):
            k.e(f"""
            v_lshlrev_b32 v4, 7, v2
            v_add_u32 v4, s6, v4
            v_min_u32 v4, s7, v4
            v_mov_b32 v5, s5
            v_add_co_u32 v4, vcc, s4, v4
            s_nop 1
            v_addc_co_u32 v5, vcc, 0, v5, vcc
            global_load_dword v{8+j}, v[4:5], off
            s_add_u32 s6, s6, 8192
            """)
        for _ in range(10): k.e("s_barrier")
        k.label(lsk)
    if "nopf" not in var:
        k_qkv.gen_prefetch(k, 49, k_qkv.GEMM_LDS, first_after=(0 if "pf0" in var else 1), burst=("pfb" in var))
    k.e(f"s_branch L_{k.name}_exit")
    k.label(lkg)
    k.e("s_cmp_ge_u32 s49, 9")
    k.e(f"s_cbranch_scc1 {lut}")
    k.e(f"""
    s_sub_u32 s20, s2, 192
    s_mul_i32 s20, s20, 9
    s_add_u32 s20, s20, s49
    s_mul_i32 s21, s49, {k_ssm.KG_LDS_WAVE}
    """)
    if p: p.n = 0
    k_ssm.gen_kgen(k, 20, 21, p)
    k.e(f"s_branch {lend}")
    k.label(lut)
    k.e(f"""
    s_sub_u32 s40, s2, 192
    s_and_b32 s41, s40, 3
    s_lshr_b32 s40, s40, 2
    s_lshl_b32 s40, s40, 1
    s_sub_u32 s42, s49, 9
    s_add_u32 s40, s40, s42
    s_mul_i32 s42, s42, {k_ssm.UTA_LDS}
    s_add_u32 s42, s42, {9 * k_ssm.KG_LDS_WAVE}
    """)
    k_ssm.gen_utrans_aux(k, 40, 41, 42)
    k.label(lend)
FIN2 = "oldfin" not in var
def k3_body(k, p):
    lf = k.newlabel("fin"); lend = k.newlabel("k3end")
    k.e("s_cmp_ge_u32 s2, 144")
    k.e(f"s_cbranch_scc1 {lf}")
    k_oproj.gen_oproj(k, p)
    k.e(f"s_branch {lend}")
    k.label(lf)
    if FIN2:
        k.e("s_sub_u32 s50, s2, 144")
        k_ssm.gen_fin2(k, 50)
    else:
        k.e("""
        v_lshrrev_b32 v1, 6, v0
        s_nop 0
        v_readfirstlane_b32 s49, v1
        s_nop 3
        s_cmp_ge_u32 s49, 4
        """)
        k.e(f"s_cbranch_scc1 L_{k.name}_exit")
        k.e("s_sub_u32 s50, s2, 144")
        k_ssm.gen_fin(k, wg="s50", two=("sepconv" not in var))
    k.label(lend)
make("k1_kernel", 0, 256, 704, K1_LDS, 128, k1_body)
if "old2" in var:
    make("k2_kernel", 1, 256, 768, k_attn.ATT_LDS, k_attn.NV_K2, lambda k, p: k_attn.gen_k2(k, p, var=var))
else:
    import k_attn2
    make("k2_kernel", 1, 256, 512, k_attn2.ATT_LDS, k_attn2.NV_K2, lambda k, p: k_attn2.gen_k2(k, p, var=var))
make("k3_kernel", 2, 216 if FIN2 else 240, 512, k_oproj.OP_LDS, 100, k3_body)
import re
def add_flag(kern, flag, pred=lambda l: True):
    out = []
    for l in kern.lines:
        if "buffer_store" in l and pred(l): l = l.rstrip() + " " + flag
        out.append(l)
    kern.lines = out
def add_flag_after(kern, marker, flag):
    out = []; on = False
    for l in kern.lines:
        if marker in l: on = True
        if on and "buffer_store" in l: l = l.rstrip() + " " + flag
        out.append(l)
    kern.lines = out
for x in var:
    if x.startswith("ssm"): add_flag_after(kernels[0][0], "SSM kernel generation", x[3:].replace("_", " "))
    if x.startswith("st1"): add_flag(kernels[0][0], x[3:].replace("_", " "))
    if x.startswith("st2"): add_flag(kernels[1][0], x[3:].replace("_", " "))
    if x.startswith("st3"): add_flag(kernels[2][0], x[3:].replace("_", " "))
txt, nerr = assemble(kernels, launches)
open(sys.argv[1] if len(sys.argv) > 1 else "out.s", "w").write(txt)
print("lint errors:", nerr)
```

```python
from g import *
from sb import SB
from layout import *
import struct

def f2u(x): return struct.unpack("<I", struct.pack("<f", x))[0]

def srd(k, dst, ptr, size):
    k.e(f"s_mov_b32 s{dst}, s{ptr}")
    k.e(f"s_and_b32 s{dst+1}, s{ptr+1}, 0xffff")
    k.e(f"s_mov_b32 s{dst+2}, {size}")
    k.e(f"s_mov_b32 s{dst+3}, 0x00020000")

NST = 3
XST = 16384
WBASE = NST * XST
WST = 24576
GEMM_LDS = WBASE + NST * WST

ACC = 16
XF = [64, 68]
WF = [72, 84]
vXd = 4
vXd2 = 5
vWp = [6, 7, 8]
vXr = [9, 10, 11, 12]
vWr01 = [13, 14, 15]
vWr2 = [96, 97, 98]
T0 = 100
NV = 116

def gen_qkv(k, prof=None):
    k.c("---- QKV GEMM ----")
    lane = 2
    t = T0
    k.e("""
    s_load_dwordx4 s[4:7], s[0:1], 56
    s_load_dwordx2 s[28:29], s[0:1], 96
    v_lshrrev_b32 v1, 6, v0
    v_and_b32 v2, 63, v0
    s_and_b32 s30, s2, 7
    v_readfirstlane_b32 s49, v1
    s_lshr_b32 s31, s2, 3
    """)
    k.e("""
    s_lshr_b32 s21, s30, 1
    s_lshl_b32 s21, s21, 2
    s_and_b32 s32, s31, 3
    s_add_u32 s21, s21, s32
    s_and_b32 s32, s30, 1
    s_mul_i32 s32, s32, 6
    s_lshr_b32 s33, s31, 2
    s_add_u32 s32, s32, s33
    s_lshr_b32 s22, s32, 2
    s_and_b32 s23, s32, 3
    s_and_b32 s20, s49, 3
    s_lshr_b32 s43, s49, 2
    """)
    k.e(f"""
    s_lshl_b32 s24, s21, 7
    s_lshl_b32 s33, s20, 5
    s_add_u32 s24, s24, s33
    s_lshl_b32 s33, s43, 4
    s_add_u32 s24, s24, s33
    s_mul_i32 s24, s24, 1152
    s_mul_i32 s25, s22, 1152
    s_mul_i32 s33, s23, 288
    s_add_u32 s25, s25, s33
    s_mul_i32 s33, s49, {8*3456}
    s_add_u32 s25, s25, s33
    s_lshl_b32 s26, s20, 12
    s_lshl_b32 s33, s43, 11
    s_add_u32 s48, s26, s33
    s_mul_i32 s27, s49, 3072
    s_add_u32 s27, s27, {WBASE}
    """)
    k.e(f"""
    v_lshrrev_b32 v{t}, 3, v{lane}
    v_mul_u32_u24 v{t}, 1152, v{t}
    v_and_b32 v{t+1}, 7, v{lane}
    v_lshrrev_b32 v{t+2}, 4, v{lane}
    v_xor_b32 v{t+3}, v{t+1}, v{t+2}
    v_lshl_add_u32 v{vXd}, v{t+3}, 4, v{t}
    v_xor_b32 v{t+3}, 4, v{t+3}
    v_lshl_add_u32 v{vXd2}, v{t+3}, 4, v{t}
    """)
    for pat in range(3):
        k.e(f"""
        v_add_u32 v{t}, {64*pat}, v{lane}
        v_mul_u32_u24 v{t+1}, 2731, v{t}
        v_lshrrev_b32 v{t+1}, 16, v{t+1}
        v_mul_u32_u24 v{t+2}, 24, v{t+1}
        v_sub_u32 v{t+2}, v{t}, v{t+2}
        v_bfe_u32 v{t+3}, v{t+1}, 1, 1
        v_lshlrev_b32 v{t+4}, 2, v{t+3}
        v_xor_b32 v{t+4}, v{t+2}, v{t+4}
        v_lshrrev_b32 v{t+5}, 1, v{t+4}
        v_mul_u32_u24 v{t+5}, 36, v{t+5}
        v_and_b32 v{t+4}, 1, v{t+4}
        v_lshl_add_u32 v{t+5}, v{t+4}, 4, v{t+5}
        v_subrev_u32 v{t+6}, 16, v{t+2}
        v_mul_u32_u24 v{t+6}, 36, v{t+6}
        v_add_u32 v{t+6}, 32, v{t+6}
        v_lshlrev_b32 v{t+3}, 3, v{t+3}
        v_sub_u32 v{t+6}, v{t+6}, v{t+3}
        v_cmp_gt_u32 vcc, 16, v{t+2}
        v_mul_u32_u24 v{t+1}, 3456, v{t+1}
        s_nop 0
        v_cndmask_b32 v{t+5}, v{t+6}, v{t+5}, vcc
        v_add_u32 v{vWp[pat]}, v{t+1}, v{t+5}
        """)
    k.e("s_waitcnt lgkmcnt(0)")
    srd(k, 8, 4, XB)
    srd(k, 12, 6, WB)
    srd(k, 16, 28, WS_END)

    vm = SB(k, "vmcnt", 63)
    def dma_list(c):
        st = c % NST
        out = []
        for jj in range(2):
            out.append((f"""s_add_u32 m0, s48, {st*XST + jj*1024}
            s_add_u32 s28, s24, {jj*9216 + c*128}
            buffer_load_dwordx4 v{vXd if jj == 0 else vXd2}, s[8:11], s28 offen lds""", ("D", c)))
        for ii in range(3):
            out.append((f"""s_add_u32 m0, s27, {st*WST + ii*1024}
            s_add_u32 s28, s25, {c*64*3456}
            buffer_load_dwordx4 v{vWp[ii]}, s[12:15], s28 offen lds""", ("D", c)))
        return out
    def emit_dma(d):
        k.e(d[0]); vm.issue(d[1])
    for d in dma_list(0): emit_dma(d)
    k.e("s_barrier")
    for c0 in range(1, NST - 1):
        for d in dma_list(c0): emit_dma(d)
    k.e(f"""
    v_and_b32 v{t}, 31, v{lane}
    v_lshrrev_b32 v{t+1}, 5, v{lane}
    v_bfe_u32 v{t+2}, v{t}, 1, 3
    v_lshlrev_b32 v{t}, 7, v{t}
    v_add_u32 v{t}, s26, v{t}
    """)
    for sx in range(4):
        k.e(f"""
        v_add_u32 v{t+3}, {2*sx}, v{t+1}
        v_xor_b32 v{t+3}, v{t+3}, v{t+2}
        v_lshl_add_u32 v{vXr[sx]}, v{t+3}, 4, v{t}
        """)
    k.e(f"""
    v_bfe_u32 v{t}, v{lane}, 2, 2
    v_lshrrev_b32 v{t+1}, 5, v{lane}
    v_lshl_add_u32 v{t}, v{t+1}, 3, v{t}
    v_mul_u32_u24 v{t}, 384, v{t}
    v_add_u32 v{t}, {WBASE}, v{t}
    v_bfe_u32 v{t+1}, v{lane}, 4, 1
    v_and_b32 v{t+2}, 3, v{lane}
    v_bfe_u32 v{t+3}, v{lane}, 3, 1
    v_and_b32 v{t+4}, 1, v{t+2}
    v_lshl_add_u32 v{t+4}, v{t+1}, 1, v{t+4}
    v_lshlrev_b32 v{t+4}, 4, v{t+4}
    v_lshrrev_b32 v{t+5}, 1, v{t+2}
    v_lshl_add_u32 v{t+4}, v{t+5}, 3, v{t+4}
    v_add_u32 v{t+4}, v{t}, v{t+4}
    v_lshl_add_u32 v{t+6}, v{t+3}, 6, v{t+4}
    v_xor_b32 v{t+5}, 1, v{t+3}
    v_lshl_add_u32 v{t+7}, v{t+5}, 6, v{t+4}
    v_lshl_add_u32 v{t+4}, v{t+1}, 2, v{t+2}
    v_add_u32 v{t+4}, 16, v{t+4}
    v_lshl_add_u32 v{t+4}, v{t+4}, 4, v{t}
    v_lshl_add_u32 v{t+10}, v{t+3}, 3, v{t+4}
    """)
    EV, OD, LF = t+6, t+7, t+10

    def reads(c, sx, buf, nt):
        st = c % NST
        wr = vWr2 if st >= 2 else vWr01
        wo = (st & 1) * WST + sx * 6144
        r = [(f"ds_read_b128 {vr(XF[buf],4)}, v{vXr[sx]} offset:{st*XST}", ("X", c, sx))]
        for j in range(nt):
            for z in range(2):
                r.append((f"ds_read_b64_tr_b16 {vr(WF[buf]+4*j+2*z,2)}, v{wr[j]} offset:{wo + z*1536}", ("W", c, sx, j, z)))
        return r

    def mainloop(isV, nt):
        lg = SB(k, "lgkmcnt", 15)
        first = [True] * nt
        def mfma(c, sx, buf, j):
            lg.wait_for([("X", c, sx), ("W", c, sx, j, 0), ("W", c, sx, j, 1)])
            a, b = vr(WF[buf] + 4*j, 4), vr(XF[buf], 4)
            if isV: a, b = b, a
            d = vr(ACC + 16*j, 16)
            k.e(f"v_mfma_f32_32x32x16_bf16 {d}, {a}, {b}, {'0' if first[j] else d}")
            first[j] = False
        vmq = list(vm.q)
        for c in range(9):
            vm.wait_for([("D", c)])
            lg.wait_all()
            k.e("s_barrier")
            if prof: prof.mark()
            dm = dma_list(c + NST - 1) if c + NST - 1 < 9 else []
            rd = reads(c, 0, 0, nt)
            for (txt, tag) in rd:
                k.e(txt); lg.issue(tag)
            if c > 0:
                for j in range(nt):
                    mfma(c - 1, 3, 1, j)
                    if dm: emit_dma(dm.pop(0))
            for sx in range(3 if c < 8 else 4):
                buf = sx & 1
                nxt = reads(c, sx + 1, buf ^ 1, nt) if sx < 3 else []
                for j in range(nt):
                    mfma(c, sx, buf, j)
                    n = len(nxt) if j == nt - 1 else 3
                    for (txt, tag) in nxt[:n]:
                        k.e(txt); lg.issue(tag)
                    nxt = nxt[n:]
                    if dm and j == 0: emit_dma(dm.pop(0))
            while dm: emit_dma(dm.pop(0))
        vm.q = vmq

    def epi_qk(tiles):
        k.c("Q/K epilogue")
        k.e(f"""
        s_lshl_b32 s30, s21, 2
        s_add_u32 s30, s30, s20
        s_lshr_b32 s31, s30, 3
        s_and_b32 s32, s30, 7
        s_cmp_eq_u32 s22, 0
        s_cselect_b32 s33, {f2u(QSCALE)}, 1.0
        s_mov_b32 s34, {HB}
        s_cselect_b32 s35, 8192, s34
        s_cselect_b32 s34, 65536, s34
        s_mul_i32 s36, s31, {CH}
        s_lshl_b32 s37, s32, 10
        s_add_u32 s37, s37, s36
        s_lshr_b32 s38, s32, 2
        s_lshl_b32 s38, s38, 9
        s_and_b32 s39, s32, 3
        s_lshl_b32 s39, s39, 2
        s_add_u32 s38, s38, s39
        s_add_u32 s38, s38, s36
        s_add_u32 s38, s38, 8192
        s_lshl_b32 s39, s30, 10
        s_add_u32 s39, s39, {QM}
        s_lshl_b32 s40, s30, 7
        s_add_u32 s40, s40, {Q2}
        s_cmp_eq_u32 s22, 0
        s_cselect_b32 s37, s39, s37
        s_cselect_b32 s38, s40, s38
        s_lshl_b32 s41, s23, 3
        s_mul_i32 s42, s41, s35
        s_add_u32 s38, s38, s42
        s_add_u32 s41, s41, {2*tiles[0]}
        s_mul_i32 s42, s41, s34
        s_add_u32 s37, s37, s42
        v_lshlrev_b32 v{T0}, 4, v{lane}
        v_and_b32 v{T0+1}, 31, v{lane}
        s_cmp_eq_u32 s22, 0
        s_cselect_b32 s39, 2, 4
        v_lshlrev_b32 v{T0+1}, s39, v{T0+1}
        v_lshrrev_b32 v{T0+2}, 5, v{lane}
        v_mul_lo_u32 v{T0+2}, v{T0+2}, s35
        v_add_u32 v{T0+1}, v{T0+1}, v{T0+2}
        """)
        tmp = 64
        for slot, j in enumerate(tiles):
            if j < 4:
                for hh in range(2):
                    base = ACC + 16*slot + 8*hh
                    tr = tmp + (8 if hh else 0)
                    for i in range(8):
                        k.e(f"v_mul_f32 v{base+i}, s33, v{base+i}")
                    for i in range(4):
                        k.e(f"v_cvt_pk_bf16_f32 v{tr+i}, v{base+2*i}, v{base+2*i+1}")
                    k.e(f"buffer_store_dwordx4 {vr(tr,4)}, v{T0}, s[16:19], s37 offen")
                    k.e("s_add_u32 s37, s37, s34")
            else:
                base = ACC + 16*slot
                for q in range(4):
                    k.e(f"v_mul_f32 v{base+4*q}, s33, v{base+4*q}")
                    k.e(f"v_mul_f32 v{base+4*q+1}, s33, v{base+4*q+1}")
                    k.e(f"v_cvt_pk_bf16_f32 v{80+q}, v{base+4*q}, v{base+4*q+1}")
                    k.e(f"buffer_store_dword v{80+q}, v{T0+1}, s[16:19], s38 offen")
                    k.e("s_add_u32 s38, s38, s35")
                    k.e("s_add_u32 s38, s38, s35")

    def epi_v(tiles):
        k.c("V epilogue")
        k.e(f"""
        s_lshl_b32 s30, s21, 2
        s_add_u32 s30, s30, s20
        s_lshr_b32 s31, s30, 3
        s_and_b32 s32, s30, 7
        s_mul_i32 s36, s31, {CH}
        s_mul_i32 s37, s32, {2*VKS}
        s_add_u32 s37, s37, s36
        s_add_u32 s37, s37, 9216
        s_lshl_b32 s41, s23, 3
        s_mul_i32 s42, s41, {HB}
        s_add_u32 s38, s37, s42
        s_add_u32 s37, s38, {2*tiles[0]*HB}
        s_mov_b32 s34, {HB}
        v_bfe_u32 v{T0}, v{lane}, 4, 1
        v_bfe_u32 v{T0+1}, v{lane}, 2, 1
        v_bfe_u32 v{T0+2}, v{lane}, 3, 1
        v_and_b32 v{T0+3}, 3, v{lane}
        v_lshrrev_b32 v{T0+4}, 5, v{lane}
        v_mul_u32_u24 v{T0+4}, {VH}, v{T0+4}
        v_lshl_add_u32 v{T0+5}, v{T0+1}, 3, v{T0+3}
        v_lshl_add_u32 v{T0+5}, v{T0+2}, 2, v{T0+5}
        v_lshl_add_u32 v{T0+5}, v{T0+5}, 4, v{T0+4}
        v_mul_lo_u32 v{T0+6}, v{T0}, s34
        v_add_u32 v{T0+5}, v{T0+5}, v{T0+6}
        v_bfe_u32 v{T0+7}, v{lane}, 2, 2
        v_lshl_add_u32 v{T0+7}, v{T0}, 2, v{T0+7}
        v_mul_lo_u32 v{T0+7}, v{T0+7}, s34
        v_add_u32 v{T0+8}, 16, v{T0+3}
        v_lshl_add_u32 v{T0+8}, v{T0+8}, 4, v{T0+4}
        v_add_u32 v{T0+7}, v{T0+7}, v{T0+8}
        """)
        tmp = 64
        for slot, j in enumerate(tiles):
            if j < 4:
                for kl in range(2):
                    base = ACC + 16*slot + 8*kl
                    tr = tmp + (8 if kl else 0)
                    for i in range(4):
                        k.e(f"v_cvt_pk_bf16_f32 v{tr+i}, v{base+2*i}, v{base+2*i+1}")
                    k.e(f"buffer_store_dwordx4 {vr(tr,4)}, v{T0+5}, s[16:19], s37 offen offset:{kl*VKS}")
                k.e("s_add_u32 s37, s37, s34")
                k.e("s_add_u32 s37, s37, s34")
            else:
                k.e(f"""
                v_mov_b32 v{T0+9}, 0x3f803f80
                v_mov_b32 v{T0+10}, 0
                v_cmp_eq_u32 s[44:45], 3, v{T0+3}
                v_cmp_le_u32 s[46:47], 2, v{T0+3}
                s_nop 1
                v_cndmask_b32 v{T0+9}, v{T0+9}, v{T0+10}, s[44:45]
                """)
                base = ACC + 16*slot
                for kl in range(2):
                    tr = 80 + 4*kl
                    for i in range(4):
                        k.e(f"v_cvt_pk_bf16_f32 v{tr+i}, v{base+8*kl+2*i}, v{base+8*kl+2*i+1}")
                    for i in range(4):
                        k.e(f"v_cndmask_b32 v{tr+i}, v{tr+i}, v{T0+9}, s[46:47]")
                for kl in range(2):
                    k.e(f"buffer_store_dwordx4 {vr(80+4*kl,4)}, v{T0+7}, s[16:19], s38 offen offset:{kl*VKS}")

    le = k.newlabel("end")
    lh1 = k.newlabel("half1")
    k.e("s_cmp_eq_u32 s43, 1")
    k.e(f"s_cbranch_scc1 {lh1}")
    for half in range(2):
        if half == 1: k.label(lh1)
        tiles = [0, 1, 2] if half == 0 else [3, 4]
        src = {0: (EV, 0), 1: (OD, 0), 2: (EV, 128), 3: (OD, 128), 4: (LF, 0)}
        for slot, j in enumerate(tiles):
            a, off = src[j]
            k.e(f"v_add_u32 v{vWr01[slot]}, {off}, v{a}")
            k.e(f"v_add_u32 v{vWr2[slot]}, {off + 2*WST}, v{a}")
        lv = k.newlabel("v")
        k.e("s_cmp_eq_u32 s22, 2")
        k.e(f"s_cbranch_scc1 {lv}")
        n0 = prof.n if prof else 0
        if prof: prof.mark()
        mainloop(False, len(tiles))
        if prof: prof.mark()
        epi_qk(tiles)
        k.e(f"s_branch {le}")
        k.label(lv)
        if prof: prof.n = n0; prof.mark()
        mainloop(True, len(tiles))
        if prof: prof.mark()
        epi_v(tiles)
        if half == 0: k.e(f"s_branch {le}")
        if prof and half == 0: prof.n = n0
    k.label(le)


def gen_prefetch(k, wave_sgpr, lds_dummy, first_after=1, burst=False, early=0, tail=True):
    k.e(f"""
    s_load_dwordx4 s[60:63], s[0:1], 56
    s_and_b32 s65, s2, 7
    s_lshr_b32 s64, s2, 3
    s_mul_i32 s64, s64, 3
    s_add_u32 s64, s64, s{wave_sgpr}
    s_sub_u32 s64, s64, 8
    s_mov_b32 m0, {lds_dummy}
    """)
    for r in range(7):
        k.e(f"""
        v_add_u32 v4, {64*r}, v2
        v_mul_u32_u24 v5, 586, v4
        v_lshrrev_b32 v5, 16, v5
        v_mul_u32_u24 v6, 112, v5
        v_sub_u32 v6, v4, v6
        v_mul_u32_u24 v5, 3456, v5
        v_lshl_add_u32 v{8+r}, v6, 4, v5
        """)
    k.e(f"""
    v_lshrrev_b32 v5, 3, v2
    v_mul_u32_u24 v5, 1152, v5
    v_and_b32 v6, 7, v2
    v_lshl_add_u32 v16, v6, 4, v5
    s_waitcnt lgkmcnt(0)
    """)
    srd(k, 68, 60, XB)
    srd(k, 72, 62, WB)
    k.e(f"""
    s_and_b32 s79, s65, 1
    s_mul_i32 s79, s79, 1664
    s_lshr_b32 s78, s65, 1
    s_mul_i32 s78, s78, {512*1152}
    """)
    def group(j, lo=None, hi=None):
        lx = k.newlabel("px"); ld = k.newlabel("pd")
        k.e(f"""
        s_add_u32 s66, s64, {72*j}
        s_cmp_ge_u32 s66, {168 if hi is None else hi}
        s_cbranch_scc1 {ld}
        """)
        if lo is not None:
            k.e(f"s_cmp_lt_u32 s66, {lo}")
            k.e(f"s_cbranch_scc1 {ld}")
        k.e(f"""
        s_mul_i32 s67, s66, 2731
        s_lshr_b32 s67, s67, 16
        s_mul_i32 s76, s67, 24
        s_sub_u32 s76, s66, s76
        s_add_u32 s67, s67, 2
        s_cmp_ge_u32 s76, 16
        s_cbranch_scc1 {lx}
        s_lshl_b32 s77, s67, 6
        s_lshl_b32 s76, s76, 2
        s_add_u32 s77, s77, s76
        s_mul_i32 s77, s77, 3456
        s_add_u32 s77, s77, s79
        """)
        for r in range(7): k.e(f"buffer_load_dwordx4 v{8+r}, s[72:75], s77 offen lds")
        k.e(f"s_branch {ld}")
        k.label(lx)
        k.e(f"""
        s_sub_u32 s76, s76, 16
        s_mul_i32 s76, s76, {64*1152}
        s_lshl_b32 s77, s67, 7
        s_add_u32 s77, s77, s76
        s_add_u32 s77, s77, s78
        """)
        for r in range(8):
            k.e(f"buffer_load_dwordx4 v16, s[68:71], s77 offen lds")
            if r < 7: k.e(f"s_add_u32 s77, s77, {8*1152}")
        k.label(ld)
    nb = 0
    k.e("s_barrier"); nb += 1
    if early: group(0, hi=early)
    for _ in range(first_after):
        k.e("s_barrier"); nb += 1
    for j in range(3):
        group(j, lo=(early if (early and j == 0) else None))
        if nb < 10 and not burst:
            k.e("s_barrier"); nb += 1
    if not tail:
        assert nb == 2
        return
    while nb < 10:
        k.e("s_barrier"); nb += 1
```

```python
import sys
from g import *
from build import assemble
import k_qkv, k_attn, k_oproj
STAMPS = "stamps" in sys.argv
PROFON = "prof" in sys.argv
var = [a[2:] for a in sys.argv if a.startswith('v=')]
if 'base' not in var: var += ['rebal', 'b2s', 'odma'] + ([] if any(x.startswith('pe') for x in var) else ['pe24']) + ([] if 'nopfb' in var else ['pfb'])
kernels = []; launches = []
def make(name, idx, nwg, block, lds, nv, body):
    k = K(name)
    if STAMPS: stamp_id(k, 8); stamp_begin(k)
    k.e(f"s_cmp_ge_u32 s2, {nwg}")
    k.e(f"s_cbranch_scc1 L_{name}_exit")
    PR = Prof(k, PROFON, idx)
    if PR.on:
        stamp_id(k, 8)
        k.e("s_memtime s[56:57]\ns_waitcnt lgkmcnt(0)\ns_mov_b32 s83, s56\ns_memrealtime s[56:57]\ns_waitcnt lgkmcnt(0)\ns_mov_b32 s55, s56")
    body(k, PR if PR.on else None)
    if PR.on:
        PR.mark(); k.e("s_mov_b32 s82, s83"); PR.n = 23; PR.dump()
    if STAMPS: stamp_end(k, idx)
    k.label(f"L_{name}_exit")
    k.e("s_endpgm")
    kernels.append((k, nv, 96)); launches.append((name, nwg, block, lds))

import k_ssm
K1_LDS = max(k_qkv.GEMM_LDS, 9 * k_ssm.KG_LDS_WAVE + 2 * k_ssm.UTA_LDS)
def k1_body(k, p):
    lut = k.newlabel("ut"); lkg = k.newlabel("kg"); lend = k.newlabel("k1end")
    k.e("""
    v_lshrrev_b32 v1, 6, v0
    v_and_b32 v2, 63, v0
    s_nop 0
    v_readfirstlane_b32 s49, v1
    s_cmp_ge_u32 s2, 192
    """)
    k.e(f"s_cbranch_scc1 {lkg}")
    lpf = k.newlabel("pf")
    k.e("s_cmp_ge_u32 s49, 8")
    k.e(f"s_cbranch_scc1 {lpf}")
    k_qkv.gen_qkv(k, p)
    k.e(f"s_branch {lend}")
    k.label(lpf)
    if "ipf" in var:
        lhere = k.newlabel("pc"); lsk = k.newlabel("ipfskip")
        k.e(f"""
        s_cmp_ge_u32 s2, 8
        s_cbranch_scc1 {lsk}
        s_getpc_b64 s[4:5]
        """)
        k.label(lhere)
        k.e(f"""
        s_add_u32 s4, s4, k1_kernel - {lhere}
        s_addc_u32 s5, s5, -1
        s_sub_u32 s6, s49, 8
        s_mul_i32 s6, s6, 24576
        s_mov_b32 s7, L_text_end - k1_kernel - 4
        """)
        for j in range(3):
            k.e(f"""
            v_lshlrev_b32 v4, 7, v2
            v_add_u32 v4, s6, v4
            v_min_u32 v4, s7, v4
            v_mov_b32 v5, s5
            v_add_co_u32 v4, vcc, s4, v4
            s_nop 1
            v_addc_co_u32 v5, vcc, 0, v5, vcc
            global_load_dword v{8+j}, v[4:5], off
            s_add_u32 s6, s6, 8192
            """)
        for _ in range(10): k.e("s_barrier")
        k.label(lsk)
    KG8 = "kg8" in var
    if KG8:
        lrest = k.newlabel("rest")
        k.e("s_cmp_lg_u32 s49, 10")
        k.e(f"s_cbranch_scc1 {lrest}")
        k.e("s_cmp_ge_u32 s2, 64")
        k.e(f"s_cbranch_scc1 {lrest}")
        k.e(f"""
        s_add_u32 s20, s2, 512
        s_mov_b32 s21, {k_qkv.GEMM_LDS + 1024}
        s_barrier
        """)
        k_ssm.gen_kgen_with_barriers(k, 20, 21, 9)
        k.e(f"s_branch L_{k.name}_exit")
        k.label(lrest)
    if "nopf" not in var:
        k_qkv.gen_prefetch(k, 49, k_qkv.GEMM_LDS, first_after=(0 if "pf0" in var else 1), burst=("pfb" in var), early=(24 if "pe24" in var else 48 if "pe48" in var else 72 if "pe72" in var else 0))
    k.e(f"s_branch L_{k.name}_exit")
    k.label(lkg)
    k.e("s_cmp_ge_u32 s49, 9")
    k.e(f"s_cbranch_scc1 {lut}")
    if KG8:
        k.e("s_cmp_eq_u32 s49, 8")
        k.e(f"s_cbranch_scc1 L_{k.name}_exit")
    k.e(f"""
    s_sub_u32 s20, s2, 192
    s_mul_i32 s20, s20, {8 if KG8 else 9}
    s_add_u32 s20, s20, s49
    s_mul_i32 s21, s49, {k_ssm.KG_LDS_WAVE}
    """)
    if p: p.n = 0
    k_ssm.gen_kgen(k, 20, 21, p)
    k.e(f"s_branch {lend}")
    k.label(lut)
    k.e(f"""
    s_sub_u32 s40, s2, 192
    s_and_b32 s41, s40, 3
    s_lshr_b32 s40, s40, 2
    s_lshl_b32 s40, s40, 1
    s_sub_u32 s42, s49, 9
    s_add_u32 s40, s40, s42
    s_mul_i32 s42, s42, {k_ssm.UTA_LDS}
    s_add_u32 s42, s42, {9 * k_ssm.KG_LDS_WAVE}
    """)
    k_ssm.gen_utrans_aux(k, 40, 41, 42)
    k.label(lend)
FIN2 = "oldfin" not in var
def k3_body(k, p):
    lf = k.newlabel("fin"); lend = k.newlabel("k3end")
    k.e("s_cmp_ge_u32 s2, 144")
    k.e(f"s_cbranch_scc1 {lf}")
    k_oproj.gen_oproj(k, p)
    k.e(f"s_branch {lend}")
    k.label(lf)
    if FIN2:
        k.e("s_sub_u32 s50, s2, 144")
        k_ssm.gen_fin2(k, 50)
    else:
        k.e("""
        v_lshrrev_b32 v1, 6, v0
        s_nop 0
        v_readfirstlane_b32 s49, v1
        s_nop 3
        s_cmp_ge_u32 s49, 4
        """)
        k.e(f"s_cbranch_scc1 L_{k.name}_exit")
        k.e("s_sub_u32 s50, s2, 144")
        k_ssm.gen_fin(k, wg="s50", two=("sepconv" not in var))
    k.label(lend)
make("k1_kernel", 0, 256, 704, K1_LDS, 128, k1_body)
if "old2" in var:
    make("k2_kernel", 1, 256, 768, k_attn.ATT_LDS, k_attn.NV_K2, lambda k, p: k_attn.gen_k2(k, p, var=var))
else:
    import k_attn2
    make("k2_kernel", 1, 256, 512, k_attn2.ATT_LDS, k_attn2.NV_K2, lambda k, p: k_attn2.gen_k2(k, p, var=var))
make("k3_kernel", 2, 216 if FIN2 else 240, 512, k_oproj.OP_LDS, 100, k3_body)
import re
def add_flag(kern, flag, pred=lambda l: True):
    out = []
    for l in kern.lines:
        if "buffer_store" in l and pred(l): l = l.rstrip() + " " + flag
        out.append(l)
    kern.lines = out
def add_flag_after(kern, marker, flag):
    out = []; on = False
    for l in kern.lines:
        if marker in l: on = True
        if on and "buffer_store" in l: l = l.rstrip() + " " + flag
        out.append(l)
    kern.lines = out
for x in var:
    if x.startswith("ssm"): add_flag_after(kernels[0][0], "SSM kernel generation", x[3:].replace("_", " "))
    if x.startswith("st1"): add_flag(kernels[0][0], x[3:].replace("_", " "))
    if x.startswith("st2"): add_flag(kernels[1][0], x[3:].replace("_", " "))
    if x.startswith("st3"): add_flag(kernels[2][0], x[3:].replace("_", " "))
txt, nerr = assemble(kernels, launches)
open(sys.argv[1] if len(sys.argv) > 1 else "out.s", "w").write(txt)
print("lint errors:", nerr)
```

```python
from g import *
from sb import SB
from layout import *
from k_qkv import srd, f2u

QF, Q2A, Q2B = 4, 8, 10
KF, KX = 12, 16
V0, V1 = 20, 24
P = 28
SA, SBUF = 36, 52
O = 68
vK, vK2, vV = 84, 85, 86
T0 = 88
CA0, CA1 = 100, 116
CR = 132
vAa, vUa, vAb, vUb, vY, vD, vJ = 212, 213, 214, 215, 216, 217, 218
QN, Q2N = 220, 224
NV_K2 = 228
ATT_LDS = 163840

def koff(tt): return (tt >> 3) * CH + (tt & 7) * 1024
def kxoff(q): return (q >> 1) * CH + (q & 1) * 512
def voff(ks): return (ks >> 4) * CH + (ks & 15) * VKS

def gen_k2(k, prof=None, var=()):
    t = T0
    lane = 2
    k.c("---- attention + convolution ----")
    k.e(f"""
    s_load_dwordx2 s[4:5], s[0:1], 96
    v_lshrrev_b32 v1, 6, v0
    v_and_b32 v2, 63, v0
    s_and_b32 s20, s2, 7
    v_readfirstlane_b32 s19, v1
    s_lshr_b32 s21, s2, 3
    s_and_b32 s22, s21, 3
    s_lshl_b32 s20, s20, 2
    s_add_u32 s20, s20, s22
    s_lshr_b32 s21, s21, 2
    s_lshl_b32 s21, s21, 3
    s_add_u32 s21, s21, s19
    s_lshl_b32 s26, s20, 16
    s_lshl_b32 s27, s21, 10
    s_add_u32 s26, s26, s27
    s_add_u32 s26, s26, {QM}
    s_lshl_b32 s28, s20, 13
    s_lshl_b32 s27, s21, 7
    s_add_u32 s28, s28, s27
    s_add_u32 s28, s28, {Q2}
    s_mul_i32 s24, s20, {HB}
    v_lshlrev_b32 v{vK}, 4, v{lane}
    v_lshlrev_b32 v{vD}, 4, v{lane}
    v_and_b32 v{t}, 31, v{lane}
    v_lshlrev_b32 v{t+1}, 2, v{t}
    v_mov_b32 v{t+2}, -1
    v_cmp_gt_u32 vcc, 32, v{lane}
    v_mov_b32 v{Q2A+1}, 0
    v_mov_b32 v{Q2B}, 0
    v_cndmask_b32 v{t+2}, v{t+2}, v{t+1}, vcc
    """)
    k.e(f"""
    s_add_u32 s44, s19, 4
    s_add_u32 s45, s19, 12
    s_cmp_lt_u32 s19, 4
    s_cselect_b32 s44, s19, s44
    s_cselect_b32 s45, s45, s19
    s_lshl_b32 s44, s44, 10
    s_lshl_b32 s45, s45, 10
    s_lshl_b32 s46, s19, 10
    s_add_u32 s46, s46, 16384
    s_add_u32 s47, s46, 8192
    s_waitcnt lgkmcnt(0)
    """)
    if prof: prof.mark()
    srd(k, 8, 4, WS_END)
    k.e(f"buffer_load_dwordx4 {vr(QF,4)}, v{vK}, s[8:11], s26 offen")
    k.e(f"buffer_load_dword v{Q2A}, v{t+2}, s[8:11], s28 offen")
    for sreg in (44, 45, 46, 47):
        k.e(f"""
        s_mov_b32 m0, s{sreg}
        s_add_u32 s27, s24, s{sreg}
        buffer_load_dwordx4 v{vD}, s[8:11], s27 offen lds
        """)
    lw3 = k.newlabel("w3"); lu = k.newlabel("ud"); lnn = k.newlabel("nn"); lx = k.newlabel("x96")
    k.e(f"""
    s_mov_b32 s35, 3
    s_mov_b32 s30, 0
    s_mov_b32 s31, 0
    s_cmp_ge_u32 s19, 4
    s_cbranch_scc1 {lu}
    s_cmp_eq_u32 s19, 3
    s_cbranch_scc1 {lw3}
    s_and_b32 s30, s2, 7
    s_lshl_b32 s30, s30, 6
    s_lshr_b32 s31, s2, 3
    s_lshl_b32 s31, s31, 1
    s_add_u32 s30, s30, s31
    s_add_u32 s31, s30, 1
    s_mov_b32 s35, 1
    s_cmp_eq_u32 s19, 2
    s_cbranch_scc1 {lu}
    s_add_u32 s30, s30, s19
    s_mov_b32 s31, s30
    s_mov_b32 s35, 0
    s_branch {lu}
    """)
    k.label(lw3)
    k.e(f"""
    s_cmp_ge_u32 s2, 96
    s_cbranch_scc1 {lu}
    s_cmp_ge_u32 s2, 64
    s_cbranch_scc1 {lx}
    s_add_u32 s30, s2, 512
    s_mov_b32 s31, s30
    s_mov_b32 s35, 0
    s_branch {lu}
    """)
    k.label(lx)
    k.e(f"""
    s_sub_u32 s30, s2, 64
    s_lshl_b32 s30, s30, 1
    s_add_u32 s30, s30, 512
    s_add_u32 s31, s30, 1
    s_mov_b32 s35, 1
    """)
    k.label(lu)
    k.e(f"""
    v_and_b32 v{t+5}, 3, v{t}
    v_lshlrev_b32 v{t+5}, 1, v{t+5}
    v_bfe_u32 v{t+6}, v{t}, 2, 1
    v_or_b32 v{t+5}, v{t+5}, v{t+6}
    v_lshrrev_b32 v{t+6}, 3, v{t}
    v_lshl_or_b32 v{t+5}, v{t+6}, 3, v{t+5}
    v_and_b32 v{t+6}, 1, v{t+5}
    v_xor_b32 v{t+6}, 1, v{t+6}
    v_sub_u32 v{t+7}, 2047, v{t+5}
    v_sub_u32 v{t+7}, v{t+7}, v{t+6}
    v_lshrrev_b32 v{t+4}, 5, v{lane}
    v_lshl_add_u32 v{t+7}, v{t+4}, 3, v{t+7}
    v_lshlrev_b32 v{t+7}, 1, v{t+7}
    v_mul_u32_u24 v{t+6}, {KRH}, v{t+6}
    v_add_u32 v{t+7}, v{t+7}, v{t+6}
    v_mul_u32_u24 v{t+6}, 1536, v{t+4}
    v_lshl_add_u32 v{t+6}, v{t}, 4, v{t+6}
    v_lshlrev_b32 v{t+8}, 6, v{t}
    v_lshl_add_u32 v{vY}, v{t+4}, 4, v{t+8}
    s_mul_i32 s36, s30, {KRC}
    s_add_u32 s36, s36, {KR - 4288}
    s_mul_i32 s37, s31, {KRC}
    s_add_u32 s37, s37, {KR - 4288}
    s_sub_u32 s40, s37, 2048
    s_cmp_eq_u32 s35, 0
    s_cselect_b32 s37, s40, s37
    v_add_u32 v{vAa}, s36, v{t+7}
    v_add_u32 v{vAb}, s37, v{t+7}
    s_mul_i32 s36, s30, {UPC}
    s_add_u32 s36, s36, {UP + 512 - 1072}
    s_mul_i32 s37, s31, {UPC}
    s_add_u32 s37, s37, {UP + 512 - 1072}
    s_cmp_eq_u32 s35, 0
    s_cselect_b32 s40, 0, 512
    s_add_u32 s36, s36, s40
    s_add_u32 s37, s37, s40
    v_add_u32 v{vUa}, s36, v{t+6}
    v_add_u32 v{vUb}, s37, v{t+6}
    s_mul_i32 s33, s30, 4096
    s_add_u32 s33, s33, {YT}
    s_mul_i32 s34, s31, 4096
    s_add_u32 s34, s34, {YT + 2048}
    s_mul_i32 s36, s30, 2048
    s_add_u32 s36, s36, {YT2}
    s_add_u32 s37, s33, 2048
    s_cmp_eq_u32 s35, 0
    s_cselect_b32 s34, s36, s34
    s_cselect_b32 s33, s33, s37
    s_mov_b32 s38, 4032
    s_mov_b32 s39, 1008
    """)
    for i in range(32 + 80): k.e(f"v_mov_b32 v{CA0+i}, 0")
    k.e(f"""
    v_lshrrev_b32 v{t+3}, 5, v{lane}
    v_mul_u32_u24 v{t+3}, {VH}, v{t+3}
    v_min_u32 v{t+5}, 19, v{t}
    v_lshl_add_u32 v{t+5}, v{t+5}, 4, v{t+3}
    v_add_u32 v{vV}, 9216, v{t+5}
    v_lshlrev_b32 v{vK2}, 4, v{t}
    v_add_u32 v{vK2}, 8192, v{vK2}
    s_and_b32 s25, s19, 3
    s_lshl_b32 s25, s25, 10
    s_add_u32 s25, s25, 32768
    s_add_u32 s24, s24, s25
    """)
    for i in range(16): k.e(f"v_mov_b32 v{O+i}, 0")
    for i in range(4): k.e(f"v_mov_b32 v{P+4+i}, 0")
    for i in range(4): k.e(f"v_mov_b32 v{V1+i}, 0")
    k.e("s_waitcnt vmcnt(2)")
    k.e(f"v_mov_b32 v{Q2B+1}, v{Q2A}")
    if prof: prof.mark()
    k.e("s_barrier")
    if prof: prof.mark()
    if "kxm" in var:
        for i in range(4): k.e(f"v_mov_b32 v{KX+i}, 0")
        k.e("s_mov_b32 exec_hi, 0")
    k.e(f"ds_read_b128 {vr(KX,4)}, v{vK2}")
    if "kxm" in var: k.e("s_mov_b32 exec_hi, -1")
    k.e(f"""
    ds_read_b128 {vr(KF,4)}, v{vK}
    s_waitcnt lgkmcnt(0)
    v_mfma_f32_32x32x16_bf16 {vr(SA,16)}, {vr(KF,4)}, {vr(QF,4)}, 0
    v_mfma_f32_32x32x8_bf16 {vr(SA,16)}, {vr(KX,2)}, {vr(Q2A,2)}, {vr(SA,16)}
    ds_read_b128 {vr(KF,4)}, v{vK} offset:1024
    ds_read_b128 {vr(V0,4)}, v{vV}
    s_waitcnt lgkmcnt(0)
    s_nop 7
    """)
    k.e("s_mov_b32 s51, 0x07060302")
    PAT_PLAIN = "1 eeeecc p eeeecc 2 eeeecc P eeeecc"
    PAT_DMA = "1 eeeecc D p eeeecc 2 eeeecc D P eeeecc"
    PAT_DMA4 = "1 eeee D cc D p eeeecc 2 eeee D cc D P eeeecc"
    PAT_C1 = "1 eeee p ccee a eecc 2 eeee b ccee P eecc"
    PAT_C2 = "1 eee p ecc a eee b ecc 2 eee a ecc b eee P ecc"
    DBL = {"0": (2, 6), "1": (3, 7), "2": (1, 5), "3": (0, 4)}[([x[3:] for x in var if x.startswith("dbl")] + ["0"])[0]]
    pc1 = {"0": PAT_C1, "1": "1 eeee p ccee 2 eecc a eeee b ccee P eecc", "2": "1 eeee a ccee p eecc b eeee 2 ccee P eecc",
           "3": "1 eeeec p ceee a ecce 2 eece b ceee P ecc"}
    PAT_C1 = pc1[([x[3:] for x in var if x.startswith("pc1")] + ["1"])[0]]
    PRIOS = {"n": [], "1": [(7, 4, 0)], "2": [(6, 4, 2), (7, 2, 1), (7, 6, 0)]}
    PRIO = PRIOS[[x[2:] for x in var if x.startswith("pr")][0]] if any(x.startswith("pr") for x in var) else PRIOS["n"]
    def piece(kk, j):
        kk.e(f"s_add_u32 m0, s25, {j*4096}")
        kk.e(f"s_add_u32 s27, s24, {j*4096}")
        kk.e(f"buffer_load_dwordx4 v{vD}, s[8:11], s27 offen lds")
    def body(kk, lg, mode, pieces=None, first=False, loop=False, vm_at2=None):
        xs = 0
        for tin in range(8):
            cur = SA if tin % 2 == 0 else SBUF
            nxt = SBUF if tin % 2 == 0 else SA
            e = c = 0
            if tin == 2 and first:
                kk.e(f"s_waitcnt vmcnt({vm_at2})")
                kk.e("s_barrier")
            if loop:
                for (pc, pt, pr) in PRIO:
                    if pt == tin:
                        lp = k.newlabel("pl")
                        kk.e(f"s_cmp_eq_u32 s41, {pc}")
                        kk.e(f"s_cbranch_scc0 {lp}")
                        kk.e(f"s_setprio {pr}")
                        kk.lines.append(lp + ":")
            pat = {"plain": PAT_PLAIN, "dma": PAT_DMA, "dma4": PAT_DMA4}.get(mode) or (PAT_C2 if tin in DBL else PAT_C1)
            for tok in pat.replace(" ", ""):
                if tok == "e":
                    kk.e(f"v_exp_f32 v{cur+e}, v{cur+e}"); e += 1
                elif tok == "c":
                    assert e >= 2*c + 2
                    if "perm" in var: kk.e(f"v_perm_b32 v{P+c}, v{cur+2*c+1}, v{cur+2*c}, s51")
                    else: kk.e(f"v_cvt_pk_bf16_f32 v{P+c}, v{cur+2*c}, v{cur+2*c+1}")
                    c += 1
                elif tok == "D":
                    if pieces: piece(kk, pieces.pop(0))
                elif tok == "1":
                    lg.wait_for(["K"])
                    kk.e(f"v_mfma_f32_32x32x16_bf16 {vr(nxt,16)}, {vr(KF,4)}, {vr(QF,4)}, 0")
                    kk.e(f"ds_read_b128 {vr(KF,4)}, v{vK} offset:{koff(tin+2)}"); lg.issue("K")
                elif tok == "p":
                    assert c <= 4
                    lg.wait_for(["V1"])
                    kk.e(f"v_mfma_f32_32x32x16_bf16 {vr(O,16)}, {vr(V1,4)}, {vr(P+4,4)}, {vr(O,16)}")
                    kk.e(f"ds_read_b128 {vr(V1,4)}, v{vV} offset:{voff(2*tin+1)}"); lg.issue("V1")
                elif tok == "2":
                    t1 = tin + 1
                    lg.wait_for(["X"])
                    kx = KX + 2 * ((t1 & 3) >> 1)
                    q2 = Q2A if (t1 & 1) == 0 else Q2B
                    kk.e(f"v_mfma_f32_32x32x8_bf16 {vr(nxt,16)}, {vr(kx,2)}, {vr(q2,2)}, {vr(nxt,16)}")
                    if (t1 & 3) == 3:
                        if "kxm" in var: kk.e("s_mov_b32 exec_hi, 0")
                        kk.e(f"ds_read_b128 {vr(KX,4)}, v{vK2} offset:{kxoff((t1+1) >> 2)}"); lg.issue("X")
                        if "kxm" in var: kk.e("s_mov_b32 exec_hi, -1")
                elif tok == "P":
                    assert c >= 4
                    lg.wait_for(["V0"])
                    kk.e(f"v_mfma_f32_32x32x16_bf16 {vr(O,16)}, {vr(V0,4)}, {vr(P,4)}, {vr(O,16)}")
                    kk.e(f"ds_read_b128 {vr(V0,4)}, v{vV} offset:{voff(2*tin+2)}"); lg.issue("V0")
                elif tok in "ab":
                    j = xs
                    r = CR + 16 * (j % 5)
                    nl = 3 if mode == "S" else 4
                    if tok == "a":
                        kk.e(f"s_waitcnt vmcnt({4*nl})")
                        ins = f"v_mfma_f32_32x32x16_bf16 {vr(CA0,16)}, {vr(r,4)}, {vr(r+4,4)}, {vr(CA0,16)}"
                    else:
                        ub = r + 4 if mode == "S" else r + 12
                        ins = f"v_mfma_f32_32x32x16_bf16 {vr(CA1,16)}, {vr(r+8,4)}, {vr(ub,4)}, {vr(CA1,16)}"
                    if j == 9:
                        lx_ = k.newlabel("skipx")
                        kk.e("s_cmp_eq_u32 s41, 7")
                        kk.e(f"s_cbranch_scc1 {lx_}")
                        kk.e(ins)
                        kk.lines.append(lx_ + ":")
                    else:
                        kk.e(ins)
                    if tok == "b":
                        dr = j >> 1; s_ = j & 1
                        oa = 256 - 64*dr + 32*s_; ou = 64 - 16*dr + 3072*s_
                        kk.e(f"buffer_load_dwordx4 {vr(r,4)}, v{vAa}, s[8:11], s38 offen offset:{oa}")
                        kk.e(f"buffer_load_dwordx4 {vr(r+4,4)}, v{vUa}, s[8:11], s39 offen offset:{ou}")
                        kk.e(f"buffer_load_dwordx4 {vr(r+8,4)}, v{vAb}, s[8:11], s38 offen offset:{oa}")
                        if mode == "N": kk.e(f"buffer_load_dwordx4 {vr(r+12,4)}, v{vUb}, s[8:11], s39 offen offset:{ou}")
                        xs += 1
            assert e == 16 and c == 8
    def advance():
        k.e(f"""
        v_add_u32 v{vK}, {CH}, v{vK}
        v_add_u32 v{vK2}, {CH}, v{vK2}
        v_add_u32 v{vV}, {CH}, v{vV}
        """)
    tmp = K("tmp"); lg = SB(tmp, "lgkmcnt", 15)
    body(tmp, lg, "plain"); state = list(lg.q)
    lg.k = k
    yp = [x[2:] for x in var if x.startswith("yp")]
    def loop(mode, start, vmbar=False, stop=8):
        k.e(f"s_mov_b32 s41, {start}")
        ll = k.newlabel("loop")
        k.label(ll)
        if start == 2 and yp:
            c1, c2 = int(yp[0][0]), int(yp[0][1])
            for (cc, pr) in ((c1, 1), (c2, 0)):
                l_ = k.newlabel("yp")
                k.e(f"s_cmp_eq_u32 s41, {cc}")
                k.e(f"s_cbranch_scc0 {l_}")
                k.e(f"s_setprio {pr}")
                k.label(l_)
        body(k, lg, mode, loop=True)
        assert lg.q == state
        advance()
        if mode in "SN":
            k.e("s_sub_u32 s38, s38, 320")
            k.e("s_sub_u32 s39, s39, 80")
        k.e("s_add_u32 s41, s41, 1")
        if start == 1:
            ls = k.newlabel("nobar")
            k.e("s_cmp_eq_u32 s41, 2")
            k.e(f"s_cbranch_scc0 {ls}")
            if vmbar: k.e("s_waitcnt vmcnt(0)")
            k.e("s_barrier")
            k.label(ls)
        k.e(f"s_cmp_lt_u32 s41, {stop}")
        k.e(f"s_cbranch_scc1 {ll}")
    ldma = k.newlabel("dma"); ljoin = k.newlabel("join"); lN = k.newlabel("N"); lP = k.newlabel("Pl")
    k.e("s_cmp_ge_u32 s19, 4")
    k.e(f"s_cbranch_scc1 {ldma}")
    if "odma" in var:
        pcs = list(range(30))
        body(k, lg, "dma4", pieces=pcs, first=True, vm_at2=8)
        assert lg.q == state and not pcs
        advance()
        k.e("s_waitcnt vmcnt(25)")
        k.e("s_barrier")
    else:
        body(k, lg, "plain", first=True, vm_at2=0)
        assert lg.q == state
        advance()
        k.e("s_barrier")
    k.e("s_cmp_eq_u32 s35, 3")
    k.e(f"s_cbranch_scc1 {lP}")
    cp = [x[2:] for x in var if x.startswith("cp")]
    if cp: k.e(f"s_setprio {cp[0]}")
    k.e("s_cmp_eq_u32 s35, 1")
    k.e(f"s_cbranch_scc1 {lN}")
    loop("S", 1)
    k.e(f"s_branch {ljoin}")
    k.label(lN)
    loop("N", 1)
    k.e(f"s_branch {ljoin}")
    k.label(lP)
    loop("plain", 1, vmbar=("odma" in var))
    k.e(f"s_branch {ljoin}")
    k.label(ldma)
    if "odma" in var:
        body(k, lg, "plain", first=True, vm_at2=0)
        advance()
        k.e("s_barrier")
        body(k, lg, "plain")
        advance()
        k.e("s_barrier")
    else:
        pcs = list(range(30))
        body(k, lg, "dma", pieces=pcs, first=True, vm_at2=4)
        assert lg.q == state
        advance()
        k.e("s_waitcnt vmcnt(11)")
        k.e("s_barrier")
        body(k, lg, "dma", pieces=pcs)
        assert lg.q == state and not pcs
        advance()
        k.e("s_waitcnt vmcnt(0)")
        k.e("s_barrier")
    k.e(f"""
    s_load_dwordx2 s[6:7], s[0:1], 72
    s_lshr_b32 s30, s2, 3
    s_lshl_b32 s30, s30, 2
    s_add_u32 s30, s30, s19
    s_sub_u32 s30, s30, 4
    s_mul_i32 s30, s30, {41*128}
    v_lshlrev_b32 v{t+8}, 7, v{lane}
    v_cmp_gt_u32 vcc, 41, v{lane}
    s_and_saveexec_b64 s[44:45], vcc
    s_waitcnt lgkmcnt(0)
    """)
    srd(k, 12, 6, WOB)
    k.e(f"buffer_load_dword v{vJ}, v{t+8}, s[12:15], s30 offen")
    k.e("s_mov_b64 exec, -1")
    if "ipf3" in var:
        lh = k.newlabel("pc"); ls_ = k.newlabel("i3skip")
        k.e(f"""
        s_cmp_ge_u32 s2, 8
        s_cbranch_scc1 {ls_}
        s_cmp_lg_u32 s19, 4
        s_cbranch_scc1 {ls_}
        s_getpc_b64 s[44:45]
        """)
        k.label(lh)
        k.e(f"""
        s_add_u32 s44, s44, k3_kernel - {lh}
        s_addc_u32 s45, s45, 0
        s_mov_b32 s46, L_text_end - k3_kernel - 4
        v_lshlrev_b32 v{t+8}, 7, v{lane}
        v_min_u32 v{t+8}, s46, v{t+8}
        v_mov_b32 v{t+9}, s45
        v_add_co_u32 v{t+8}, vcc, s44, v{t+8}
        s_nop 1
        v_addc_co_u32 v{t+9}, vcc, 0, v{t+9}, vcc
        global_load_dword v{vJ+1}, v[{t+8}:{t+9}], off
        """)
        k.label(ls_)
    lg.q = list(state)
    HELP = "help" in var
    loop("plain", 2, stop=(7 if HELP else 8))
    k.label(ljoin)
    if HELP:
        lnq = k.newlabel("noq")
        k.e(f"""
        s_cmp_ge_u32 s19, 4
        s_cbranch_scc1 {lnq}
        s_lshl_b32 s26, s20, 16
        s_add_u32 s27, s21, 4
        s_lshl_b32 s27, s27, 10
        s_add_u32 s26, s26, s27
        s_add_u32 s26, s26, {QM}
        s_lshl_b32 s28, s20, 13
        s_add_u32 s27, s21, 4
        s_lshl_b32 s27, s27, 7
        s_add_u32 s28, s28, s27
        s_add_u32 s28, s28, {Q2}
        v_and_b32 v{t}, 31, v{lane}
        v_lshlrev_b32 v{t+1}, 2, v{t}
        v_mov_b32 v{t+2}, -1
        v_cmp_gt_u32 vcc, 32, v{lane}
        s_nop 1
        v_cndmask_b32 v{t+2}, v{t+2}, v{t+1}, vcc
        buffer_load_dwordx4 {vr(QN,4)}, v{vD}, s[8:11], s26 offen
        buffer_load_dword v{Q2N}, v{t+2}, s[8:11], s28 offen
        """)
        k.label(lnq)
    k.e(f"""
    s_waitcnt lgkmcnt(0)
    v_mfma_f32_32x32x16_bf16 {vr(O,16)}, {vr(V1,4)}, {vr(P+4,4)}, {vr(O,16)}
    """)
    if prof: prof.mark()
    k.nop(12)
    if HELP:
        lnh = k.newlabel("nohelp")
        k.e(f"""
        s_cmp_lt_u32 s19, 4
        s_cbranch_scc1 {lnh}
        s_barrier
        s_sub_u32 s26, s19, 4
        s_mul_i32 s26, s26, 2816
        v_lshlrev_b32 v{t}, 2, v{lane}
        v_add_u32 v{t}, s26, v{t}
        """)
        for r in range(11): k.e(f"ds_read_b32 v{SA+r}, v{t} offset:{256*r}")
        k.e("s_waitcnt lgkmcnt(0)")
        for r in range(11): k.e(f"v_add_f32 v{O+r}, v{O+r}, v{SA+r}")
        k.label(lnh)
    lfin = k.newlabel("fin"); lfb = k.newlabel("fb")
    k.e(f"""
    v_mov_b32 v{t}, v{O+10}
    v_mov_b32 v{t+1}, v{O+10}
    s_mov_b32 s42, {f2u(2.0**-64)}
    s_mov_b32 s43, {f2u(2.0**40)}
    v_permlane32_swap_b32 v{t}, v{t+1}
    s_nop 1
    v_cmp_le_f32 vcc, s42, v{t}
    v_cmp_ge_f32 s[44:45], s43, v{t}
    s_and_b64 s[44:45], s[44:45], vcc
    s_cmp_eq_u64 s[44:45], exec
    s_cbranch_scc0 {lfb}
    """)
    k.label(lfin)
    k.e(f"""
    v_rcp_f32 v{t}, v{t}
    v_and_b32 v{t+2}, 31, v{lane}
    v_lshrrev_b32 v{t+3}, 5, v{lane}
    s_lshl_b32 s26, s21, 5
    v_add_u32 v{t+2}, s26, v{t+2}
    v_mul_u32_u24 v{t+2}, 1152, v{t+2}
    v_lshl_add_u32 v{t+2}, v{t+3}, 3, v{t+2}
    s_mul_i32 s27, s20, 36
    s_add_u32 s27, s27, {OA}
    """)
    for r in range(10): k.e(f"v_mul_f32 v{O+r}, v{O+r}, v{t}")
    for j in range(5): k.e(f"v_cvt_pk_bf16_f32 v{P+j}, v{O+2*j}, v{O+2*j+1}")
    k.e(f"""
    buffer_store_dwordx2 {vr(P,2)}, v{t+2}, s[8:11], s27 offen
    buffer_store_dwordx2 {vr(P+2,2)}, v{t+2}, s[8:11], s27 offen offset:16
    s_mov_b32 exec_hi, 0
    buffer_store_dword v{P+4}, v{t+2}, s[8:11], s27 offen offset:32
    s_mov_b64 exec, -1
    """)
    lend = k.newlabel("end"); lhelp = k.newlabel("help")
    k.e("s_cmp_eq_u32 s35, 3")
    k.e(f"s_cbranch_scc1 {lhelp}")
    k.e("s_waitcnt vmcnt(3)")
    for (ca, dst) in ((CA0, 33), (CA1, 34)):
        for g in range(2):
            for e in range(4):
                k.e(f"v_permlane32_swap_b32 v{ca+8*g+e}, v{ca+8*g+4+e}")
        k.e("s_nop 1")
        rr = CR + (0 if ca == CA0 else 8)
        for g in range(2):
            for e in range(4):
                k.e(f"v_cvt_pk_bf16_f32 v{rr+4*g+e}, v{ca+8*g+e}, v{ca+8*g+4+e}")
        for g in range(2):
            k.e(f"buffer_store_dwordx4 {vr(rr+4*g,4)}, v{vY}, s[8:11], s{dst} offen offset:{32*g}")
    k.label(lhelp)
    if HELP:
        k.e("s_cmp_ge_u32 s19, 4")
        k.e(f"s_cbranch_scc1 {lend}")
        k.e(f"s_waitcnt vmcnt(7)")
        k.e("s_cmp_eq_u32 s35, 3")
        lw = k.newlabel("hw")
        k.e(f"s_cbranch_scc0 {lw}")
        k.e("s_waitcnt vmcnt(3)")
        k.label(lw)
        for i in range(4): k.e(f"v_mov_b32 v{QF+i}, v{QN+i}")
        k.e(f"v_mov_b32 v{Q2A}, v{Q2N}")
        k.e(f"v_mov_b32 v{Q2B+1}, v{Q2N}")
        for i in range(16): k.e(f"v_mov_b32 v{O+i}, 0")
        for i in range(4): k.e(f"v_mov_b32 v{P+4+i}, 0")
        for i in range(4): k.e(f"v_mov_b32 v{V1+i}, 0")
        k.e(f"""
        v_subrev_u32 v{vK}, {CH}, v{vK}
        v_subrev_u32 v{vK2}, {CH}, v{vK2}
        v_subrev_u32 v{vV}, {CH}, v{vV}
        ds_read_b128 {vr(KX,4)}, v{vK2}
        ds_read_b128 {vr(KF,4)}, v{vK}
        s_waitcnt lgkmcnt(0)
        v_mfma_f32_32x32x16_bf16 {vr(SA,16)}, {vr(KF,4)}, {vr(QF,4)}, 0
        v_mfma_f32_32x32x8_bf16 {vr(SA,16)}, {vr(KX,2)}, {vr(Q2A,2)}, {vr(SA,16)}
        ds_read_b128 {vr(KF,4)}, v{vK} offset:1024
        ds_read_b128 {vr(V0,4)}, v{vV}
        s_waitcnt lgkmcnt(0)
        s_nop 7
        """)
        lg.q = list(state)
        body(k, lg, "plain")
        k.e(f"""
        s_waitcnt lgkmcnt(0)
        s_nop 0
        v_mfma_f32_32x32x16_bf16 {vr(O,16)}, {vr(V1,4)}, {vr(P+4,4)}, {vr(O,16)}
        s_mul_i32 s26, s19, 2816
        v_lshlrev_b32 v{t}, 2, v{lane}
        v_add_u32 v{t}, s26, v{t}
        """)
        k.nop(12)
        for r in range(11): k.e(f"ds_write_b32 v{t}, v{O+r} offset:{256*r}")
        k.e("s_waitcnt lgkmcnt(0)")
        k.e("s_barrier")
    k.e(f"s_branch {lend}")
    k.label(lfb)
    k.c("fallback: pass 1 = true row max, pass 2 = exp(s - max)")
    mx = t + 6
    k.e(f"""
    v_mov_b32 v{mx}, 0xff800000
    s_mov_b32 s46, 0
    s_nop 7
    """)
    lpass = k.newlabel("pass")
    k.label(lpass)
    for i in range(16): k.e(f"v_mov_b32 v{O+i}, 0")
    k.e(f"s_mov_b32 s41, 0")
    lm = k.newlabel("sl")
    k.label(lm)
    k.e(f"""
    s_lshr_b32 s47, s41, 3
    s_mul_i32 s47, s47, {CH}
    s_and_b32 s48, s41, 7
    s_mul_i32 s52, s20, {HB}
    s_add_u32 s47, s47, s52
    s_lshl_b32 s49, s48, 10
    s_add_u32 s49, s49, s47
    v_lshlrev_b32 v{t+7}, 4, v{lane}
    buffer_load_dwordx4 {vr(KF,4)}, v{t+7}, s[8:11], s49 offen
    s_lshr_b32 s49, s48, 2
    s_lshl_b32 s49, s49, 9
    s_and_b32 s50, s48, 3
    s_lshl_b32 s50, s50, 2
    s_add_u32 s49, s49, s50
    s_add_u32 s49, s49, s47
    s_add_u32 s49, s49, 8192
    v_and_b32 v{t+8}, 31, v{lane}
    v_lshlrev_b32 v{t+8}, 4, v{t+8}
    buffer_load_dword v{KX}, v{t+8}, s[8:11], s49 offen
    s_mul_i32 s49, s48, {2*VKS}
    s_add_u32 s49, s49, s47
    s_add_u32 s49, s49, 9216
    v_mov_b32 v{KX+1}, 0
    buffer_load_dwordx4 {vr(V0,4)}, v{t+5}, s[8:11], s49 offen
    buffer_load_dwordx4 {vr(V1,4)}, v{t+5}, s[8:11], s49 offen offset:{VKS}
    s_waitcnt vmcnt(0)
    v_mfma_f32_32x32x16_bf16 {vr(SA,16)}, {vr(KF,4)}, {vr(QF,4)}, 0
    v_mfma_f32_32x32x8_bf16 {vr(SA,16)}, {vr(KX,2)}, {vr(Q2A,2)}, {vr(SA,16)}
    """)
    k.nop(12)
    lp2 = k.newlabel("p2"); lnx = k.newlabel("nx")
    k.e("s_cmp_eq_u32 s46, 1")
    k.e(f"s_cbranch_scc1 {lp2}")
    for i in range(8):
        k.e(f"v_max3_f32 v{mx}, v{SA+2*i}, v{SA+2*i+1}, v{mx}")
    k.e(f"s_branch {lnx}")
    k.label(lp2)
    for i in range(16):
        k.e(f"v_sub_f32 v{SA+i}, v{SA+i}, v{mx}")
    for i in range(16):
        k.e(f"v_exp_f32 v{SA+i}, v{SA+i}")
    k.e("s_nop 0")
    for j in range(8):
        k.e(f"v_cvt_pk_bf16_f32 v{P+j}, v{SA+2*j}, v{SA+2*j+1}")
    k.e(f"""
    s_nop 1
    v_mfma_f32_32x32x16_bf16 {vr(O,16)}, {vr(V0,4)}, {vr(P,4)}, {vr(O,16)}
    v_mfma_f32_32x32x16_bf16 {vr(O,16)}, {vr(V1,4)}, {vr(P+4,4)}, {vr(O,16)}
    """)
    k.label(lnx)
    ldone = k.newlabel("fbdone")
    k.e(f"""
    s_add_u32 s41, s41, 1
    s_cmp_lt_u32 s41, 64
    s_cbranch_scc1 {lm}
    s_cmp_eq_u32 s46, 1
    s_cbranch_scc1 {ldone}
    v_mov_b32 v{t+7}, v{mx}
    s_nop 1
    v_permlane32_swap_b32 v{mx}, v{t+7}
    s_nop 1
    v_max_f32 v{mx}, v{mx}, v{t+7}
    s_mov_b32 s46, 1
    s_branch {lpass}
    """)
    k.label(ldone)
    k.nop(12)
    k.e(f"""
    v_mov_b32 v{t}, v{O+10}
    v_mov_b32 v{t+1}, v{O+10}
    s_nop 1
    v_permlane32_swap_b32 v{t}, v{t+1}
    s_nop 1
    s_branch {lfin}
    """)
    k.label(lend)
```

```python
import sys
from g import *
from build import assemble
import k_qkv, k_attn, k_oproj
STAMPS = "stamps" in sys.argv
PROFON = "prof" in sys.argv
var = [a[2:] for a in sys.argv if a.startswith('v=')]
if 'base' not in var: var += ['rebal', 'b2s', 'odma'] + ([] if any(x.startswith('pe') for x in var) else ['pe24']) + ([] if 'nopfb' in var else ['pfb'])
kernels = []; launches = []
def make(name, idx, nwg, block, lds, nv, body):
    k = K(name)
    if STAMPS: stamp_id(k, 8); stamp_begin(k)
    k.e(f"s_cmp_ge_u32 s2, {nwg}")
    k.e(f"s_cbranch_scc1 L_{name}_exit")
    PR = Prof(k, PROFON, idx)
    if PR.on:
        stamp_id(k, 8)
        k.e("s_memtime s[56:57]\ns_waitcnt lgkmcnt(0)\ns_mov_b32 s83, s56\ns_memrealtime s[56:57]\ns_waitcnt lgkmcnt(0)\ns_mov_b32 s55, s56")
    body(k, PR if PR.on else None)
    if PR.on:
        PR.mark(); k.e("s_mov_b32 s82, s83"); PR.n = 23; PR.dump()
    if STAMPS: stamp_end(k, idx)
    k.label(f"L_{name}_exit")
    k.e("s_endpgm")
    kernels.append((k, nv, 96)); launches.append((name, nwg, block, lds))

import k_ssm
K1_LDS = max(k_qkv.GEMM_LDS, 9 * k_ssm.KG_LDS_WAVE + 2 * k_ssm.UTA_LDS)
def k1_body(k, p):
    lut = k.newlabel("ut"); lkg = k.newlabel("kg"); lend = k.newlabel("k1end")
    k.e("""
    v_lshrrev_b32 v1, 6, v0
    v_and_b32 v2, 63, v0
    s_nop 0
    v_readfirstlane_b32 s49, v1
    s_cmp_ge_u32 s2, 192
    """)
    k.e(f"s_cbranch_scc1 {lkg}")
    lpf = k.newlabel("pf")
    k.e("s_cmp_ge_u32 s49, 8")
    k.e(f"s_cbranch_scc1 {lpf}")
    k_qkv.gen_qkv(k, p)
    k.e(f"s_branch {lend}")
    k.label(lpf)
    if "noipf" not in var:
        lhere = k.newlabel("pc"); lsk = k.newlabel("ipfskip")
        k.e(f"""
        s_cmp_ge_u32 s2, 8
        s_cbranch_scc1 {lsk}
        s_getpc_b64 s[4:5]
        """)
        k.label(lhere)
        k.e(f"""
        s_add_u32 s4, s4, k1_kernel - {lhere}
        s_addc_u32 s5, s5, -1
        s_sub_u32 s6, s49, 8
        s_lshl_b32 s6, s6, 13
        s_mov_b32 s7, L_text_end - k1_kernel - 4
        """)
        for j in range(2 if "ipf2" in var else 3):
            k.e(f"""
            v_lshlrev_b32 v4, 7, v2
            v_add_u32 v4, s6, v4
            v_min_u32 v4, s7, v4
            v_mov_b32 v5, s5
            v_add_co_u32 v4, vcc, s4, v4
            s_nop 1
            v_addc_co_u32 v5, vcc, 0, v5, vcc
            global_load_dword v{40+j}, v[4:5], off
            s_add_u32 s6, s6, 24576
            """)
        k.label(lsk)
    KG8 = "kg8" in var
    if KG8:
        lrest = k.newlabel("rest")
        k.e("s_cmp_lg_u32 s49, 10")
        k.e(f"s_cbranch_scc1 {lrest}")
        k.e("s_cmp_ge_u32 s2, 64")
        k.e(f"s_cbranch_scc1 {lrest}")
        k.e(f"""
        s_add_u32 s20, s2, 512
        s_mov_b32 s21, {k_qkv.GEMM_LDS + 1024}
        s_barrier
        """)
        k_ssm.gen_kgen_with_barriers(k, 20, 21, 9)
        k.e(f"s_branch L_{k.name}_exit")
        k.label(lrest)
    if "nopf" not in var:
        k_qkv.gen_prefetch(k, 49, k_qkv.GEMM_LDS, first_after=(0 if "pf0" in var else 1), burst=("pfb" in var), early=(24 if "pe24" in var else 48 if "pe48" in var else 72 if "pe72" in var else 0))
    k.e(f"s_branch L_{k.name}_exit")
    k.label(lkg)
    k.e("s_cmp_ge_u32 s49, 9")
    k.e(f"s_cbranch_scc1 {lut}")
    if KG8:
        k.e("s_cmp_eq_u32 s49, 8")
        k.e(f"s_cbranch_scc1 L_{k.name}_exit")
    k.e(f"""
    s_sub_u32 s20, s2, 192
    s_mul_i32 s20, s20, {8 if KG8 else 9}
    s_add_u32 s20, s20, s49
    s_mul_i32 s21, s49, {k_ssm.KG_LDS_WAVE}
    """)
    if p: p.n = 0
    k_ssm.gen_kgen(k, 20, 21, p, kloop=('kloop' in var))
    k.e(f"s_branch {lend}")
    k.label(lut)
    k.e(f"""
    s_sub_u32 s40, s2, 192
    s_and_b32 s41, s40, 3
    s_lshr_b32 s40, s40, 2
    s_lshl_b32 s40, s40, 1
    s_sub_u32 s42, s49, 9
    s_add_u32 s40, s40, s42
    s_mul_i32 s42, s42, {k_ssm.UTA_LDS}
    s_add_u32 s42, s42, {9 * k_ssm.KG_LDS_WAVE}
    """)
    k_ssm.gen_utrans_aux(k, 40, 41, 42)
    k.label(lend)
FIN2 = "oldfin" not in var
def k3_body(k, p):
    lf = k.newlabel("fin"); lend = k.newlabel("k3end")
    k.e("s_cmp_ge_u32 s2, 144")
    k.e(f"s_cbranch_scc1 {lf}")
    k_oproj.gen_oproj(k, p)
    k.e(f"s_branch {lend}")
    k.label(lf)
    if FIN2:
        k.e("s_sub_u32 s50, s2, 144")
        k_ssm.gen_fin2(k, 50)
    else:
        k.e("""
        v_lshrrev_b32 v1, 6, v0
        s_nop 0
        v_readfirstlane_b32 s49, v1
        s_nop 3
        s_cmp_ge_u32 s49, 4
        """)
        k.e(f"s_cbranch_scc1 L_{k.name}_exit")
        k.e("s_sub_u32 s50, s2, 144")
        k_ssm.gen_fin(k, wg="s50", two=("sepconv" not in var))
    k.label(lend)
make("k1_kernel", 0, 256, 704, K1_LDS, 128, k1_body)
if "old2" in var:
    make("k2_kernel", 1, 256, 768, k_attn.ATT_LDS, k_attn.NV_K2, lambda k, p: k_attn.gen_k2(k, p, var=var))
else:
    import k_attn2
    make("k2_kernel", 1, 256, 512, k_attn2.ATT_LDS, k_attn2.NV_K2, lambda k, p: k_attn2.gen_k2(k, p, var=var))
make("k3_kernel", 2, 216 if FIN2 else 240, 512, k_oproj.OP_LDS, 100, k3_body)
import re
def add_flag(kern, flag, pred=lambda l: True):
    out = []
    for l in kern.lines:
        if "buffer_store" in l and pred(l): l = l.rstrip() + " " + flag
        out.append(l)
    kern.lines = out
def add_flag_after(kern, marker, flag):
    out = []; on = False
    for l in kern.lines:
        if marker in l: on = True
        if on and "buffer_store" in l: l = l.rstrip() + " " + flag
        out.append(l)
    kern.lines = out
for x in var:
    if x.startswith("ssm"): add_flag_after(kernels[0][0], "SSM kernel generation", x[3:].replace("_", " "))
    if x.startswith("st1"): add_flag(kernels[0][0], x[3:].replace("_", " "))
    if x.startswith("st2"): add_flag(kernels[1][0], x[3:].replace("_", " "))
    if x.startswith("st3"): add_flag(kernels[2][0], x[3:].replace("_", " "))
txt, nerr = assemble(kernels, launches)
open(sys.argv[1] if len(sys.argv) > 1 else "out.s", "w").write(txt)
print("lint errors:", nerr)
```

```python
from g import *
from sb import SB
from layout import *
from k_qkv import srd, f2u
import math

LOG2E = 1.4426950408889634
UB = 2048 * 576 * 2

UT_LDS = 36864
def gen_utrans(k, wg="s2", nw=4):
    lane = 2; t = 20
    k.c("---- u transposition ----")
    k.e(f"""
    s_load_dwordx2 s[4:5], s[0:1], 0
    s_load_dwordx2 s[6:7], s[0:1], 96
    v_lshrrev_b32 v1, 6, v0
    v_and_b32 v2, 63, v0
    s_lshr_b32 s21, {wg}, 2
    v_readfirstlane_b32 s19, v1
    s_and_b32 s22, {wg}, 3
    s_mul_i32 s24, s21, {128*1152}
    s_mul_i32 s25, s22, 288
    s_add_u32 s24, s24, s25
    s_mul_i32 s26, s19, {9*1024}
    """)
    k.e(f"""
    s_mul_i32 s27, s19, 576
    v_add_u32 v{t}, s27, v{lane}
    s_waitcnt lgkmcnt(0)
    """)
    srd(k, 8, 4, UB)
    srd(k, 12, 6, WS_END)
    k.e("s_mov_b32 s30, 3641")
    for i in range(9):
        k.e(f"""
        v_add_u32 v{t+1}, {64*i}, v{t}
        v_mul_lo_u32 v{t+2}, v{t+1}, s30
        v_lshrrev_b32 v{t+2}, 16, v{t+2}
        v_mul_u32_u24 v{t+3}, 18, v{t+2}
        v_sub_u32 v{t+3}, v{t+1}, v{t+3}
        v_mul_u32_u24 v{t+2}, 1152, v{t+2}
        v_lshl_add_u32 v{t+2}, v{t+3}, 4, v{t+2}
        s_add_u32 m0, s26, {i*1024}
        s_nop 0
        buffer_load_dwordx4 v{t+2}, s[8:11], s24 offen lds
        """)
    k.e(f"""
    v_mov_b32 v8, 0
    v_mov_b32 v9, 0
    v_mov_b32 v10, 0
    v_mov_b32 v11, 0
    s_mul_i32 s31, s22, {144*UPC}
    s_lshl_b32 s32, s21, 5
    s_add_u32 s31, s31, s32
    s_add_u32 s31, s31, {UP}
    v_and_b32 v{t+6}, 255, v0
    """)
    for i in range(5):
        k.e(f"""
        v_add_u32 v{t+1}, {256*i}, v{t+6}
        v_lshrrev_b32 v{t+2}, 3, v{t+1}
        v_mul_u32_u24 v{t+2}, {UPC}, v{t+2}
        v_bfe_u32 v{t+3}, v{t+1}, 1, 2
        v_mul_u32_u24 v{t+3}, 1536, v{t+3}
        v_add_u32 v{t+2}, v{t+2}, v{t+3}
        v_and_b32 v{t+3}, 1, v{t+1}
        v_lshl_add_u32 v{t+2}, v{t+3}, 4, v{t+2}
        """)
        if i == 4:
            k.e(f"""
            v_cmp_gt_u32 vcc, 1152, v{t+1}
            v_mov_b32 v{t+3}, -1
            s_nop 0
            v_cndmask_b32 v{t+2}, v{t+3}, v{t+2}, vcc
            s_mov_b32 s33, 0
            v_cmp_gt_u32 vcc, 1152, v{t+1}
            s_and_saveexec_b64 s[34:35], vcc
            buffer_store_dwordx4 v[8:11], v{t+2}, s[12:15], s31 offen
            s_mov_b64 exec, s[34:35]
            """)
        else:
            k.e(f"buffer_store_dwordx4 v[8:11], v{t+2}, s[12:15], s31 offen")
    k.e(f"""
    v_lshrrev_b32 v{t+1}, 4, v{lane}
    v_bfe_u32 v{t+2}, v{lane}, 2, 2
    v_lshl_add_u32 v{t+2}, v{t+1}, 5, v{t+2}
    v_mul_u32_u24 v{t+2}, 288, v{t+2}
    v_and_b32 v{t+3}, 3, v{lane}
    v_lshl_add_u32 v{t+2}, v{t+3}, 3, v{t+2}
    v_and_b32 v{t+3}, 15, v{lane}
    v_mul_u32_u24 v{t+3}, {UPC}, v{t+3}
    v_lshl_add_u32 v{t+3}, v{t+1}, 4, v{t+3}
    s_mul_i32 s31, s22, {144*UPC}
    s_lshl_b32 s32, s21, 6
    s_add_u32 s31, s31, s32
    s_add_u32 s31, s31, {UP + 512}
    s_mul_i32 s32, s19, 1536
    s_add_u32 s31, s31, s32
    s_mul_i32 s33, s19, {8*288}
    v_add_u32 v{t+2}, s33, v{t+2}
    s_waitcnt vmcnt(5)
    s_barrier
    """)
    for dg in range(9):
        b = 12 + 4 * (dg & 1)
        k.e(f"""
        ds_read_b64_tr_b16 {vr(b,2)}, v{t+2} offset:{32*dg}
        ds_read_b64_tr_b16 {vr(b+2,2)}, v{t+2} offset:{32*dg + 4*288}
        s_waitcnt lgkmcnt(0)
        buffer_store_dwordx4 {vr(b,4)}, v{t+3}, s[12:15], s31 offen
        s_add_u32 s31, s31, {16*UPC}
        """)

KG_LDS_WAVE = 53 * 256
def gen_kgen(k, chan_sgpr, ldsbase_sgpr, prof=None, after_loads=None, kloop=False):
    lane = 2
    k.c("---- SSM kernel generation ----")
    ch = chan_sgpr; lb = ldsbase_sgpr
    k.e(f"""
    s_load_dwordx8 s[44:51], s[0:1], 8
    s_load_dwordx4 s[52:55], s[0:1], 40
    s_load_dwordx2 s[56:57], s[0:1], 96
    v_lshlrev_b32 v3, 1, v{lane}
    s_lshl_b32 s22, s{ch}, 8
    s_lshl_b32 s23, s{ch}, 1
    v_mov_b32 v4, s23
    s_waitcnt lgkmcnt(0)
    """)
    S = 24
    for i in range(4): srd(k, S + 4*i, 44 + 2*i, PB)
    srd(k, S + 16, 52, 1152)
    srd(k, 16, 54, 1152)
    k.e("s_mov_b32 s54, s56")
    k.e("s_mov_b32 s55, s57")
    k.e("buffer_load_ushort v33, v4, s[16:19], 0 offen")
    k.e(f"buffer_load_ushort v5, v4, s[{S+16}:{S+19}], 0 offen")
    for i in range(4):
        for ps in range(2):
            k.e(f"buffer_load_ushort v{8+2*i+ps}, v3, s[{S+4*i}:{S+4*i+3}], s22 offen offset:{128*ps}")
    if after_loads: after_loads()
    AW = 16
    k.e("v_lshlrev_b32 v6, 2, v2")
    k.e(f"v_add_u32 v6, s{lb}, v6")
    for j in range(16):
        k.e(f"v_xor_b32 v{AW+j}, {16*j}, v6")
    k.e(f"""
    v_and_b32 v6, 31, v2
    v_lshrrev_b32 v7, 5, v2
    v_bfe_u32 v32, v6, 1, 4
    v_xor_b32 v32, v32, v7
    v_lshlrev_b32 v32, 4, v32
    v_lshl_add_u32 v32, v6, 8, v32
    v_add_u32 v32, s{lb}, v32
    """)
    RB = 32
    D = 112
    k.e("s_waitcnt vmcnt(0)")
    if prof: prof.mark()
    c_l2e = f2u(LOG2E); c_i2pi = f2u(1.0 / (2 * math.pi))
    k.e(f"""
    v_lshlrev_b32 v5, 16, v5
    v_mul_f32 v5, {c_l2e}, v5
    v_exp_f32 v5, v5
    s_nop 0
    v_cvt_pk_bf16_f32 v5, v5, v5
    v_lshlrev_b32 v5, 16, v5
    """)
    DT = 5
    def cmul(d, a, b):
        k.e(f"v_mul_f32 v36, v{a+1}, v{b+1}")
        k.e(f"v_mul_f32 v37, v{a+1}, v{b}")
        k.e(f"v_fma_f32 v38, v{a}, v{b+1}, v37")
        k.e(f"v_fma_f32 v{d}, v{a}, v{b}, -v36")
        k.e(f"v_mov_b32 v{d+1}, v38")
    def cmul2(d, a, b, t0, t1):
        k.e(f"v_mul_f32 v{t0}, v{a+1}, v{b+1}")
        k.e(f"v_mul_f32 v{t1}, v{a+1}, v{b}")
        k.e(f"v_fma_f32 v{d}, v{a}, v{b}, -v{t0}")
        k.e(f"v_fma_f32 v{d+1}, v{a}, v{b+1}, v{t1}")
    ZR, ZI = 40, 41
    def cexp(d, tt):
        k.e(f"""
        v_mul_f32 v36, {f2u(float(tt))}, v{ZR}
        v_mul_f32 v37, {f2u(float(tt))}, v{ZI}
        v_exp_f32 v36, v36
        v_fract_f32 v37, v37
        v_cos_f32 v38, v37
        v_sin_f32 v39, v37
        s_nop 0
        v_mul_f32 v{d}, v36, v38
        v_mul_f32 v{d+1}, v36, v39
        """)
    W1, W2, W4, W8, W256, W512, W768, W1024 = 42, 44, 46, 48, 50, 52, 54, 56
    CC, XA, XB_, EA, EB, TT = 58, 60, 62, 64, 66, 68
    PK = 72
    nbar = [0]
    pend = {True: None, False: None}
    def store_row(row, re, im, isA):
        r = row if isA else row - 21
        pk = (PK if isA else PK + 2) + (r & 1)
        k.e(f"v_cvt_pk_bf16_f32 v{pk}, v{re}, {'-' if isA else ''}v{im}")
        last = (r == 20) if isA else False
        if r & 1:
            k.e(f"ds_write2st64_b32 v{AW + ((r >> 1) & 15)}, v{pk-1}, v{pk} offset0:{row-1} offset1:{row}")
        elif last:
            k.e(f"ds_write_b32 v{AW + ((r >> 1) & 15)}, v{pk} offset:{row*256}")
    k.e("s_setprio 3")
    LOOPK = kloop
    if LOOPK:
        for i in range(16): k.e(f"v_mov_b32 v{D+i}, 0")
        k.e("s_mov_b32 s23, 0")
        lps = k.newlabel("pass")
        k.label(lps)
    for ps in range(1 if LOOPK else 2):
        if ps == 1: k.e("s_setprio 2")
        k.e(f"""
        v_lshlrev_b32 v36, 16, v{8+ps}
        v_mul_f32 v36, {c_l2e}, v36
        v_exp_f32 v36, v36
        v_lshlrev_b32 v37, 16, v{10+ps}
        v_lshlrev_b32 v{CC}, 16, v{12+ps}
        v_cvt_pk_bf16_f32 v36, v36, v36
        v_lshlrev_b32 v36, 16, v36
        v_mul_f32 v36, v36, v{DT}
        v_mul_f32 v37, v37, v{DT}
        v_mul_f32 v{ZR}, {f2u(-LOG2E)}, v36
        v_mul_f32 v{ZI}, {c_i2pi}, v37
        v_lshlrev_b32 v{CC+1}, 16, v{14+ps}
        v_mul_f32 v{CC}, v{CC}, v{DT}
        v_mul_f32 v{CC+1}, v{CC+1}, v{DT}
        v_add_f32 v{CC}, v{CC}, v{CC}
        v_add_f32 v{CC+1}, v{CC+1}, v{CC+1}
        """)
        cexp(W1, 1); cexp(W8, 8); cexp(W256, 256)
        cmul2(W2, W1, W1, 36, 37)
        cmul2(W4, W2, W2, 36, 37)
        cmul2(W512, W256, W256, 36, 37)
        cmul2(W768, W512, W256, 36, 37)
        cmul2(W1024, W512, W512, 36, 37)
        k.e(f"v_mov_b32 v{EA}, 1.0")
        k.e(f"v_mov_b32 v{EA+1}, 0")
        Bops = []
        cur, nx = EA, EB
        Bops.append(lambda cur=cur: store_row(21, cur, cur + 1, False))
        for b in range(1, 32):
            if b == 1:
                Bops.append(lambda: (k.e(f"v_mov_b32 v{EB}, v{W8}"), k.e(f"v_mov_b32 v{EB+1}, v{W8+1}"), store_row(22, EB, EB + 1, False)))
                cur, nx = EB, EA
            else:
                Bops.append(lambda cur=cur, nx=nx, b=b: (cmul2(nx, cur, W8, 76, 77), store_row(21 + b, nx, nx + 1, False)))
                cur, nx = nx, cur
        Aops = []
        Aops.append(lambda: store_row(0, CC, CC + 1, True))
        pa, pb = CC, XA
        seq = [XA, XB_]
        prev = CC
        for j in range(1, 8):
            dst = seq[j & 1]
            Aops.append(lambda dst=dst, prev=prev, j=j: (cmul2(dst, prev, W1, 78, 79), store_row(j, dst, dst + 1, True)))
            prev = dst
        Aops.append(lambda: (cmul2(XA, CC, W256, 78, 79), store_row(8, XA, XA + 1, True)))
        prev = XA
        for j in range(1, 4):
            dst = XB_ if prev == XA else XA
            Aops.append(lambda dst=dst, prev=prev, j=j: (cmul2(dst, prev, W2, 78, 79), store_row(8 + j, dst, dst + 1, True)))
            prev = dst
        Aops.append(lambda: (cmul2(XA, CC, W512, 78, 79), store_row(12, XA, XA + 1, True)))
        Aops.append(lambda: (cmul2(XB_, XA, W4, 78, 79), store_row(13, XB_, XB_ + 1, True)))
        Aops.append(lambda: (cmul2(XA, CC, W768, 78, 79), store_row(14, XA, XA + 1, True)))
        Aops.append(lambda: (cmul2(XB_, XA, W4, 78, 79), store_row(15, XB_, XB_ + 1, True)))
        Aops.append(lambda: (cmul2(XA, CC, W1024, 78, 79), store_row(16, XA, XA + 1, True)))
        Aops.append(lambda: (cmul2(XB_, XA, W256, 78, 79), store_row(17, XB_, XB_ + 1, True)))
        Aops.append(lambda: (cmul2(TT, XA, W512, 78, 79), store_row(18, TT, TT + 1, True)))
        Aops.append(lambda: (cmul2(XB_, XA, W768, 78, 79), store_row(19, XB_, XB_ + 1, True)))
        Aops.append(lambda: (cmul2(TT, XA, W1024, 78, 79), store_row(20, TT, TT + 1, True)))
        ia = 0
        for ib, bo in enumerate(Bops):
            bo()
            if ia < len(Aops) and (ib * len(Aops)) // len(Bops) >= ia:
                Aops[ia](); ia += 1
        while ia < len(Aops):
            Aops[ia](); ia += 1
        k.e("s_waitcnt lgkmcnt(0)")
        if prof: prof.mark()
        FA, FB = 80, 96
        for ks in range(8):
            fa = FA + 4 * (ks & 3); fb = FB + 4 * (ks & 3)
            k.e(f"v_xor_b32 v36, {32*ks}, v{RB}")
            k.e(f"ds_read_b128 {vr(fa,4)}, v36")
            k.e(f"ds_read_b128 {vr(fb,4)}, v36 offset:{21*256}")
            if ks % 4 == 3:
                k.e("s_waitcnt lgkmcnt(0)")
                for q in range(ks - 3, ks + 1):
                    c = "0" if (ps == 0 and q == 0 and not LOOPK) else vr(D, 16)
                    k.e(f"v_mfma_f32_32x32x16_bf16 {vr(D,16)}, {vr(FA+4*(q&3),4)}, {vr(FB+4*(q&3),4)}, {c}")
    if LOOPK:
        lout = k.newlabel("pdone")
        k.e(f"""
        s_cmp_eq_u32 s23, 1
        s_cbranch_scc1 {lout}
        s_mov_b32 s23, 1
        s_setprio 2
        v_mov_b32 v8, v9
        v_mov_b32 v10, v11
        v_mov_b32 v12, v13
        v_mov_b32 v14, v15
        s_branch {lps}
        """)
        k.label(lout)
    k.e("s_setprio 1")
    if prof: prof.mark()
    k.e(f"""
    v_and_b32 v6, 31, v2
    v_lshrrev_b32 v7, 5, v2
    v_lshlrev_b32 v40, 4, v6
    v_lshl_add_u32 v40, v7, 3, v40
    v_add_u32 v40, s{lb}, v40
    v_lshlrev_b32 v41, 3, v6
    v_add_u32 v41, 512, v41
    v_lshlrev_b32 v42, 2, v6
    v_add_u32 v42, 768, v42
    v_cmp_eq_u32 vcc, 1, v7
    v_mov_b32 v44, 4
    v_mov_b32 v45, 128
    v_cndmask_b32 v41, v41, v42, vcc
    v_cndmask_b32 v44, v44, v45, vcc
    v_add_u32 v41, s{lb}, v41
    v_add_u32 v42, v41, v44
    v_lshlrev_b32 v43, 1, v6
    v_add_u32 v43, 1024, v43
    v_mov_b32 v45, 1400
    v_mov_b32 v46, 1280
    v_cmp_eq_u32 s[56:57], 0, v6
    s_nop 1
    v_cndmask_b32 v45, v45, v46, s[56:57]
    v_cndmask_b32 v43, v43, v45, vcc
    v_add_u32 v43, s{lb}, v43
    """)
    k.nop(8)
    k.e(f"""
    v_lshlrev_b32 v33, 16, v33
    v_cmp_eq_u32 s[56:57], 0, v2
    v_mov_b32 v34, 0
    s_nop 0
    v_cndmask_b32 v33, v34, v33, s[56:57]
    v_add_f32 v{D}, v{D}, v33
    """)
    for j in range(6):
        k.e(f"v_cvt_pk_bf16_f32 v{48+j}, v{D+2*j}, v{D+2*j+1}")
    k.e("""
    ds_write_b16 v40, v48
    ds_write_b16_d16_hi v40, v48 offset:2
    ds_write_b16 v40, v49 offset:4
    ds_write_b16_d16_hi v40, v49 offset:6
    ds_write_b16 v41, v50
    ds_write_b16_d16_hi v41, v50 offset:2
    ds_write_b16 v42, v51
    ds_write_b16_d16_hi v42, v51 offset:2
    ds_write_b16 v43, v52
    ds_write_b16_d16_hi v43, v52 offset:64
    ds_write_b16 v43, v53 offset:128
    ds_write_b16_d16_hi v43, v53 offset:192
    """)
    E = 60
    k.e(f"""
    v_lshlrev_b32 v6, 3, v2
    v_sub_u32 v6, 2047, v6
    v_add_u32 v40, -1, v6
    v_lshl_or_b32 v40, v40, 16, v6
    s_lshr_b32 s58, s{lb}, 1
    v_cmp_gt_u32 s[56:57], 32, v2
    v_mov_b32 v41, 0
    v_mov_b32 v42, 0x00010001
    v_mov_b32 v43, s58
    v_add_u32 v44, 128, v43
    v_cndmask_b32 v41, v41, v42, s[56:57]
    v_cndmask_b32 v43, v43, v44, s[56:57]
    v_lshl_or_b32 v43, v43, 16, v43
    s_add_u32 s59, s58, 384
    s_lshl_b32 s57, s59, 16
    s_or_b32 s59, s59, s57
    s_add_u32 s58, s58, 256
    s_lshl_b32 s57, s58, 16
    s_or_b32 s58, s58, s57
    v_mov_b32 v45, s59
    v_mov_b32 v46, s58
    v_mov_b32 v47, 0x00030003
    v_mov_b32 v48, 0x00020002
    s_waitcnt lgkmcnt(0)
    """)
    k.e("s_setprio 0")
    if prof: prof.mark()
    n = 0
    for i in range(4):
        for d in range(4):
            a_ = 80 + 4 * (n & 3); n += 1
            off = (-(512 * i + 2 * d) * 0x10001) & 0xffffffff
            k.e(f"v_add_u32 v{a_}, {off}, v40")
            if i < 3:
                sh = 3 if i < 2 else 2
                c = (1 << sh >> 1) - 1
                k.e(f"""
                v_lshrrev_b32 v{a_+1}, {sh}, v{a_}
                v_and_b32 v{a_+1}, 0x00010001, v{a_+1}
                v_add_u32 v{a_}, {c * 0x10001}, v{a_}
                v_add_u32 v{a_}, v{a_}, v{a_+1}
                v_pk_lshrrev_b16 v{a_}, v{47 if sh == 3 else 48}, v{a_}
                v_add_u32 v{a_}, v{a_}, v{45 if i < 2 else 46}
                """)
            else:
                k.e(f"""
                v_lshrrev_b32 v{a_+1}, 1, v{a_}
                v_and_b32 v{a_+1}, v41, v{a_+1}
                v_add_u32 v{a_}, v{a_}, v{a_+1}
                v_pk_lshrrev_b16 v{a_}, v41, v{a_}
                v_add_u32 v{a_}, v{a_}, v43
                """)
            k.e(f"""
            v_add_u32 v{a_+1}, v{a_}, v{a_}
            v_and_b32 v{a_+1}, 0x1fffe, v{a_+1}
            v_lshrrev_b32 v{a_}, 15, v{a_}
            v_and_b32 v{a_}, 0x1fffe, v{a_}
            ds_read_u16 v{E+4*i+d}, v{a_+1}
            ds_read_u16_d16_hi v{96+4*i+d}, v{a_}
            """)
            if n % 4 == 0: k.e("s_waitcnt lgkmcnt(4)")
    k.e("s_waitcnt lgkmcnt(0)")
    for jj in range(16):
        k.e(f"v_and_b32 v{96+jj}, 0xffff0000, v{96+jj}")
        k.e(f"v_or_b32 v{E+jj}, v{E+jj}, v{96+jj}")
    k.e("s_nop 1")
    for i in range(4):
        k.e(f"v_mov_b32_dpp v{76+i}, v{E+4*i} wave_shl:1 row_mask:0xf bank_mask:0xf bound_ctrl:0")
    for i in range(3):
        k.e(f"v_readlane_b32 s56, v{E+4*(i+1)}, 0")
        k.e("s_nop 3")
        k.e(f"v_writelane_b32 v{76+i}, s56, 63")
    if prof: prof.mark()
    OO = 96
    for i in range(4):
        for d in range(4):
            nx = E + 4*i + d + 1 if d < 3 else 76 + i
            k.e(f"v_alignbit_b32 v{OO+4*i+d}, v{nx}, v{E+4*i+d}, 16")
    srd(k, S, 54, WS_END)
    k.e(f"""
    s_mul_i32 s40, s{ch}, {KRC}
    s_add_u32 s40, s40, {KR}
    s_add_u32 s41, s40, {KRH}
    v_lshlrev_b32 v7, 4, v2
    v_mov_b32 v8, 0
    v_mov_b32 v9, 0
    v_mov_b32 v10, 0
    v_mov_b32 v11, 0
    """)
    for i in range(4):
        k.e(f"buffer_store_dwordx4 {vr(E+4*i,4)}, v7, s[{S}:{S+3}], s40 offen offset:{1024*i}")
        k.e(f"buffer_store_dwordx4 {vr(OO+4*i,4)}, v7, s[{S}:{S+3}], s41 offen offset:{1024*i}")
    k.e(f"""
    s_add_u32 s40, s40, 4096
    s_add_u32 s41, s41, 4096
    s_mul_i32 s42, s{ch}, {UPC}
    s_add_u32 s42, s42, {UP}
    v_lshrrev_b32 v6, 5, v2
    v_mul_u32_u24 v6, 1536, v6
    v_and_b32 v12, 31, v2
    v_lshl_add_u32 v6, v12, 4, v6
    buffer_store_dwordx4 v[8:11], v6, s[{S}:{S+3}], s42 offen
    buffer_store_dwordx4 v[8:11], v6, s[{S}:{S+3}], s42 offen offset:3072
    s_mov_b64 exec, 0xff
    buffer_store_dwordx4 v[8:11], v7, s[{S}:{S+3}], s40 offen
    buffer_store_dwordx4 v[8:11], v7, s[{S}:{S+3}], s41 offen
    s_mov_b64 exec, -1
    """)

def gen_conv(k, widx_sgpr, PD=4, var=()):
    lane = 2
    W = widx_sgpr
    k.c("---- SSM convolution ----")
    lend = k.newlabel("cend"); l1 = k.newlabel("nt1"); ljob = k.newlabel("job")
    k.e(f"""
    s_load_dwordx2 s[54:55], s[0:1], 96
    s_cmp_ge_u32 s{W}, 864
    s_cbranch_scc1 {lend}
    s_mov_b32 s40, s{W}
    s_mov_b32 s41, 1
    s_mov_b32 s42, 64
    s_mov_b32 s43, 1
    s_cmp_lt_u32 s{W}, 576
    s_cbranch_scc1 {l1}
    s_sub_u32 s40, s{W}, 576
    s_lshl_b32 s40, s40, 1
    s_mov_b32 s41, 0
    s_mov_b32 s42, 32
    s_mov_b32 s43, 2
    """)
    k.label(l1)
    k.e(f"""
    v_and_b32 v3, 31, v{lane}
    v_lshrrev_b32 v4, 5, v{lane}
    v_and_b32 v5, 3, v3
    v_lshlrev_b32 v5, 1, v5
    v_bfe_u32 v6, v3, 2, 1
    v_or_b32 v5, v5, v6
    v_lshrrev_b32 v6, 3, v3
    v_lshl_or_b32 v5, v6, 3, v5
    v_and_b32 v6, 1, v5
    v_xor_b32 v6, 1, v6
    v_sub_u32 v7, 2047, v5
    v_sub_u32 v7, v7, v6
    v_lshl_add_u32 v7, v4, 3, v7
    v_lshlrev_b32 v7, 1, v7
    v_mul_u32_u24 v6, {KRH}, v6
    v_add_u32 v7, v7, v6
    v_add_u32 v8, {KR - 4032}, v7
    v_mul_u32_u24 v6, 1536, v4
    v_lshl_add_u32 v6, v3, 4, v6
    v_add_u32 v9, {UP + 512 - 1008}, v6
    v_lshlrev_b32 v6, 6, v3
    v_lshl_add_u32 v10, v4, 4, v6
    s_waitcnt lgkmcnt(0)
    """)
    srd(k, 60, 54, WS_END)
    k.label(ljob)
    k.e(f"""
    s_mul_i32 s44, s40, {KRC}
    s_mul_i32 s45, s40, {UPC}
    s_lshl_b32 s46, s41, 9
    s_add_u32 s45, s45, s46
    v_add_u32 v11, s44, v8
    v_add_u32 v12, s45, v9
    s_mov_b32 s47, 4032
    s_mov_b32 s48, 1008
    """)
    ACC = 16; FR = 32
    def loads(slot):
        b = FR + 16 * slot
        k.e(f"buffer_load_dwordx4 {vr(b,4)}, v11, s[60:63], s47 offen")
        k.e(f"buffer_load_dwordx4 {vr(b+4,4)}, v12, s[60:63], s48 offen")
        k.e(f"buffer_load_dwordx4 {vr(b+8,4)}, v11, s[60:63], s47 offen offset:32")
        k.e(f"buffer_load_dwordx4 {vr(b+12,4)}, v12, s[60:63], s48 offen offset:3072")
        k.e("s_sub_u32 s47, s47, 64")
        k.e("s_max_i32 s47, s47, 0")
        k.e("s_sub_u32 s48, s48, 16")
        k.e("s_max_i32 s48, s48, 0")
    for i in range(16): k.e(f"v_mov_b32 v{ACC+i}, 0")
    for slot in range(PD): loads(slot)
    k.e("s_mov_b32 s49, 0")
    ll = k.newlabel("cl")
    k.label(ll)
    for slot in range(PD):
        b = FR + 16 * slot
        k.e(f"s_waitcnt vmcnt({4*(PD-1)+2})")
        k.e(f"v_mfma_f32_32x32x16_bf16 {vr(ACC,16)}, {vr(b,4)}, {vr(b+4,4)}, {vr(ACC,16)}")
        k.e(f"s_waitcnt vmcnt({4*(PD-1)})")
        k.e(f"v_mfma_f32_32x32x16_bf16 {vr(ACC,16)}, {vr(b+8,4)}, {vr(b+12,4)}, {vr(ACC,16)}")
        loads(slot)
    k.e(f"""
    s_add_u32 s49, s49, {PD}
    s_cmp_lt_u32 s49, s42
    s_cbranch_scc1 {ll}
    s_mul_i32 s44, s40, 4096
    s_lshl_b32 s46, s41, 11
    s_add_u32 s44, s44, s46
    s_add_u32 s44, s44, {YT}
    s_waitcnt vmcnt(0)
    """)
    k.nop(8)
    for g in range(2):
        for e in range(4):
            k.e(f"v_permlane32_swap_b32 v{ACC+8*g+e}, v{ACC+8*g+4+e}")
    k.e("s_nop 1")
    for g in range(2):
        for e in range(4):
            k.e(f"v_cvt_pk_bf16_f32 v{FR+4*g+e}, v{ACC+8*g+e}, v{ACC+8*g+4+e}")
        k.e(f"buffer_store_dwordx4 {vr(FR+4*g,4)}, v10, s[60:63], s44 offen offset:{32*g}")
    k.e(f"""
    s_add_u32 s40, s40, 1
    s_sub_u32 s43, s43, 1
    s_cmp_lg_u32 s43, 0
    s_nop 1
    s_cbranch_scc1 {ljob}
    """)
    k.label(lend)

FIN_LDS = 2 * 192 * 128
def gen_fin(k, wg="s2", two=True):
    lane = 2; t = 32
    k.c("---- SSM finalisation ----")
    k.e(f"""
    s_load_dwordx2 s[26:27], s[0:1], 80
    s_load_dwordx2 s[28:29], s[0:1], 96
    v_lshrrev_b32 v1, 6, v0
    v_and_b32 v2, 63, v0
    s_mul_i32 s21, {wg}, 21846
    v_readfirstlane_b32 s38, v1
    s_lshr_b32 s21, s21, 16
    s_mul_i32 s22, s21, 3
    s_sub_u32 s22, {wg}, s22
    """)
    k.e(f"""
    s_mul_i32 s24, s22, {192*4096}
    s_lshl_b32 s25, s21, 7
    s_add_u32 s24, s24, s25
    s_mul_i32 s25, s38, {48*4096}
    s_add_u32 s24, s24, s25
    s_add_u32 s24, s24, {YT}
    s_mul_i32 s30, s38, 6144
    v_lshrrev_b32 v{t}, 3, v{lane}
    v_bfe_u32 v{t+1}, v{lane}, 4, 1
    v_lshlrev_b32 v{t+1}, 1, v{t+1}
    v_and_b32 v{t+2}, 7, v{lane}
    v_xor_b32 v{t+2}, v{t+2}, v{t+1}
    v_lshlrev_b32 v{t}, 12, v{t}
    v_lshl_add_u32 v{t+3}, v{t+2}, 4, v{t}
    v_xor_b32 v{t+2}, 4, v{t+2}
    v_lshl_add_u32 v{t+4}, v{t+2}, 4, v{t}
    s_waitcnt lgkmcnt(0)
    """)
    srd(k, 8, 28, WS_END)
    srd(k, 16, 26, OUTB)
    for i in range(6):
        k.e(f"""
        s_add_u32 m0, s30, {i*1024}
        s_add_u32 s31, s24, {i*8*4096}
        buffer_load_dwordx4 v{t+3 if i % 2 == 0 else t+4}, s[8:11], s31 offen lds
        """)
    if two:
        k.e(f"""
        s_mul_i32 s39, s22, {192*2048}
        s_lshl_b32 s25, s21, 7
        s_add_u32 s39, s39, s25
        s_mul_i32 s25, s38, {48*2048}
        s_add_u32 s39, s39, s25
        s_add_u32 s39, s39, {YT2 - 2048}
        s_cmp_ge_u32 s21, 16
        s_cselect_b32 s39, s39, 0x40000000
        v_lshrrev_b32 v{t+9}, 3, v{lane}
        v_lshlrev_b32 v{t+9}, 11, v{t+9}
        v_sub_u32 v{t+10}, v{t+4}, v{t}
        v_sub_u32 v{t+11}, v{t+3}, v{t}
        v_add_u32 v{t+10}, v{t+10}, v{t+9}
        v_add_u32 v{t+11}, v{t+11}, v{t+9}
        """)
        for i in range(6):
            k.e(f"""
            s_add_u32 m0, s30, {24576 + i*1024}
            s_add_u32 s31, s39, {i*8*2048}
            buffer_load_dwordx4 v{t+11 if i % 2 == 0 else t+10}, s[8:11], s31 offen lds
            """)
    k.e(f"""
    v_lshrrev_b32 v{t}, 4, v{lane}
    v_bfe_u32 v{t+1}, v{lane}, 2, 2
    v_lshl_add_u32 v{t+2}, v{t}, 3, v{t+1}
    v_lshlrev_b32 v{t+2}, 7, v{t+2}
    v_bfe_u32 v{t+5}, v{lane}, 1, 1
    s_lshl_b32 s31, s38, 1
    v_add_u32 v{t+5}, s31, v{t+5}
    v_bfe_u32 v{t+6}, v{lane}, 3, 1
    v_lshlrev_b32 v{t+6}, 1, v{t+6}
    v_and_b32 v{t+7}, 1, v{t}
    v_lshl_or_b32 v{t+6}, v{t+7}, 2, v{t+6}
    v_xor_b32 v{t+5}, v{t+5}, v{t+6}
    v_lshl_add_u32 v{t+2}, v{t+5}, 4, v{t+2}
    v_and_b32 v{t+5}, 1, v{lane}
    v_lshl_add_u32 v{t+2}, v{t+5}, 3, v{t+2}
    v_and_b32 v{t+5}, 15, v{lane}
    s_lshl_b32 s31, s21, 6
    s_lshl_b32 s36, s38, 4
    s_add_u32 s31, s31, s36
    v_add_u32 v{t+5}, s31, v{t+5}
    v_mul_u32_u24 v{t+7}, 2304, v{t+5}
    v_lshl_add_u32 v{t+7}, v{t}, 4, v{t+7}
    s_mul_i32 s36, s22, 384
    """)
    k.e("s_waitcnt vmcnt(0)")
    k.e("s_barrier")
    k.e("s_mov_b32 s37, 0xffff0000")
    for oq in range(6):
        Y = 8 + 8 * (oq & 1)
        k.e(f"""
        ds_read_b64_tr_b16 {vr(Y,2)}, v{t+2} offset:{oq*4096}
        ds_read_b64_tr_b16 {vr(Y+2,2)}, v{t+2} offset:{oq*4096 + 512}
        """)
        if not two:
            k.e("s_waitcnt lgkmcnt(0)")
            k.e(f"buffer_store_dwordx4 {vr(Y,4)}, v{t+7}, s[16:19], s36 offen offset:{64*oq}")
            continue
        k.e(f"""
        ds_read_b64_tr_b16 {vr(Y+4,2)}, v{t+2} offset:{24576 + oq*4096}
        ds_read_b64_tr_b16 {vr(Y+6,2)}, v{t+2} offset:{24576 + oq*4096 + 512}
        s_waitcnt lgkmcnt(0)
        """)
        O_ = 24 + 4 * (oq & 1)
        for i in range(4):
            k.e(f"""
            v_lshlrev_b32 v48, 16, v{Y+i}
            v_and_b32 v49, s37, v{Y+i}
            v_lshlrev_b32 v50, 16, v{Y+4+i}
            v_and_b32 v51, s37, v{Y+4+i}
            v_add_f32 v48, v48, v50
            v_add_f32 v49, v49, v51
            v_cvt_pk_bf16_f32 v{O_+i}, v48, v49
            """)
        k.e(f"buffer_store_dwordx4 {vr(O_,4)}, v{t+7}, s[16:19], s36 offen offset:{64*oq}")


def gen_kgen_with_barriers(k, chan_sgpr, ldsbase_sgpr, nbar):
    tmp = K(k.name + "_kg")
    tmp.uid = k.uid + 1000
    gen_kgen(tmp, chan_sgpr, ldsbase_sgpr)
    k.uid = tmp.uid
    lines = tmp.lines
    idx = [i for i, l in enumerate(lines) if l.strip() and not l.strip().startswith(";") and not l.strip().endswith(":")]
    n = len(idx)
    first = next(i for i in idx if "s_waitcnt vmcnt(0)" in lines[i])
    rest = [i for i in idx if i > first]
    pos = [first] + [rest[int(len(rest) * 0.85 * j / (nbar - 1))] for j in range(1, nbar)]
    out = []
    ps = set(pos)
    assert len(ps) == nbar
    for i, l in enumerate(lines):
        out.append(l)
        if i in ps: out.append("    s_barrier")
    k.lines += out


UTW_LDS = 4096
def gen_utrans_wave(k, task_sgpr, lds_sgpr):
    T = task_sgpr; LB = lds_sgpr
    k.c("---- u transposition (per wave) ----")
    k.e(f"""
    s_load_dwordx2 s[4:5], s[0:1], 0
    s_load_dwordx2 s[6:7], s[0:1], 96
    s_mul_i32 s22, s{T}, 1821
    s_lshr_b32 s22, s22, 16
    s_mul_i32 s23, s22, 36
    s_sub_u32 s23, s{T}, s23
    s_mul_i32 s24, s22, {128*1152}
    s_lshl_b32 s25, s23, 5
    s_add_u32 s24, s24, s25
    v_lshrrev_b32 v3, 1, v2
    v_mul_u32_u24 v3, 1152, v3
    v_and_b32 v4, 1, v2
    v_lshl_add_u32 v3, v4, 4, v3
    s_waitcnt lgkmcnt(0)
    """)
    srd(k, 8, 4, UB)
    srd(k, 12, 6, WS_END)
    for i in range(4):
        k.e(f"""
        s_add_u32 m0, s{LB}, {i*1024}
        s_add_u32 s26, s24, {i*32*1152}
        buffer_load_dwordx4 v3, s[8:11], s26 offen lds
        """)
    k.e(f"""
    v_mov_b32 v8, 0
    v_mov_b32 v9, 0
    v_mov_b32 v10, 0
    v_mov_b32 v11, 0
    v_and_b32 v5, 15, v2
    v_mul_u32_u24 v5, {UPC}, v5
    v_lshrrev_b32 v6, 4, v2
    v_mul_u32_u24 v7, 1536, v6
    v_add_u32 v7, v7, v5
    s_mul_i32 s27, s23, {16*UPC}
    s_add_u32 s27, s27, {UP}
    s_lshl_b32 s28, s22, 5
    s_add_u32 s28, s28, s27
    buffer_store_dwordx4 v[8:11], v7, s[12:15], s28 offen
    buffer_store_dwordx4 v[8:11], v7, s[12:15], s28 offen offset:16
    v_lshl_add_u32 v5, v6, 4, v5
    s_lshl_b32 s28, s22, 6
    s_add_u32 s28, s28, s27
    s_add_u32 s28, s28, 512
    v_bfe_u32 v12, v2, 2, 2
    v_lshl_add_u32 v12, v6, 5, v12
    v_lshlrev_b32 v12, 5, v12
    v_and_b32 v13, 3, v2
    v_lshl_add_u32 v12, v13, 3, v12
    v_add_u32 v12, s{LB}, v12
    s_waitcnt vmcnt(2)
    """)
    for p in range(4):
        b = 16 + 4 * p
        k.e(f"ds_read_b64_tr_b16 {vr(b,2)}, v12 offset:{p*8*32}")
        k.e(f"ds_read_b64_tr_b16 {vr(b+2,2)}, v12 offset:{p*8*32 + 4*32}")
    for p in range(4):
        b = 16 + 4 * p
        k.e(f"s_waitcnt lgkmcnt({6 - 2*p})")
        k.e(f"buffer_store_dwordx4 {vr(b,4)}, v5, s[12:15], s28 offen offset:{p*1536 if p*1536 < 4096 else 0}" if p < 3 else f"s_add_u32 s28, s28, 4608\nbuffer_store_dwordx4 {vr(b,4)}, v5, s[12:15], s28 offen")


UTA_LDS = 64 * 288
def gen_utrans_aux(k, tb64_sgpr, db_sgpr, lds_sgpr, after_loads=None):
    TB = tb64_sgpr; DB = db_sgpr; LB = lds_sgpr
    k.c("---- u transposition (aux wave) ----")
    k.e(f"""
    s_load_dwordx2 s[4:5], s[0:1], 0
    s_load_dwordx2 s[6:7], s[0:1], 96
    s_mul_i32 s24, s{TB}, {64*1152}
    s_mul_i32 s25, s{DB}, 288
    s_add_u32 s24, s24, s25
    s_mov_b32 s30, 3641
    s_waitcnt lgkmcnt(0)
    """)
    srd(k, 8, 4, UB)
    srd(k, 12, 6, WS_END)
    for i in range(18):
        k.e(f"""
        v_add_u32 v4, {64*i}, v2
        v_mul_lo_u32 v5, v4, s30
        v_lshrrev_b32 v5, 16, v5
        v_mul_u32_u24 v6, 18, v5
        v_sub_u32 v6, v4, v6
        v_mul_u32_u24 v5, 1152, v5
        v_lshl_add_u32 v5, v6, 4, v5
        s_add_u32 m0, s{LB}, {i*1024}
        s_nop 0
        buffer_load_dwordx4 v5, s[8:11], s24 offen lds
        """)
    if after_loads: after_loads()
    k.e(f"""
    v_and_b32 v4, 15, v2
    v_mul_u32_u24 v4, {UPC}, v4
    v_lshrrev_b32 v5, 4, v2
    s_mul_i32 s27, s{DB}, {144*UPC}
    s_add_u32 s27, s27, {UP}
    """)
    k.e(f"""
    v_and_b32 v7, 1, v5
    v_lshrrev_b32 v12, 1, v5
    v_lshlrev_b32 v13, 5, v7
    v_lshl_add_u32 v13, v12, 3, v13
    v_bfe_u32 v14, v2, 2, 2
    v_add_u32 v13, v13, v14
    v_mul_u32_u24 v13, 288, v13
    v_and_b32 v14, 3, v2
    v_lshl_add_u32 v13, v14, 3, v13
    v_add_u32 v13, s{LB}, v13
    v_mul_u32_u24 v12, 1536, v12
    v_lshl_add_u32 v12, v7, 4, v12
    v_add_u32 v12, v12, v4
    s_lshl_b32 s28, s{TB}, 5
    s_add_u32 s28, s28, s27
    s_add_u32 s28, s28, 512
    s_waitcnt vmcnt(0)
    """)
    for dg in range(9):
        for pp in range(2):
            b = 16 + 4 * ((2 * dg + pp) & 3)
            k.e(f"ds_read_b64_tr_b16 {vr(b,2)}, v13 offset:{32*dg + pp*16*288}")
            k.e(f"ds_read_b64_tr_b16 {vr(b+2,2)}, v13 offset:{32*dg + pp*16*288 + 4*288}")
            k.e("s_waitcnt lgkmcnt(0)")
            k.e(f"buffer_store_dwordx4 {vr(b,4)}, v12, s[12:15], s28 offen offset:{pp*3072}")
        k.e(f"s_add_u32 s28, s28, {16*UPC}")


def gen_fin2(k, f_sgpr):
    lane = 2; t = 32
    F = f_sgpr
    k.c("---- SSM output transposition ----")
    lg8 = k.newlabel("g8"); ld = k.newlabel("gd")
    k.e(f"""
    s_load_dwordx2 s[26:27], s[0:1], 80
    s_load_dwordx2 s[28:29], s[0:1], 96
    v_lshrrev_b32 v1, 6, v0
    v_and_b32 v2, 63, v0
    s_and_b32 s22, s{F}, 7
    v_readfirstlane_b32 s38, v1
    s_lshr_b32 s21, s{F}, 3
    s_cmp_lt_u32 s{F}, 64
    s_cbranch_scc1 {ld}
    s_mov_b32 s22, 8
    s_sub_u32 s21, s{F}, 64
    """)
    k.label(ld)
    k.e(f"""
    s_mul_i32 s24, s22, {64*4096}
    s_lshl_b32 s25, s21, 9
    s_add_u32 s24, s24, s25
    s_mul_i32 s25, s38, {8*4096}
    s_add_u32 s24, s24, s25
    s_add_u32 s24, s24, {YT}
    s_mul_i32 s39, s22, {64*2048}
    s_lshl_b32 s25, s21, 9
    s_add_u32 s39, s39, s25
    s_mul_i32 s25, s38, {8*2048}
    s_add_u32 s39, s39, s25
    s_add_u32 s39, s39, {YT2 - 2048}
    s_cmp_ge_u32 s21, 4
    s_cselect_b32 s39, s39, 0x40000000
    s_lshl_b32 s30, s38, 12
    s_and_b32 s31, s38, 1
    s_lshl_b32 s31, s31, 3
    v_lshrrev_b32 v{t}, 5, v{lane}
    v_and_b32 v{t+1}, 31, v{lane}
    v_lshlrev_b32 v{t+2}, 1, v{t}
    v_add_u32 v{t+2}, s31, v{t+2}
    v_xor_b32 v{t+3}, v{t+1}, v{t+2}
    v_xor_b32 v{t+4}, 4, v{t+3}
    v_lshlrev_b32 v{t+3}, 4, v{t+3}
    v_lshlrev_b32 v{t+4}, 4, v{t+4}
    v_lshlrev_b32 v{t+5}, 12, v{t}
    v_lshlrev_b32 v{t+6}, 11, v{t}
    v_add_u32 v{t+7}, v{t+3}, v{t+5}
    v_add_u32 v{t+8}, v{t+4}, v{t+5}
    v_add_u32 v{t+9}, v{t+3}, v{t+6}
    v_add_u32 v{t+10}, v{t+4}, v{t+6}
    s_waitcnt lgkmcnt(0)
    """)
    srd(k, 8, 28, WS_END)
    srd(k, 16, 26, OUTB)
    for i in range(4):
        k.e(f"""
        s_add_u32 m0, s30, {i*1024}
        s_add_u32 s31, s24, {i*2*4096}
        buffer_load_dwordx4 v{t+7 if i % 2 == 0 else t+8}, s[8:11], s31 offen lds
        """)
    for i in range(4):
        k.e(f"""
        s_add_u32 m0, s30, {32768 + i*1024}
        s_add_u32 s31, s39, {i*2*2048}
        buffer_load_dwordx4 v{t+9 if i % 2 == 0 else t+10}, s[8:11], s31 offen lds
        """)
    k.e(f"""
    v_lshrrev_b32 v{t}, 4, v{lane}
    v_bfe_u32 v{t+1}, v{lane}, 2, 2
    v_lshl_add_u32 v{t+2}, v{t}, 3, v{t+1}
    v_lshlrev_b32 v{t+2}, 9, v{t+2}
    v_and_b32 v{t+3}, 1, v{t}
    v_lshlrev_b32 v{t+3}, 3, v{t+3}
    v_lshl_add_u32 v{t+3}, v{t+1}, 1, v{t+3}
    v_bfe_u32 v{t+4}, v{lane}, 1, 1
    s_lshl_b32 s31, s38, 2
    v_add_u32 v{t+4}, s31, v{t+4}
    v_xor_b32 v{t+5}, v{t+4}, v{t+3}
    v_add_u32 v{t+4}, 2, v{t+4}
    v_xor_b32 v{t+6}, v{t+4}, v{t+3}
    v_and_b32 v{t+4}, 1, v{lane}
    v_lshl_add_u32 v{t+2}, v{t+4}, 3, v{t+2}
    v_lshl_add_u32 v{t+5}, v{t+5}, 4, v{t+2}
    v_lshl_add_u32 v{t+6}, v{t+6}, 4, v{t+2}
    v_and_b32 v{t+4}, 15, v{lane}
    s_lshl_b32 s31, s21, 8
    s_lshl_b32 s36, s38, 5
    s_add_u32 s31, s31, s36
    v_add_u32 v{t+4}, s31, v{t+4}
    v_mul_u32_u24 v{t+4}, 2304, v{t+4}
    v_lshl_add_u32 v{t+4}, v{t}, 4, v{t+4}
    s_lshl_b32 s36, s22, 7
    s_mov_b32 s37, 0xffff0000
    s_waitcnt vmcnt(0)
    s_barrier
    """)
    n = 0
    for tgi in range(2):
        for oh in range(2):
            a = t + 5 + tgi
            Y = 8 + 8 * (n & 1); O_ = 24 + 4 * (n & 1); n += 1
            base = oh * 32 * 512
            k.e(f"""
            ds_read_b64_tr_b16 {vr(Y,2)}, v{a} offset:{base}
            ds_read_b64_tr_b16 {vr(Y+2,2)}, v{a} offset:{base + 4*512}
            ds_read_b64_tr_b16 {vr(Y+4,2)}, v{a} offset:{32768 + base}
            ds_read_b64_tr_b16 {vr(Y+6,2)}, v{a} offset:{32768 + base + 4*512}
            s_waitcnt lgkmcnt(0)
            """)
            for i in range(4):
                k.e(f"""
                v_lshlrev_b32 v48, 16, v{Y+i}
                v_and_b32 v49, s37, v{Y+i}
                v_lshlrev_b32 v50, 16, v{Y+4+i}
                v_and_b32 v51, s37, v{Y+4+i}
                v_add_f32 v48, v48, v50
                v_add_f32 v49, v49, v51
                v_cvt_pk_bf16_f32 v{O_+i}, v48, v49
                """)
            so = tgi * 16 * 2304
            k.e(f"s_add_u32 s31, s36, {so}")
            k.e(f"buffer_store_dwordx4 {vr(O_,4)}, v{t+4}, s[16:19], s31 offen offset:{64*oh}")
```

```python
import sys
from g import *
from build import assemble
import k_qkv, k_attn, k_oproj
STAMPS = "stamps" in sys.argv
PROFON = "prof" in sys.argv
var = [a[2:] for a in sys.argv if a.startswith('v=')]
if 'base' not in var: var += ['rebal', 'b2s', 'odma'] + ([] if any(x.startswith('pe') for x in var) else ['pe24']) + ([] if 'nopfb' in var else ['pfb'])
kernels = []; launches = []
def make(name, idx, nwg, block, lds, nv, body):
    k = K(name)
    if STAMPS: stamp_id(k, 8); stamp_begin(k)
    k.e(f"s_cmp_ge_u32 s2, {nwg}")
    k.e(f"s_cbranch_scc1 L_{name}_exit")
    PR = Prof(k, PROFON, idx)
    if PR.on:
        stamp_id(k, 8)
        k.e("s_memtime s[56:57]\ns_waitcnt lgkmcnt(0)\ns_mov_b32 s83, s56\ns_memrealtime s[56:57]\ns_waitcnt lgkmcnt(0)\ns_mov_b32 s55, s56")
    body(k, PR if PR.on else None)
    if PR.on:
        PR.mark(); k.e("s_mov_b32 s82, s83"); PR.n = 23; PR.dump()
    if STAMPS: stamp_end(k, idx)
    k.label(f"L_{name}_exit")
    k.e("s_endpgm")
    kernels.append((k, nv, 96)); launches.append((name, nwg, block, lds))

import k_ssm
K1_LDS = max(k_qkv.GEMM_LDS, 9 * k_ssm.KG_LDS_WAVE + 2 * k_ssm.UTA_LDS)
def k1_body(k, p):
    lut = k.newlabel("ut"); lkg = k.newlabel("kg"); lend = k.newlabel("k1end")
    k.e("""
    v_lshrrev_b32 v1, 6, v0
    v_and_b32 v2, 63, v0
    s_nop 0
    v_readfirstlane_b32 s49, v1
    s_nop 3
    """)
    if "noipf" not in var:
        lhere = k.newlabel("pc"); lsk = k.newlabel("ipfskip")
        k.e(f"""
        s_cmp_ge_u32 s2, 8
        s_cbranch_scc1 {lsk}
        s_cmp_lt_u32 s49, 8
        s_cbranch_scc1 {lsk}
        s_getpc_b64 s[4:5]
        """)
        k.label(lhere)
        k.e(f"""
        s_add_u32 s4, s4, k1_kernel - {lhere}
        s_addc_u32 s5, s5, -1
        s_sub_u32 s6, s49, 8
        s_lshl_b32 s6, s6, 13
        s_mov_b32 s7, L_text_end - k1_kernel - 4
        v_lshlrev_b32 v6, 7, v2
        """)
        for j in range(3):
            k.e(f"""
            v_add_u32 v4, s6, v6
            v_min_u32 v4, s7, v4
            v_mov_b32 v5, s5
            v_add_co_u32 v4, vcc, s4, v4
            s_add_u32 s6, s6, 24576
            s_nop 0
            v_addc_co_u32 v5, vcc, 0, v5, vcc
            global_load_dword v{40+j}, v[4:5], off
            """)
        k.label(lsk)
    k.e("s_cmp_ge_u32 s2, 192")
    k.e(f"s_cbranch_scc1 {lkg}")
    lpf = k.newlabel("pf")
    k.e("s_cmp_ge_u32 s49, 8")
    k.e(f"s_cbranch_scc1 {lpf}")
    k_qkv.gen_qkv(k, p)
    k.e(f"s_branch {lend}")
    k.label(lpf)
    KG8 = "kg8" in var
    if KG8:
        lrest = k.newlabel("rest")
        k.e("s_cmp_lg_u32 s49, 10")
        k.e(f"s_cbranch_scc1 {lrest}")
        k.e("s_cmp_ge_u32 s2, 64")
        k.e(f"s_cbranch_scc1 {lrest}")
        k.e(f"""
        s_add_u32 s20, s2, 512
        s_mov_b32 s21, {k_qkv.GEMM_LDS + 1024}
        s_barrier
        """)
        k_ssm.gen_kgen_with_barriers(k, 20, 21, 9)
        k.e(f"s_branch L_{k.name}_exit")
        k.label(lrest)
    if "nopf" not in var:
        k_qkv.gen_prefetch(k, 49, k_qkv.GEMM_LDS, first_after=(0 if "pf0" in var else 1), burst=("pfb" in var), early=(24 if "pe24" in var else 48 if "pe48" in var else 72 if "pe72" in var else 0))
    k.e(f"s_branch L_{k.name}_exit")
    k.label(lkg)
    k.e("s_cmp_ge_u32 s49, 9")
    k.e(f"s_cbranch_scc1 {lut}")
    if KG8:
        k.e("s_cmp_eq_u32 s49, 8")
        k.e(f"s_cbranch_scc1 L_{k.name}_exit")
    k.e(f"""
    s_sub_u32 s20, s2, 192
    s_mul_i32 s20, s20, {8 if KG8 else 9}
    s_add_u32 s20, s20, s49
    s_mul_i32 s21, s49, {k_ssm.KG_LDS_WAVE}
    """)
    if p: p.n = 0
    k_ssm.gen_kgen(k, 20, 21, p, kloop=('kloop' in var))
    k.e(f"s_branch {lend}")
    k.label(lut)
    k.e(f"""
    s_sub_u32 s40, s2, 192
    s_and_b32 s41, s40, 3
    s_lshr_b32 s40, s40, 2
    s_lshl_b32 s40, s40, 1
    s_sub_u32 s42, s49, 9
    s_add_u32 s40, s40, s42
    s_mul_i32 s42, s42, {k_ssm.UTA_LDS}
    s_add_u32 s42, s42, {9 * k_ssm.KG_LDS_WAVE}
    """)
    k_ssm.gen_utrans_aux(k, 40, 41, 42)
    k.label(lend)
FIN2 = "oldfin" not in var
def k3_body(k, p):
    lf = k.newlabel("fin"); lend = k.newlabel("k3end")
    k.e("s_cmp_ge_u32 s2, 144")
    k.e(f"s_cbranch_scc1 {lf}")
    k_oproj.gen_oproj(k, p)
    k.e(f"s_branch {lend}")
    k.label(lf)
    if FIN2:
        k.e("s_sub_u32 s50, s2, 144")
        k_ssm.gen_fin2(k, 50)
    else:
        k.e("""
        v_lshrrev_b32 v1, 6, v0
        s_nop 0
        v_readfirstlane_b32 s49, v1
        s_nop 3
        s_cmp_ge_u32 s49, 4
        """)
        k.e(f"s_cbranch_scc1 L_{k.name}_exit")
        k.e("s_sub_u32 s50, s2, 144")
        k_ssm.gen_fin(k, wg="s50", two=("sepconv" not in var))
    k.label(lend)
make("k1_kernel", 0, 256, 704, K1_LDS, 128, k1_body)
if "old2" in var:
    make("k2_kernel", 1, 256, 768, k_attn.ATT_LDS, k_attn.NV_K2, lambda k, p: k_attn.gen_k2(k, p, var=var))
else:
    import k_attn2
    make("k2_kernel", 1, 256, 512, k_attn2.ATT_LDS, k_attn2.NV_K2, lambda k, p: k_attn2.gen_k2(k, p, var=var))
make("k3_kernel", 2, 216 if FIN2 else 240, 512, k_oproj.OP_LDS, 100, k3_body)
import re
def add_flag(kern, flag, pred=lambda l: True):
    out = []
    for l in kern.lines:
        if "buffer_store" in l and pred(l): l = l.rstrip() + " " + flag
        out.append(l)
    kern.lines = out
def add_flag_after(kern, marker, flag):
    out = []; on = False
    for l in kern.lines:
        if marker in l: on = True
        if on and "buffer_store" in l: l = l.rstrip() + " " + flag
        out.append(l)
    kern.lines = out
for x in var:
    if x.startswith("ssm"): add_flag_after(kernels[0][0], "SSM kernel generation", x[3:].replace("_", " "))
    if x.startswith("st1"): add_flag(kernels[0][0], x[3:].replace("_", " "))
    if x.startswith("st2"): add_flag(kernels[1][0], x[3:].replace("_", " "))
    if x.startswith("st3"): add_flag(kernels[2][0], x[3:].replace("_", " "))
txt, nerr = assemble(kernels, launches)
open(sys.argv[1] if len(sys.argv) > 1 else "out.s", "w").write(txt)
print("lint errors:", nerr)
```

```python
import sys
from g import *
HEADER = open("concat_heads__ssm_conv_s4d__mha_block__prompt.s.ref").read().split("; Override launch geometry")[0]

def assemble(kernels, launches):
    out = [HEADER.rstrip("\n")]
    out += [
        "; Three launches (hand-written generator output):",
        ";  k1: QKV projection (192 workgroups, MFMA, LDS-DMA ring) + S4D kernel generation and input transposition (64 workgroups)",
        ";  k2: attention, one head x 256 queries per workgroup, K/V resident in LDS; waves 0..3 also run the causal S4D convolution",
        ";      (Toeplitz MFMA). Softmax uses no shift in the fast path; a run-time range check of the row sums falls back to an",
        ";      exact two-pass path that subtracts the true row maximum.",
        ";  k3: output projection + transposition of the convolution output.",
    ]
    for (n, g, b, l) in launches:
        out.append(f"; @launch kernel={n} grid=({g},1,1) block=({b},1,1) lds={l}")
    out.append('.amdgcn_target "amdgcn-amd-amdhsa--gfx950"')
    nerr = 0
    for (k, vg, sg) in kernels:
        errs = lint(k.text())
        for x in errs[:20]: print("LINT", k.name, x, file=sys.stderr)
        nerr += len(errs)
        out.append(kernel_text(k, vg))
    out.append("L_text_end:")
    out.append('.section .rodata,"a"')
    for (k, vg, sg) in kernels:
        out.append(descriptor(k.name, vg, sg))
    return "\n".join(out) + "\n", nerr
```
